```python
import torch

def _softmax(x, axis=-1):
    return torch.softmax(x, dim=axis)
def _gelu(x):
    return torch.nn.functional.gelu(x, approximate="tanh")
def _silu(x):
    return torch.nn.functional.silu(x)
def _sigmoid(x):
    return torch.sigmoid(x)
def _layernorm(x, axis=-1, eps=1e-5):
    m = x.mean(dim=axis, keepdim=True)
    v = x.var(dim=axis, keepdim=True, unbiased=False)
    return (x - m) / torch.sqrt(v + eps)
def _scatter_add(tgt, idx, src, axis=0):
    return tgt.clone().index_add_(axis, idx, src)
def _segment_sum(src, seg, n):
    out = torch.zeros((n,) + src.shape[1:], dtype=src.dtype)
    return out.index_add_(0, seg, src)
def _pad(x, pw):
    flat = tuple(v for pair in reversed(pw) for v in pair)
    return torch.nn.functional.pad(x, flat)

kernel_name = 'sequential_preLN__softmax_full_mha__glu_gated_swiglu__prompt'

def setup_inputs():

    _w = (lambda a: (lambda t: t.to(torch.bfloat16) if t.is_floating_point() else t)(torch.as_tensor(a)))
    def _A_setup():
        B, S, D = 1, 2048, 512
        return {
            "x": _w((lambda *s: torch.randn(*s, dtype=torch.bfloat16) * 0.05)(B, S, D)),
            "wqkv": _w((lambda *s: torch.randn(*s, dtype=torch.bfloat16) * 0.05)(D, 3 * D)),
            "wo": _w((lambda *s: torch.randn(*s, dtype=torch.bfloat16) * 0.05)(D, D)),
        }
    _A_in = _A_setup()

    def _B_setup():
        B, S, D, F = 1, 2048, 512, 1376
        return {
            "x": _w((lambda *s: torch.randn(*s, dtype=torch.bfloat16) * 0.05)(B, S, D)),
            "w1": _w((lambda *s: torch.randn(*s, dtype=torch.bfloat16) * 0.4)(D, F) * (2.0 / D) ** 0.5),
            "w3": _w((lambda *s: torch.randn(*s, dtype=torch.bfloat16) * 0.4)(D, F) * (2.0 / D) ** 0.5),
            "w2": _w((lambda *s: torch.randn(*s, dtype=torch.bfloat16) * 0.4)(F, D) * (2.0 / F) ** 0.5),
        }
    _B_in = _B_setup()

    return {
        "A_x": _A_in["x"],
        "A_wqkv": _A_in["wqkv"],
        "A_wo": _A_in["wo"],
        "B_x": _B_in["x"],
        "B_w1": _B_in["w1"],
        "B_w3": _B_in["w3"],
        "B_w2": _B_in["w2"],
    }

def reference(A_x, A_wqkv, A_wo, B_x, B_w1, B_w3, B_w2):
    def _A_ref(x, wqkv, wo):
        B, S, D = x.shape
        H = 32; Dh = D // H
        qkv = (lambda x, *d: x.permute(*d))((x @ wqkv).reshape(B, S, 3, H, Dh), 2, 0, 3, 1, 4)
        q, k, v = qkv[0], qkv[1], qkv[2]
        scale = Dh ** -0.5
        scores = torch.einsum("bhqd,bhkd->bhqk", q, k) * scale
        p = _softmax(scores, axis=-1)
        o = torch.einsum("bhqk,bhkd->bhqd", p, v)
        return (lambda x, *d: x.permute(*d))(o, 0, 2, 1, 3).reshape(B, S, D) @ wo

    def _B_ref(x, w1, w3, w2):
        gate = torch.einsum("bsd,df->bsf", x, w1)
        up = torch.einsum("bsd,df->bsf", x, w3)
        h = _silu(gate) * up
        out = torch.einsum("bsf,fd->bsd", h, w2)
        return out

    x = A_x
    h = x + _A_ref(_layernorm(x, axis=-1), A_wqkv, A_wo)
    h2 = h + _B_ref(_layernorm(h, axis=-1), B_w1, B_w3, B_w2)
    return h2
```

```python
class Asm:
    def __init__(self):
        self.lines = []
        self.uid = 0
    def __call__(self, s):
        for l in s.split("\n"):
            l = l.strip()
            if not l: continue
            if l.endswith(":") or l.startswith("."):
                self.lines.append(l)
            else:
                self.lines.append("    " + l)
    def c(self, s):
        self.lines.append("    ; " + s)
    def label(self, base):
        self.uid += 1
        return f"L_{base}_{self.uid}"
    def text(self):
        return "\n".join(self.lines) + "\n"

def vr(b, n=1):
    return f"v{b}" if n == 1 else f"v[{b}:{b+n-1}]"
def ar(b, n=1):
    return f"a{b}" if n == 1 else f"a[{b}:{b+n-1}]"
def sr(b, n=1):
    return f"s{b}" if n == 1 else f"s[{b}:{b+n-1}]"

def kernel_begin(a, name):
    a(f".globl {name}\n.p2align 8\n.type {name},@function\n{name}:")

def kernel_desc(name, vgpr, sgpr=96, acc=None, extra=""):
    if acc is None:
        acc = (vgpr + 3) // 4 * 4
    return f""".amdhsa_kernel {name}
  .amdhsa_next_free_vgpr {vgpr}
  .amdhsa_next_free_sgpr {sgpr}
  .amdhsa_accum_offset {acc}
  .amdhsa_group_segment_fixed_size 0
  .amdhsa_kernarg_size 80
  .amdhsa_user_sgpr_count 2
  .amdhsa_user_sgpr_kernarg_segment_ptr 1
  .amdhsa_system_sgpr_workgroup_id_x 1
{extra}.end_amdhsa_kernel
"""

def srd(a, d, base, nbytes, add=0):
    if add:
        a(f"s_add_u32 s{d}, s{base}, {hex(add)}")
        a(f"s_addc_u32 s{d+1}, s{base+1}, 0")
    else:
        a(f"s_mov_b32 s{d}, s{base}")
        a(f"s_mov_b32 s{d+1}, s{base+1}")
    a(f"s_mov_b32 s{d+2}, {hex(nbytes)}")
    a(f"s_mov_b32 s{d+3}, 0x00020000")
```

```python
import sys
from asmlib import *

NAME = "sequential_preLN__softmax_full_mha__glu_gated_swiglu__prompt"
MB = 1 << 20
WS_XN   = 0 * MB
WS_WQKV = 2 * MB
WS_WO   = 4 * MB
WS_W13  = 5 * MB
WS_W2   = 8 * MB
WS_Q    = 10 * MB
WS_K    = 12 * MB
WS_V    = 14 * MB
WS_O    = 16 * MB
WS_H    = 18 * MB
WS_ACT  = 20 * MB
WS_ST   = 26 * MB
WS_CS   = 27 * MB
WS_END  = 28 * MB
LOG2E = 1.4426950408889634
import struct
def f2u(x): return struct.unpack("<I", struct.pack("<f", x))[0]

KA_X, KA_WQKV, KA_WO, KA_BX, KA_W1, KA_W3, KA_W2, KA_OUT, KA_DBG, KA_WS = [8*i for i in range(10)]

def lane_setup(a):
    a("v_and_b32 v1, 63, v0")
    a("v_lshrrev_b32 v2, 6, v0")
    a("s_nop 0")
    a("v_readfirstlane_b32 s3, v2")

def gen_prep(a):
    name = "prep_kernel"
    kernel_begin(a, name)
    a("s_cmp_ge_u32 s2, 171")
    a("s_cbranch_scc1 L_prep_end")
    a(f"s_load_dwordx4 s[4:7], s[0:1], {KA_X}")
    a(f"s_load_dwordx2 s[8:9], s[0:1], {KA_WO}")
    a(f"s_load_dwordx4 s[12:15], s[0:1], {KA_W1}")
    a(f"s_load_dwordx2 s[16:17], s[0:1], {KA_W2}")
    a(f"s_load_dwordx2 s[18:19], s[0:1], {KA_WS}")
    lane_setup(a)
    a("s_waitcnt lgkmcnt(0)")
    srd(a, 20, 18, WS_END)
    a("s_cmp_lt_u32 s2, 16")
    a("s_cbranch_scc1 L_prep_ln")
    a("s_cmp_lt_u32 s2, 80")
    a("s_cbranch_scc0 L_prep_not_plain1")
    a("s_cmp_lt_u32 s2, 64")
    a("s_cbranch_scc0 L_prep_wo")
    srd(a, 24, 6, 512*1536*2)
    a("s_sub_u32 s28, s2, 16")
    a("s_mov_b32 s29, 3072")
    a("s_lshl_b32 s30, s3, 3")
    a("s_lshl_b32 s31, s28, 5")
    a(f"s_mov_b32 s32, {WS_WQKV}")
    a("s_mov_b32 s33, 32")
    a("s_branch L_prep_plain")
    a("L_prep_wo:")
    srd(a, 24, 8, 512*512*2)
    a("s_sub_u32 s28, s2, 64")
    a("s_mov_b32 s29, 1024")
    a("s_lshl_b32 s30, s3, 3")
    a("s_lshl_b32 s31, s28, 5")
    a(f"s_mov_b32 s32, {WS_WO}")
    a("s_mov_b32 s33, 32")
    a("s_branch L_prep_plain")
    a("L_prep_not_plain1:")
    a("s_cmp_lt_u32 s2, 123")
    a("s_cbranch_scc1 L_prep_w13")
    srd(a, 24, 16, 1376*512*2)
    a("s_sub_u32 s34, s2, 123")
    a("s_mul_i32 s28, s34, 21846")
    a("s_lshr_b32 s28, s28, 16")
    a("s_mul_i32 s35, s28, 3")
    a("s_sub_u32 s35, s34, s35")
    a("s_lshl_b32 s35, s35, 2")
    a("s_add_u32 s30, s35, s3")
    a("s_lshl_b32 s30, s30, 3")
    a("s_mov_b32 s29, 1024")
    a("s_mul_i32 s31, s28, 86")
    a(f"s_mov_b32 s32, {WS_W2}")
    a("s_mov_b32 s33, 86")
    a("L_prep_plain:")
    a("v_lshrrev_b32 v3, 2, v1")
    a("v_mul_lo_u32 v3, v3, s29")
    a("v_and_b32 v4, 3, v1")
    a("v_lshlrev_b32 v4, 4, v4")
    a("v_add_u32 v3, v3, v4")
    a("s_lshl_b32 s36, s28, 6")
    a("v_add_u32 v3, s36, v3")
    a("s_lshl_b32 s37, s29, 4")
    a("s_mul_i32 s38, s30, s37")
    a("s_lshl_b32 s39, s3, 13")
    for i in range(8):
        a(f"s_add_u32 m0, s39, {i*1024}")
        a("s_nop 0")
        a("buffer_load_dwordx4 v3, s[24:27], s38 offen lds")
        a("s_add_u32 s38, s38, s37")
    tr_addr(a, 5, 1)
    a("v_add_u32 v5, s39, v5")
    a("v_lshlrev_b32 v6, 4, v1")
    a("s_add_u32 s31, s31, s30")
    a("s_lshl_b32 s31, s31, 10")
    a("s_add_u32 s31, s31, s32")
    a("s_waitcnt vmcnt(0)")
    for i in range(8):
        a(f"ds_read_b64_tr_b16 v[{8+4*i}:{9+4*i}], v5 offset:{i*1024}")
        a(f"ds_read_b64_tr_b16 v[{10+4*i}:{11+4*i}], v5 offset:{i*1024+256}")
    a("s_waitcnt lgkmcnt(0)")
    for i in range(8):
        a(f"s_add_u32 s40, s30, {i}")
        a("s_cmp_ge_u32 s40, s33")
        a("s_cbranch_scc1 L_prep_end")
        a(f"buffer_store_dwordx4 v[{8+4*i}:{11+4*i}], v6, s[20:23], s31 offen")
        a("s_add_u32 s31, s31, 1024")
    a("s_branch L_prep_end")

    a("L_prep_w13:")
    srd(a, 24, 12, 512*1376*2)
    srd(a, 28, 14, 512*1376*2)
    a("s_sub_u32 s34, s2, 80")
    a("v_lshrrev_b32 v3, 2, v1")
    a("s_movk_i32 s35, 2752")
    a("v_mul_lo_u32 v3, v3, s35")
    a("s_lshl_b32 s36, s34, 6")
    a("v_add_u32 v3, s36, v3")
    a("v_and_b32 v4, 3, v1")
    a("v_xor_b32 v7, 2, v4")
    a("v_lshlrev_b32 v4, 4, v4")
    a("v_lshlrev_b32 v7, 4, v7")
    a("v_add_u32 v7, v3, v7")
    a("v_add_u32 v3, v3, v4")
    a(f"s_mul_i32 s38, s3, {8*16*2752}")
    a("s_lshl_b32 s39, s3, 14")
    for i in range(8):
        a(f"s_add_u32 m0, s39, {i*1024}")
        a("s_nop 0")
        a("buffer_load_dwordx4 v3, s[24:27], s38 offen lds")
        a(f"s_add_u32 m0, s39, {8192+i*1024}")
        a("s_nop 0")
        a("buffer_load_dwordx4 v7, s[28:31], s38 offen lds")
        a(f"s_add_u32 s38, s38, {16*2752}")
    tr_addr(a, 5, 1, with_cg=False)
    a("v_bfe_u32 v4, v1, 4, 1")
    a("v_mul_u32_u24 v4, 8224, v4")
    a("v_add_u32 v5, v5, v4")
    a("v_add_u32 v5, s39, v5")
    a("v_xor_b32 v7, 32, v5")
    a("v_lshlrev_b32 v6, 4, v1")
    a("s_waitcnt vmcnt(0)")
    for s in range(2):
        for i in range(8):
            b = 8 + 32*s + 4*i
            a(f"ds_read_b64_tr_b16 v[{b}:{b+1}], v{5 if s == 0 else 7} offset:{i*1024}")
            a(f"ds_read_b64_tr_b16 v[{b+2}:{b+3}], v{5 if s == 0 else 7} offset:{i*1024+256}")
    a("s_lshl_b32 s31, s34, 6")
    a("s_lshl_b32 s35, s3, 3")
    a("s_add_u32 s31, s31, s35")
    a("s_lshl_b32 s31, s31, 10")
    a(f"s_add_u32 s31, s31, {WS_W13}")
    a("v_mov_b32 v72, 0")
    a("v_mov_b32 v73, 0")
    a("v_mov_b32 v74, 0x3f803f80")
    a("s_waitcnt lgkmcnt(0)")
    for s in range(2):
        for i in range(8):
            b = 8 + 32*s + 4*i
            a(f"s_add_u32 s40, s31, {s*32768 + i*1024}")
            a(f"buffer_store_dwordx4 v[{b}:{b+3}], v6, s[20:23], s40 offen")
            for j in range(4):
                a(f"v_dot2_f32_bf16 v{72+s}, v{b+j}, v74, v{72+s}")
    a("v_and_b32 v3, 31, v1")
    a("v_lshrrev_b32 v4, 5, v1")
    a("v_lshlrev_b32 v4, 8, v4")
    a("v_lshl_add_u32 v3, v3, 2, v4")
    a("s_lshl_b32 s35, s3, 9")
    a("s_add_u32 s35, s35, 65536")
    a("v_add_u32 v3, s35, v3")
    a("s_nop 2")
    a("ds_write_b32 v3, v72")
    a("ds_write_b32 v3, v73 offset:128")
    a("s_waitcnt lgkmcnt(0)")
    a("s_barrier")
    a("s_cmp_lg_u32 s3, 0")
    a("s_cbranch_scc1 L_prep_end")
    a("v_lshlrev_b32 v3, 2, v1")
    a("v_add_u32 v3, 65536, v3")
    for p in range(8):
        a(f"ds_read_b32 v{8+p}, v3 offset:{p*256}")
    a("s_waitcnt lgkmcnt(0)")
    for p in range(1, 8):
        a(f"v_add_f32 v8, v8, v{8+p}")
    pi_lane(a, 4, 1, 5)
    a("v_lshlrev_b32 v4, 2, v4")
    a("s_lshl_b32 s35, s34, 8")
    a(f"s_add_u32 s35, s35, {WS_CS}")
    a("buffer_store_dword v8, v4, s[20:23], s35 offen")
    a("s_branch L_prep_end")

    a("L_prep_ln:")
    srd(a, 24, 4, 2048*512*2)
    a("s_lshl_b32 s28, s2, 2")
    a("s_add_u32 s28, s28, s3")
    a("v_and_b32 v3, 31, v1")
    a("v_lshlrev_b32 v3, 10, v3")
    a("v_lshrrev_b32 v4, 5, v1")
    a("v_lshl_add_u32 v3, v4, 4, v3")
    a("s_lshl_b32 s29, s28, 15")
    for ks in range(32):
        a(f"buffer_load_dwordx4 v[{8+4*ks}:{11+4*ks}], v3, s[24:27], s29 offen offset:{ks*32}")
    a("v_mov_b32 v140, 0")
    a("v_mov_b32 v141, 0")
    a("v_mov_b32 v142, 0x3f803f80")
    a("s_waitcnt vmcnt(0)")
    for r in range(128):
        a(f"v_dot2_f32_bf16 v140, v{8+r}, v142, v140")
        a(f"v_dot2_f32_bf16 v141, v{8+r}, v{8+r}, v141")
    a("s_nop 4")
    a("v_mov_b32 v143, v140")
    a("v_mov_b32 v144, v141")
    a("s_nop 1")
    a("v_permlane32_swap_b32 v143, v140")
    a("v_permlane32_swap_b32 v144, v141")
    a("s_nop 1")
    a("v_add_f32 v140, v140, v143")
    a("v_add_f32 v141, v141, v144")
    ln_finish(a, 140, 141, 143)
    a("v_mul_f32 v140, v140, v141")
    a("v_lshlrev_b32 v6, 4, v1")
    a(f"s_add_u32 s29, s29, {WS_XN}")
    for ks in range(32):
        for j in range(4):
            r = 8 + 4*ks + j
            a(f"v_lshlrev_b32 v145, 16, v{r}")
            a(f"v_and_b32 v146, 0xffff0000, v{r}")
            a("v_fma_f32 v145, v145, v141, -v140")
            a("v_fma_f32 v146, v146, v141, -v140")
            a(f"v_cvt_pk_bf16_f32 v{r}, v145, v146")
        a(f"buffer_store_dwordx4 v[{8+4*ks}:{11+4*ks}], v6, s[20:23], s29 offen")
        a("s_add_u32 s29, s29, 1024")
    a("L_prep_end:")
    a("s_endpgm")
    return name, 171, 256, 65536+2048, kernel_desc(name, 152)

def ln_finish(a, vs, vq, vt):
    a(f"v_mul_f32 v{vs}, {hex(f2u(1/512))}, v{vs}")
    a(f"v_mul_f32 v{vt}, v{vs}, v{vs}")
    a(f"v_mov_b32 v{vt+1}, {hex(f2u(1/512))}")
    a(f"v_fma_f32 v{vq}, v{vq}, v{vt+1}, -v{vt}")
    a(f"v_max_f32 v{vq}, 0, v{vq}")
    a(f"v_add_f32 v{vq}, {hex(f2u(1e-5))}, v{vq}")
    a(f"v_rsq_f32 v{vq}, v{vq}")
    a("s_nop 0")

def tr_addr(a, d, lane, with_cg=True):
    t = 4
    a(f"v_lshrrev_b32 v{d}, 5, v{lane}")
    a(f"v_lshlrev_b32 v{d}, 9, v{d}")
    a(f"v_bfe_u32 v{t}, v{lane}, 2, 2")
    a(f"v_lshl_add_u32 v{d}, v{t}, 6, v{d}")
    if with_cg:
        a(f"v_bfe_u32 v{t}, v{lane}, 4, 1")
        a(f"v_lshl_add_u32 v{d}, v{t}, 5, v{d}")
    a(f"v_and_b32 v{t}, 1, v{lane}")
    a(f"v_lshl_add_u32 v{d}, v{t}, 4, v{d}")
    a(f"v_bfe_u32 v{t}, v{lane}, 1, 1")
    a(f"v_lshl_add_u32 v{d}, v{t}, 3, v{d}")

def pi_lane(a, d, lane, t):
    a(f"v_and_b32 v{d}, 0x33, v{lane}")
    a(f"v_bfe_u32 v{t}, v{lane}, 2, 1")
    a(f"v_lshl_add_u32 v{d}, v{t}, 3, v{d}")
    a(f"v_bfe_u32 v{t}, v{lane}, 3, 1")
    a(f"v_lshl_add_u32 v{d}, v{t}, 2, v{d}")

def zero_regs(a, b, n):
    for i in range(n):
        a(f"v_mov_b32 v{b+i}, 0")

def gemm_direct(a, nks, aops, bops, accs, form, srd_a, srd_b, voff, depth=3):
    na, nb = len(aops), len(bops)
    per = na + nb
    FB = gemm_direct.FB
    def buf(st, k): return FB + (st * per + k) * 4
    def issue(ks):
        st = ks % depth
        for i, s in enumerate(aops):
            a(f"buffer_load_dwordx4 {vr(buf(st,i),4)}, v{voff}, {sr(srd_a,4)}, s{s} offen")
            a(f"s_add_u32 s{s}, s{s}, 1024")
        for j, s in enumerate(bops):
            a(f"buffer_load_dwordx4 {vr(buf(st,na+j),4)}, v{voff}, {sr(srd_b,4)}, s{s} offen")
            a(f"s_add_u32 s{s}, s{s}, 1024")
    for ks in range(min(depth - 1, nks)):
        issue(ks)
    for ks in range(nks):
        if ks + depth - 1 < nks:
            issue(ks + depth - 1)
            a(f"s_waitcnt vmcnt({per*(depth-1)})")
        else:
            a(f"s_waitcnt vmcnt({per*(nks-1-ks)})")
        st = ks % depth
        for i in range(na):
            for j in range(nb):
                A, B = buf(st, i), buf(st, na + j)
                c = accs[i][j]
                if form[j] == 'T':
                    a(f"v_mfma_f32_32x32x16_bf16 {vr(c,16)}, {vr(B,4)}, {vr(A,4)}, {vr(c,16)}")
                else:
                    a(f"v_mfma_f32_32x32x16_bf16 {vr(c,16)}, {vr(A,4)}, {vr(B,4)}, {vr(c,16)}")
    a("s_nop 15")

def pack8(a, d, s):
    for j in range(4):
        a(f"v_cvt_pk_bf16_f32 v{d+j}, v{s+2*j}, v{s+2*j+1}")

def gen_qkv(a):
    name = "qkv_kernel"
    kernel_begin(a, name)
    a("s_cmp_ge_u32 s2, 256")
    a("s_cbranch_scc1 L_qkv_end")
    a(f"s_load_dwordx2 s[18:19], s[0:1], {KA_WS}")
    lane_setup(a)
    a("s_waitcnt lgkmcnt(0)")
    srd(a, 20, 18, WS_END)
    a("s_and_b32 s4, s2, 15")
    a("s_lshr_b32 s5, s2, 4")
    a("s_lshl_b32 s5, s5, 2")
    a("s_add_u32 s5, s5, s3")
    a("v_lshlrev_b32 v3, 4, v1")
    a("s_lshl_b32 s8, s5, 15")
    a(f"s_add_u32 s8, s8, {WS_XN}")
    a("s_lshl_b32 s9, s4, 15")
    a(f"s_add_u32 s9, s9, {WS_WQKV}")
    a(f"s_add_u32 s10, s9, {16*32768}")
    a(f"s_add_u32 s11, s9, {32*32768}")
    zero_regs(a, 16, 48)
    gemm_direct.FB = 64
    gemm_direct(a, 32, [8], [9, 10, 11], [[16, 32, 48]], "TTN", 20, 20, 3, depth=4)
    qs = hex(f2u(0.25 * LOG2E))
    a(f"s_mov_b32 s12, {qs}")
    for r in range(16):
        a(f"v_mul_f32 v{16+r}, s12, v{16+r}")
    pack8(a, 64, 16); pack8(a, 68, 24)
    pack8(a, 72, 32); pack8(a, 76, 40)
    pack8(a, 80, 48); pack8(a, 84, 56)
    a("s_lshl_b32 s13, s4, 7")
    a("s_add_u32 s13, s13, s5")
    a("s_lshl_b32 s13, s13, 10")
    a(f"s_add_u32 s14, s13, {WS_Q}")
    a("s_add_u32 s15, s14, 65536")
    a("buffer_store_dwordx4 v[64:67], v3, s[20:23], s14 offen")
    a("buffer_store_dwordx4 v[68:71], v3, s[20:23], s15 offen")
    pi_lane(a, 4, 1, 5)
    a("v_lshlrev_b32 v4, 4, v4")
    a(f"s_add_u32 s14, s13, {WS_K}")
    a("s_add_u32 s15, s14, 65536")
    a("buffer_store_dwordx4 v[72:75], v4, s[20:23], s14 offen")
    a("buffer_store_dwordx4 v[76:79], v4, s[20:23], s15 offen")
    a("v_and_b32 v5, 15, v1")
    a("v_lshlrev_b32 v5, 4, v5")
    a("v_lshrrev_b32 v6, 5, v1")
    a("v_lshl_add_u32 v5, v6, 8, v5")
    a("v_bfe_u32 v6, v1, 4, 1")
    a("v_lshl_add_u32 v5, v6, 16, v5")
    a(f"s_add_u32 s14, s13, {WS_V}")
    a("buffer_store_dwordx4 v[80:83], v5, s[20:23], s14 offen")
    a("buffer_store_dwordx4 v[84:87], v5, s[20:23], s14 offen offset:512")
    a("L_qkv_end:")
    a("s_endpgm")
    return name, 256, 256, 0, kernel_desc(name, 128)

def gen_attn(a):
    name = "attn_kernel"
    kernel_begin(a, name)
    a("s_cmp_ge_u32 s2, 256")
    a("s_cbranch_scc1 L_attn_end")
    a(f"s_load_dwordx2 s[18:19], s[0:1], {KA_WS}")
    lane_setup(a)
    a("s_waitcnt lgkmcnt(0)")
    srd(a, 20, 18, WS_END)
    a("s_and_b32 s4, s2, 7")
    a("s_lshr_b32 s5, s2, 3")
    a("s_lshl_b32 s6, s4, 3")
    a("s_add_u32 s6, s6, s3")
    a("v_lshlrev_b32 v3, 4, v1")
    Q, NM, SA, SB, O, KF, VF, IDX, VK, VV = 4, 8, 24, 40, 56, 72, 80, 96, 3, 97
    a("s_lshl_b32 s7, s5, 6")
    a("s_add_u32 s8, s7, s6")
    a("s_lshl_b32 s8, s8, 10")
    a(f"s_add_u32 s8, s8, {WS_Q}")
    a(f"buffer_load_dwordx4 {vr(Q,4)}, v3, s[20:23], s8 offen")
    a("s_lshl_b32 s9, s3, 13")
    a("s_lshl_b32 s10, s5, 16")
    a("s_add_u32 s10, s10, s9")
    a(f"s_add_u32 s11, s10, {WS_V}")
    a(f"s_add_u32 s10, s10, {WS_K}")
    for i in range(8):
        a(f"s_add_u32 m0, s9, {i*1024}")
        a("s_nop 0")
        a("buffer_load_dwordx4 v3, s[20:23], s10 offen lds")
        a(f"s_add_u32 m0, s9, {65536 + i*1024}")
        a("s_add_u32 s10, s10, 1024")
        a("buffer_load_dwordx4 v3, s[20:23], s11 offen lds")
        a("s_add_u32 s11, s11, 1024")
    a(f"v_mov_b32 v{IDX}, 0xdddddddd")
    a(f"v_and_b32 v{VV}, 15, v1")
    a(f"v_lshlrev_b32 v{VV}, 4, v{VV}")
    a("v_lshrrev_b32 v2, 5, v1")
    a(f"v_lshl_add_u32 v{VV}, v2, 8, v{VV}")
    a(f"v_add_u32 v{VV}, 65536, v{VV}")
    for i in range(16):
        a(f"v_mov_b32 v{VF+i}, 0x3f803f80")
    zero_regs(a, NM, 16)
    a("s_mov_b32 s12, 0x0000ffff")
    a("s_mov_b32 s13, 0x0000ffff")
    a("s_mov_b32 s14, 0")
    a("s_waitcnt vmcnt(0)")
    a("s_barrier")
    a("L_attn_pass:")
    zero_regs(a, O, 16)
    def rdK(t):
        a(f"ds_read_b128 {vr(KF+4*(t&1),4)}, v{VK} offset:{t*1024}")
    def rdV(t):
        a("s_mov_b64 exec, s[12:13]")
        a(f"ds_read_b128 {vr(VF+8*(t&1),4)}, v{VV} offset:{t*1024}")
        a(f"ds_read_b128 {vr(VF+8*(t&1)+4,4)}, v{VV} offset:{t*1024+512}")
        a("s_mov_b64 exec, -1")
    def qk(t):
        S = SA if t % 2 == 0 else SB
        a(f"v_mfma_f32_32x32x16_bf16 {vr(S,16)}, {vr(KF+4*(t&1),4)}, {vr(Q,4)}, {vr(NM,16)}")
    def pv(t, jj):
        S = SA if t % 2 == 0 else SB
        a(f"v_smfmac_f32_32x32x32_bf16 {vr(O,16)}, {vr(VF+8*(t&1)+4*jj,4)}, {vr(S+8*jj,8)}, v{IDX}")
    NT = 64
    rdK(0); rdK(1); rdV(0)
    a("s_waitcnt lgkmcnt(3)")
    qk(0)
    a("s_nop 15")
    for t in range(NT):
        S = SA if t % 2 == 0 else SB
        def ex(lo, hi):
            for r in range(lo, hi):
                a(f"v_exp_f32 v{S+r}, v{S+r}")
        ex(0, 2)
        if t > 0:
            pv(t-1, 1)
        ex(2, 7)
        if t + 1 < NT:
            a("s_waitcnt lgkmcnt(2)")
            qk(t+1)
        if t + 2 < NT:
            rdK(t+2)
        ex(7, 12)
        a(f"s_waitcnt lgkmcnt({1 if t + 2 < NT else 0})")
        pv(t, 0)
        if t + 1 < NT:
            rdV(t+1)
        ex(12, 16)
    a("s_nop 1")
    pv(NT-1, 1)
    a("s_nop 15")
    a("s_nop 3")
    a("s_cmp_lg_u32 s14, 0")
    a("s_cbranch_scc1 L_attn_fin")
    a("v_mov_b32 v2, 0")
    for r in range(8):
        a(f"v_fma_f32 v2, v{O+r}, 0, v2")
    a(f"v_cmp_u_f32 vcc, v2, v2")
    a(f"v_mov_b32 v2, {hex(f2u(2.0**-64))}")
    a(f"v_cmp_nle_f32 s[16:17], v2, v{O+8}")
    a(f"v_mov_b32 v2, {hex(f2u(2.0**64))}")
    a(f"v_cmp_nge_f32 s[24:25], v2, v{O+8}")
    a("s_nop 1")
    a("s_or_b64 vcc, vcc, s[16:17]")
    a("s_or_b64 vcc, vcc, s[24:25]")
    a("s_cbranch_vccz L_attn_fin")
    a("s_mov_b32 s14, 1")
    a(f"v_mov_b32 v2, 0xff800000")
    a(f"v_mov_b32 v{KF+4}, v{VK}")
    a("s_mov_b32 s15, 64")
    a("L_attn_max:")
    a(f"ds_read_b128 {vr(KF,4)}, v{KF+4}")
    a(f"v_add_u32 v{KF+4}, 1024, v{KF+4}")
    a("s_waitcnt lgkmcnt(0)")
    a(f"v_mfma_f32_32x32x16_bf16 {vr(SA,16)}, {vr(KF,4)}, {vr(Q,4)}, 0")
    a("s_nop 15")
    for r in range(0, 16, 2):
        a(f"v_max3_f32 v2, v2, v{SA+r}, v{SA+r+1}")
    a("s_sub_u32 s15, s15, 1")
    a("s_cmp_lg_u32 s15, 0")
    a("s_cbranch_scc1 L_attn_max")
    a(f"v_mov_b32 v{NM}, v2")
    a("s_nop 1")
    a(f"v_permlane32_swap_b32 v{NM}, v2")
    a("s_nop 1")
    a(f"v_max_f32 v2, v2, v{NM}")
    for r in range(16):
        a(f"v_sub_f32 v{NM+r}, 0, v2")
    a("s_branch L_attn_pass")
    a("L_attn_fin:")
    a(f"v_rcp_f32 v2, v{O+8}")
    a("s_nop 0")
    for r in range(8):
        a(f"v_mul_f32 v{O+r}, v{O+r}, v2")
    pack8(a, KF, O)
    a("s_lshl_b32 s8, s6, 5")
    a("s_add_u32 s8, s8, s5")
    a("s_lshl_b32 s8, s8, 10")
    a(f"s_add_u32 s8, s8, {WS_O}")
    a(f"buffer_store_dwordx4 {vr(KF,4)}, v3, s[20:23], s8 offen")
    a("L_attn_end:")
    a("s_endpgm")
    return name, 256, 512, 131072, kernel_desc(name, 104)

def unpack_add(a, acc, src, t):
    for j in range(4):
        a(f"v_lshlrev_b32 v{t}, 16, v{src+j}")
        a(f"v_and_b32 v{t+1}, 0xffff0000, v{src+j}")
        a(f"v_add_f32 v{acc+2*j}, v{acc+2*j}, v{t}")
        a(f"v_add_f32 v{acc+2*j+1}, v{acc+2*j+1}, v{t+1}")

def gen_oproj(a):
    name = "oproj_kernel"
    kernel_begin(a, name)
    a("s_cmp_ge_u32 s2, 256")
    a("s_cbranch_scc1 L_op_end")
    a(f"s_load_dwordx2 s[18:19], s[0:1], {KA_WS}")
    a(f"s_load_dwordx2 s[16:17], s[0:1], {KA_X}")
    lane_setup(a)
    a("s_waitcnt lgkmcnt(0)")
    srd(a, 20, 18, WS_END)
    srd(a, 24, 16, 2048*512*2)
    a("s_and_b32 s4, s2, 7")
    a("s_lshl_b32 s4, s4, 1")
    a("s_and_b32 s6, s3, 1")
    a("s_add_u32 s4, s4, s6")
    a("s_lshr_b32 s5, s2, 3")
    a("s_lshl_b32 s5, s5, 1")
    a("s_lshr_b32 s6, s3, 1")
    a("s_add_u32 s5, s5, s6")
    a("v_lshlrev_b32 v3, 4, v1")
    a("v_and_b32 v4, 31, v1")
    a("v_lshlrev_b32 v4, 10, v4")
    a("v_lshrrev_b32 v5, 5, v1")
    a("v_lshl_add_u32 v4, v5, 4, v4")
    a("s_lshl_b32 s8, s5, 15")
    a("s_lshl_b32 s9, s4, 6")
    a("s_add_u32 s10, s8, s9")
    a("buffer_load_dwordx4 v[8:11], v4, s[24:27], s10 offen")
    a("buffer_load_dwordx4 v[12:15], v4, s[24:27], s10 offen offset:32")
    a(f"s_add_u32 s8, s8, {WS_O}")
    a("s_lshl_b32 s9, s4, 15")
    a(f"s_add_u32 s9, s9, {WS_WO}")
    zero_regs(a, 16, 16)
    gemm_direct.FB = 32
    gemm_direct(a, 32, [8], [9], [[16]], "T", 20, 20, 3, depth=8)
    unpack_add(a, 16, 8, 6)
    unpack_add(a, 24, 12, 6)
    pack8(a, 32, 16); pack8(a, 36, 24)
    a("s_lshl_b32 s8, s5, 5")
    a("s_lshl_b32 s9, s4, 1")
    a("s_add_u32 s8, s8, s9")
    a("s_lshl_b32 s8, s8, 10")
    a(f"s_add_u32 s8, s8, {WS_H}")
    a("buffer_store_dwordx4 v[32:35], v3, s[20:23], s8 offen")
    a("buffer_store_dwordx4 v[36:39], v3, s[20:23], s8 offen offset:1024")
    a("v_mov_b32 v8, 0")
    a("v_mov_b32 v9, 0")
    a("v_mov_b32 v10, 0x3f803f80")
    for r in range(8):
        a(f"v_dot2_f32_bf16 v8, v{32+r}, v10, v8")
        a(f"v_dot2_f32_bf16 v9, v{32+r}, v{32+r}, v9")
    a("s_nop 4")
    a("v_mov_b32 v12, v8")
    a("v_mov_b32 v13, v9")
    a("s_nop 1")
    a("v_permlane32_swap_b32 v12, v8")
    a("v_permlane32_swap_b32 v13, v9")
    a("s_nop 1")
    a("v_add_f32 v8, v8, v12")
    a("v_add_f32 v9, v9, v13")
    a("s_lshl_b32 s8, s5, 4")
    a("s_add_u32 s8, s8, s4")
    a("s_lshl_b32 s8, s8, 8")
    a(f"s_add_u32 s8, s8, {WS_ST}")
    a("v_lshlrev_b32 v4, 3, v1")
    a("s_mov_b64 exec, 0xffffffff")
    a("buffer_store_dwordx2 v[8:9], v4, s[20:23], s8 offen")
    a("L_op_end:")
    a("s_endpgm")
    return name, 256, 256, 0, kernel_desc(name, 96)

def gen_up(a):
    name = "up_kernel"
    kernel_begin(a, name)
    a("s_cmp_ge_u32 s2, 240")
    a("s_cbranch_scc1 L_up_end")
    a(f"s_load_dwordx2 s[18:19], s[0:1], {KA_WS}")
    lane_setup(a)
    a("s_waitcnt lgkmcnt(0)")
    srd(a, 20, 18, WS_END)
    a("s_and_b32 s5, s2, 15")
    a("s_lshr_b32 s4, s2, 4")
    a("s_lshl_b32 s5, s5, 2")
    a("s_and_b32 s6, s3, 2")
    a("s_add_u32 s5, s5, s6")
    a("s_mul_i32 s4, s4, 6")
    a("s_and_b32 s6, s3, 1")
    a("s_mul_i32 s6, s6, 3")
    a("s_add_u32 s4, s4, s6")
    a("s_cmp_ge_u32 s4, 86")
    a("s_cbranch_scc1 L_up_end")
    a("v_lshlrev_b32 v3, 4, v1")
    ACC = 64
    accs = [[ACC + 16*(3*i+j) for j in range(3)] for i in range(2)]
    ST = 8
    CS = 160
    a("v_and_b32 v4, 31, v1")
    a("v_lshlrev_b32 v4, 3, v4")
    a("v_lshrrev_b32 v5, 5, v1")
    a("v_lshl_add_u32 v4, v5, 8, v4")
    a("s_lshl_b32 s8, s5, 12")
    a(f"s_add_u32 s8, s8, {WS_ST}")
    for i in range(2):
        for p in range(8):
            a(f"buffer_load_dwordx2 v[{ST+16*i+2*p}:{ST+16*i+2*p+1}], v4, s[20:23], s8 offen offset:{p*512}")
        a("s_add_u32 s8, s8, 4096")
    a("v_lshlrev_b32 v5, 5, v5")
    for j in range(3):
        a(f"s_add_u32 s9, s4, {j}")
        a("s_min_u32 s9, s9, 85")
        a(f"s_lshl_b32 s{12+j}, s9, 15")
        a(f"s_add_u32 s{12+j}, s{12+j}, {WS_W13}")
        a("s_lshl_b32 s9, s9, 7")
        a(f"s_add_u32 s9, s9, {WS_CS}")
        a(f"buffer_load_dwordx4 {vr(CS+16*j,4)}, v5, s[20:23], s9 offen")
        a(f"buffer_load_dwordx4 {vr(CS+16*j+4,4)}, v5, s[20:23], s9 offen offset:16")
        a(f"buffer_load_dwordx4 {vr(CS+16*j+8,4)}, v5, s[20:23], s9 offen offset:64")
        a(f"buffer_load_dwordx4 {vr(CS+16*j+12,4)}, v5, s[20:23], s9 offen offset:80")
    a("s_lshl_b32 s10, s5, 15")
    a(f"s_add_u32 s10, s10, {WS_H}")
    a("s_add_u32 s11, s10, 32768")
    zero_regs(a, ACC, 96)
    a("s_waitcnt vmcnt(0)")
    for i in range(2):
        b = ST + 16*i
        for p in range(1, 8):
            a(f"v_add_f32 v{b}, v{b}, v{b+2*p}")
            a(f"v_add_f32 v{b+1}, v{b+1}, v{b+2*p+1}")
        a(f"v_mov_b32 v{b+2}, v{b}")
        a(f"v_mov_b32 v{b+3}, v{b+1}")
        a("s_nop 1")
        a(f"v_permlane32_swap_b32 v{b+2}, v{b}")
        a(f"v_permlane32_swap_b32 v{b+3}, v{b+1}")
        a("s_nop 1")
        a(f"v_add_f32 v{40+2*i}, v{b}, v{b+2}")
        a(f"v_add_f32 v{41+2*i}, v{b+1}, v{b+3}")
        ln_finish(a, 40+2*i, 41+2*i, 44)
        a(f"v_mul_f32 v{40+2*i}, v{40+2*i}, v{41+2*i}")
    gemm_direct.FB = 208
    gemm_direct(a, 32, [10, 11], [12, 13, 14], accs, "TTT", 20, 20, 3, depth=2)
    a(f"s_mov_b32 s15, {hex(f2u(-LOG2E))}")
    for j in range(3):
        if j > 0:
            a(f"s_add_u32 s9, s4, {j}")
            a("s_cmp_ge_u32 s9, 86")
            a("s_cbranch_scc1 L_up_end")
        for i in range(2):
            c = accs[i][j]
            for r in range(16):
                a(f"v_mul_f32 v46, v{40+2*i}, v{CS+16*j+r}")
                a(f"v_fma_f32 v{c+r}, v{c+r}, v{41+2*i}, -v46")
            for r in range(8):
                a(f"v_mul_f32 v46, s15, v{c+r}")
                a("v_exp_f32 v46, v46")
                a("s_nop 0")
                a("v_add_f32 v46, 1.0, v46")
                a("v_rcp_f32 v46, v46")
                a(f"v_mul_f32 v{c+r}, v{c+r}, v{c+8+r}")
                a(f"v_mul_f32 v{c+r}, v{c+r}, v46")
            pack8(a, c+8, c)
            a(f"s_add_u32 s8, s5, {i}")
            a("s_mul_i32 s8, s8, 86")
            a("s_add_u32 s8, s8, s4")
            a(f"s_add_u32 s8, s8, {j}")
            a("s_lshl_b32 s8, s8, 10")
            a(f"s_add_u32 s8, s8, {WS_ACT}")
            a(f"buffer_store_dwordx4 {vr(c+8,4)}, v3, s[20:23], s8 offen")
    a("L_up_end:")
    a("s_endpgm")
    return name, 240, 256, 0, kernel_desc(name, 248)

def gen_down(a):
    name = "down_kernel"
    kernel_begin(a, name)
    a("s_cmp_ge_u32 s2, 256")
    a("s_cbranch_scc1 L_dn_end")
    a(f"s_load_dwordx2 s[18:19], s[0:1], {KA_WS}")
    a(f"s_load_dwordx2 s[16:17], s[0:1], {KA_OUT}")
    lane_setup(a)
    a("s_waitcnt lgkmcnt(0)")
    srd(a, 20, 18, WS_END)
    srd(a, 24, 16, 2048*512*2)
    a("s_and_b32 s4, s2, 7")
    a("s_lshl_b32 s4, s4, 1")
    a("s_and_b32 s6, s3, 1")
    a("s_add_u32 s4, s4, s6")
    a("s_lshr_b32 s5, s2, 3")
    a("s_lshl_b32 s5, s5, 1")
    a("s_lshr_b32 s6, s3, 1")
    a("s_add_u32 s5, s5, s6")
    a("v_lshlrev_b32 v3, 4, v1")
    a("s_lshl_b32 s8, s5, 5")
    a("s_lshl_b32 s9, s4, 1")
    a("s_add_u32 s8, s8, s9")
    a("s_lshl_b32 s8, s8, 10")
    a(f"s_add_u32 s8, s8, {WS_H}")
    a("buffer_load_dwordx4 v[8:11], v3, s[20:23], s8 offen")
    a("buffer_load_dwordx4 v[12:15], v3, s[20:23], s8 offen offset:1024")
    a(f"s_mul_i32 s8, s5, {86*1024}")
    a(f"s_add_u32 s8, s8, {WS_ACT}")
    a(f"s_mul_i32 s9, s4, {86*1024}")
    a(f"s_add_u32 s9, s9, {WS_W2}")
    zero_regs(a, 16, 16)
    gemm_direct.FB = 32
    gemm_direct(a, 86, [8], [9], [[16]], "T", 20, 20, 3, depth=8)
    unpack_add(a, 16, 8, 6)
    unpack_add(a, 24, 12, 6)
    pack8(a, 32, 16); pack8(a, 36, 24)
    a("v_and_b32 v4, 31, v1")
    a("v_lshlrev_b32 v4, 10, v4")
    a("v_lshrrev_b32 v5, 5, v1")
    a("v_lshl_add_u32 v4, v5, 4, v4")
    a("s_lshl_b32 s8, s5, 15")
    a("s_lshl_b32 s9, s4, 6")
    a("s_add_u32 s10, s8, s9")
    a("buffer_store_dwordx4 v[32:35], v4, s[24:27], s10 offen")
    a("buffer_store_dwordx4 v[36:39], v4, s[24:27], s10 offen offset:32")
    a("L_dn_end:")
    a("s_endpgm")
    return name, 256, 256, 0, kernel_desc(name, 96)

def gen_empty(a, name, grid):
    kernel_begin(a, name)
    a("s_endpgm")
    return name, grid, 256, 0, kernel_desc(name, 8)

def build(n_empty=0):
    a = Asm()
    ks = [gen_prep(a), gen_qkv(a), gen_attn(a), gen_oproj(a), gen_up(a), gen_down(a)]
    order = list(ks)
    if n_empty:
        e = gen_empty(a, "empty_kernel", 256)
        ks.append(e)
        order += [e] * n_empty
    hdr = open("cdna_kernels/" + NAME + ".s.ref").read().split("; Override launch")[0]
    out = hdr
    for n, g, b, l, d in order:
        out += f"; @launch kernel={n} grid=({g},1,1) block=({b},1,1) lds={l}\n"
    out += '.amdgcn_target "amdgcn-amd-amdhsa--gfx950"\n.text\n'
    out += a.text()
    out += '.section .rodata,"a"\n'
    for n, g, b, l, d in ks:
        out += ".p2align 6\n" + d
    return out

if __name__ == "__main__":
    n_empty = int(sys.argv[2]) if len(sys.argv) > 2 else 0
    open(sys.argv[1], "w").write(build(n_empty))
```

```python
class Asm:
    def __init__(self):
        self.lines = []
        self.uid = 0
    def __call__(self, s):
        for l in s.split("\n"):
            l = l.strip()
            if not l: continue
            if l.endswith(":") or l.startswith("."):
                self.lines.append(l)
            else:
                self.lines.append("    " + l)
    def c(self, s):
        self.lines.append("    ; " + s)
    def label(self, base):
        self.uid += 1
        return f"L_{base}_{self.uid}"
    def text(self):
        return "\n".join(self.lines) + "\n"

def vr(b, n=1):
    return f"v{b}" if n == 1 else f"v[{b}:{b+n-1}]"
def ar(b, n=1):
    return f"a{b}" if n == 1 else f"a[{b}:{b+n-1}]"
def sr(b, n=1):
    return f"s{b}" if n == 1 else f"s[{b}:{b+n-1}]"

def kernel_begin(a, name):
    a(f".globl {name}\n.p2align 8\n.type {name},@function\n{name}:")

def kernel_desc(name, vgpr, sgpr=96, acc=None, extra=""):
    if acc is None:
        acc = (vgpr + 3) // 4 * 4
    return f""".amdhsa_kernel {name}
  .amdhsa_next_free_vgpr {vgpr}
  .amdhsa_next_free_sgpr {sgpr}
  .amdhsa_accum_offset {acc}
  .amdhsa_group_segment_fixed_size 0
  .amdhsa_kernarg_size 80
  .amdhsa_user_sgpr_count 2
  .amdhsa_user_sgpr_kernarg_segment_ptr 1
  .amdhsa_system_sgpr_workgroup_id_x 1
{extra}.end_amdhsa_kernel
"""

def srd(a, d, base, nbytes, add=0):
    if add:
        a(f"s_add_u32 s{d}, s{base}, {hex(add)}")
        a(f"s_addc_u32 s{d+1}, s{base+1}, 0")
    else:
        a(f"s_mov_b32 s{d}, s{base}")
        a(f"s_mov_b32 s{d+1}, s{base+1}")
    a(f"s_mov_b32 s{d+2}, {hex(nbytes)}")
    a(f"s_mov_b32 s{d+3}, 0x00020000")


PROF_OFF = 200 << 20
PROF_STRIDE = 1 << 18
class Prof:
    on = False
    idx = 0
    dbg = False
def prof_begin(a):
    if Prof.on:
        a("s_memrealtime s[92:93]")
        a("s_memtime s[82:83]")
        for k in range(8):
            a(f"s_mov_b32 s{64+2*k}, 0")
def prof_mark(a, k):
    if Prof.on:
        a(f"s_memrealtime s[{64+2*k}:{65+2*k}]")
def prof_end(a, end=True):
    if Prof.on:
        a("s_waitcnt vmcnt(0) lgkmcnt(0)")
        a("s_memrealtime s[94:95]")
        a("s_memtime s[80:81]")
        a("s_load_dwordx2 s[84:85], s[0:1], 72")
        a("s_getreg_b32 s90, hwreg(HW_REG_HW_ID)")
        a("s_getreg_b32 s91, hwreg(HW_REG_XCC_ID)")
        a("s_waitcnt lgkmcnt(0)")
        a("s_lshl_b32 s91, s91, 28")
        a("s_and_b32 s90, s90, 0xfffffff")
        a("s_or_b32 s91, s91, s90")
        a("s_sub_u32 s90, s80, s82")
        a(f"s_add_u32 s84, s84, {hex(PROF_OFF + Prof.idx*PROF_STRIDE)}")
        a("s_addc_u32 s85, s85, 0")
        a(f"s_mov_b32 s86, {PROF_STRIDE}")
        a("s_mov_b32 s87, 0x00020000")
        a("s_mov_b64 exec, 1")
        a("s_lshl_b32 s88, s2, 10")
        a("v_mov_b32 v4, s92")
        a("v_mov_b32 v5, s94")
        a("v_mov_b32 v6, s90")
        a("v_mov_b32 v7, s91")
        a("buffer_store_dwordx4 v[4:7], v0, s[84:87], s88 offen")
        for h in range(2):
            for k in range(4):
                a(f"v_mov_b32 v{8+4*h+k}, s{64+8*h+2*k}")
            a(f"buffer_store_dwordx4 v[{8+4*h}:{11+4*h}], v0, s[84:87], s88 offen offset:{16+16*h}")
        if Prof.dbg:
            a("s_load_dwordx2 s[84:85], s[0:1], 64")
            a("s_waitcnt lgkmcnt(0) vmcnt(0)")
            a(f"s_sub_u32 s84, s84, {Prof.idx*512}")
            a("s_subb_u32 s85, s85, 0")
            a("s_mov_b32 s86, 256")
            a("v_not_b32 v4, v4")
            a(f"v_mov_b32 v6, {Prof.idx*8}")
            a("buffer_atomic_umax v4, v6, s[84:87], 0 offen sc1")
            a("buffer_atomic_umax v5, v6, s[84:87], 0 offen offset:4 sc1")
            a("s_waitcnt vmcnt(0)")
        Prof.idx += 1
    if end:
        a("s_endpgm")
```

```python
import sys
from asmlib import *

NAME = "sequential_preLN__softmax_full_mha__glu_gated_swiglu__prompt"
MB = 1 << 20
WS_XN   = 0 * MB
WS_WQKV = 2 * MB
WS_WO   = 4 * MB
WS_W13  = 5 * MB
WS_W2   = 8 * MB
WS_Q    = 10 * MB
WS_K    = 12 * MB
WS_V    = 14 * MB
WS_O    = 16 * MB
WS_H    = 18 * MB
WS_ACT  = 20 * MB
WS_ST   = 26 * MB
WS_CS   = 27 * MB
WS_END  = 28 * MB
LOG2E = 1.4426950408889634
import struct
def f2u(x): return struct.unpack("<I", struct.pack("<f", x))[0]

KA_X, KA_WQKV, KA_WO, KA_BX, KA_W1, KA_W3, KA_W2, KA_OUT, KA_DBG, KA_WS = [8*i for i in range(10)]

def lane_setup(a):
    a("v_and_b32 v1, 63, v0")
    a("v_lshrrev_b32 v2, 6, v0")
    a("s_nop 0")
    a("v_readfirstlane_b32 s3, v2")

def gen_prep(a):
    name = "prep_kernel"
    kernel_begin(a, name)
    prof_begin(a)
    a("s_cmp_ge_u32 s2, 171")
    a("s_cbranch_scc1 L_prep_end")
    a(f"s_load_dwordx4 s[4:7], s[0:1], {KA_X}")
    a(f"s_load_dwordx2 s[8:9], s[0:1], {KA_WO}")
    a(f"s_load_dwordx4 s[12:15], s[0:1], {KA_W1}")
    a(f"s_load_dwordx2 s[16:17], s[0:1], {KA_W2}")
    a(f"s_load_dwordx2 s[18:19], s[0:1], {KA_WS}")
    lane_setup(a)
    a("s_waitcnt lgkmcnt(0)")
    srd(a, 20, 18, WS_END)
    a("s_cmp_lt_u32 s2, 16")
    a("s_cbranch_scc1 L_prep_ln")
    a("s_cmp_lt_u32 s2, 80")
    a("s_cbranch_scc0 L_prep_not_plain1")
    a("s_cmp_lt_u32 s2, 64")
    a("s_cbranch_scc0 L_prep_wo")
    srd(a, 24, 6, 512*1536*2)
    a("s_sub_u32 s28, s2, 16")
    a("s_mov_b32 s29, 3072")
    a("s_lshl_b32 s30, s3, 3")
    a("s_lshl_b32 s31, s28, 5")
    a(f"s_mov_b32 s32, {WS_WQKV}")
    a("s_mov_b32 s33, 32")
    a("s_branch L_prep_plain")
    a("L_prep_wo:")
    srd(a, 24, 8, 512*512*2)
    a("s_sub_u32 s28, s2, 64")
    a("s_mov_b32 s29, 1024")
    a("s_lshl_b32 s30, s3, 3")
    a("s_lshl_b32 s31, s28, 5")
    a(f"s_mov_b32 s32, {WS_WO}")
    a("s_mov_b32 s33, 32")
    a("s_branch L_prep_plain")
    a("L_prep_not_plain1:")
    a("s_cmp_lt_u32 s2, 123")
    a("s_cbranch_scc1 L_prep_w13")
    srd(a, 24, 16, 1376*512*2)
    a("s_sub_u32 s34, s2, 123")
    a("s_mul_i32 s28, s34, 21846")
    a("s_lshr_b32 s28, s28, 16")
    a("s_mul_i32 s35, s28, 3")
    a("s_sub_u32 s35, s34, s35")
    a("s_lshl_b32 s35, s35, 2")
    a("s_add_u32 s30, s35, s3")
    a("s_lshl_b32 s30, s30, 3")
    a("s_mov_b32 s29, 1024")
    a("s_mul_i32 s31, s28, 86")
    a(f"s_mov_b32 s32, {WS_W2}")
    a("s_mov_b32 s33, 86")
    a("L_prep_plain:")
    a("v_lshrrev_b32 v3, 2, v1")
    a("v_mul_lo_u32 v3, v3, s29")
    a("v_and_b32 v4, 3, v1")
    a("v_lshlrev_b32 v4, 4, v4")
    a("v_add_u32 v3, v3, v4")
    a("s_lshl_b32 s36, s28, 6")
    a("v_add_u32 v3, s36, v3")
    a("s_lshl_b32 s37, s29, 4")
    a("s_mul_i32 s38, s30, s37")
    a("s_lshl_b32 s39, s3, 13")
    for i in range(8):
        a(f"s_add_u32 m0, s39, {i*1024}")
        a("s_nop 0")
        a("buffer_load_dwordx4 v3, s[24:27], s38 offen lds")
        a("s_add_u32 s38, s38, s37")
    tr_addr(a, 5, 1)
    a("v_add_u32 v5, s39, v5")
    a("v_lshlrev_b32 v6, 4, v1")
    a("s_add_u32 s31, s31, s30")
    a("s_lshl_b32 s31, s31, 10")
    a("s_add_u32 s31, s31, s32")
    a("s_waitcnt vmcnt(0)")
    for i in range(8):
        a(f"ds_read_b64_tr_b16 v[{8+4*i}:{9+4*i}], v5 offset:{i*1024}")
        a(f"ds_read_b64_tr_b16 v[{10+4*i}:{11+4*i}], v5 offset:{i*1024+256}")
    a("s_waitcnt lgkmcnt(0)")
    for i in range(8):
        a(f"s_add_u32 s40, s30, {i}")
        a("s_cmp_ge_u32 s40, s33")
        a("s_cbranch_scc1 L_prep_end")
        a(f"buffer_store_dwordx4 v[{8+4*i}:{11+4*i}], v6, s[20:23], s31 offen")
        a("s_add_u32 s31, s31, 1024")
    a("s_branch L_prep_end")

    a("L_prep_w13:")
    srd(a, 24, 12, 512*1376*2)
    srd(a, 28, 14, 512*1376*2)
    a("s_sub_u32 s34, s2, 80")
    a("v_lshrrev_b32 v3, 2, v1")
    a("s_movk_i32 s35, 2752")
    a("v_mul_lo_u32 v3, v3, s35")
    a("s_lshl_b32 s36, s34, 6")
    a("v_add_u32 v3, s36, v3")
    a("v_and_b32 v4, 3, v1")
    a("v_xor_b32 v7, 2, v4")
    a("v_lshlrev_b32 v4, 4, v4")
    a("v_lshlrev_b32 v7, 4, v7")
    a("v_add_u32 v7, v3, v7")
    a("v_add_u32 v3, v3, v4")
    a(f"s_mul_i32 s38, s3, {8*16*2752}")
    a("s_lshl_b32 s39, s3, 14")
    for i in range(8):
        a(f"s_add_u32 m0, s39, {i*1024}")
        a("s_nop 0")
        a("buffer_load_dwordx4 v3, s[24:27], s38 offen lds")
        a(f"s_add_u32 m0, s39, {8192+i*1024}")
        a("s_nop 0")
        a("buffer_load_dwordx4 v7, s[28:31], s38 offen lds")
        a(f"s_add_u32 s38, s38, {16*2752}")
    tr_addr(a, 5, 1, with_cg=False)
    a("v_bfe_u32 v4, v1, 4, 1")
    a("v_mul_u32_u24 v4, 8224, v4")
    a("v_add_u32 v5, v5, v4")
    a("v_add_u32 v5, s39, v5")
    a("v_xor_b32 v7, 32, v5")
    a("v_lshlrev_b32 v6, 4, v1")
    a("s_waitcnt vmcnt(0)")
    for s in range(2):
        for i in range(8):
            b = 8 + 32*s + 4*i
            a(f"ds_read_b64_tr_b16 v[{b}:{b+1}], v{5 if s == 0 else 7} offset:{i*1024}")
            a(f"ds_read_b64_tr_b16 v[{b+2}:{b+3}], v{5 if s == 0 else 7} offset:{i*1024+256}")
    a("s_lshl_b32 s31, s34, 6")
    a("s_lshl_b32 s35, s3, 3")
    a("s_add_u32 s31, s31, s35")
    a("s_lshl_b32 s31, s31, 10")
    a(f"s_add_u32 s31, s31, {WS_W13}")
    a("v_mov_b32 v72, 0")
    a("v_mov_b32 v73, 0")
    a("v_mov_b32 v74, 0x3f803f80")
    a("s_waitcnt lgkmcnt(0)")
    for s in range(2):
        for i in range(8):
            b = 8 + 32*s + 4*i
            a(f"s_add_u32 s40, s31, {s*32768 + i*1024}")
            a(f"buffer_store_dwordx4 v[{b}:{b+3}], v6, s[20:23], s40 offen")
            for j in range(4):
                a(f"v_dot2_f32_bf16 v{72+s}, v{b+j}, v74, v{72+s}")
    a("v_and_b32 v3, 31, v1")
    a("v_lshrrev_b32 v4, 5, v1")
    a("v_lshlrev_b32 v4, 8, v4")
    a("v_lshl_add_u32 v3, v3, 2, v4")
    a("s_lshl_b32 s35, s3, 9")
    a("s_add_u32 s35, s35, 65536")
    a("v_add_u32 v3, s35, v3")
    a("s_nop 2")
    a("ds_write_b32 v3, v72")
    a("ds_write_b32 v3, v73 offset:128")
    a("s_waitcnt lgkmcnt(0)")
    a("s_barrier")
    a("s_cmp_lg_u32 s3, 0")
    a("s_cbranch_scc1 L_prep_end")
    a("v_lshlrev_b32 v3, 2, v1")
    a("v_add_u32 v3, 65536, v3")
    for p in range(8):
        a(f"ds_read_b32 v{8+p}, v3 offset:{p*256}")
    a("s_waitcnt lgkmcnt(0)")
    for p in range(1, 8):
        a(f"v_add_f32 v8, v8, v{8+p}")
    pi_lane(a, 4, 1, 5)
    a("v_lshlrev_b32 v4, 2, v4")
    a("s_lshl_b32 s35, s34, 8")
    a(f"s_add_u32 s35, s35, {WS_CS}")
    a("buffer_store_dword v8, v4, s[20:23], s35 offen")
    a("s_branch L_prep_end")

    a("L_prep_ln:")
    srd(a, 24, 4, 2048*512*2)
    a("s_lshl_b32 s28, s2, 2")
    a("s_add_u32 s28, s28, s3")
    a("v_and_b32 v3, 31, v1")
    a("v_lshlrev_b32 v3, 10, v3")
    a("v_lshrrev_b32 v4, 5, v1")
    a("v_lshl_add_u32 v3, v4, 4, v3")
    a("s_lshl_b32 s29, s28, 15")
    for ks in range(32):
        a(f"buffer_load_dwordx4 v[{8+4*ks}:{11+4*ks}], v3, s[24:27], s29 offen offset:{ks*32}")
    a("v_mov_b32 v140, 0")
    a("v_mov_b32 v141, 0")
    a("v_mov_b32 v142, 0x3f803f80")
    a("s_waitcnt vmcnt(0)")
    for r in range(128):
        a(f"v_dot2_f32_bf16 v140, v{8+r}, v142, v140")
        a(f"v_dot2_f32_bf16 v141, v{8+r}, v{8+r}, v141")
    a("s_nop 4")
    a("v_mov_b32 v143, v140")
    a("v_mov_b32 v144, v141")
    a("s_nop 1")
    a("v_permlane32_swap_b32 v143, v140")
    a("v_permlane32_swap_b32 v144, v141")
    a("s_nop 1")
    a("v_add_f32 v140, v140, v143")
    a("v_add_f32 v141, v141, v144")
    ln_finish(a, 140, 141, 143)
    a("v_mul_f32 v140, v140, v141")
    a("v_lshlrev_b32 v6, 4, v1")
    a(f"s_add_u32 s29, s29, {WS_XN}")
    for ks in range(32):
        for j in range(4):
            r = 8 + 4*ks + j
            a(f"v_lshlrev_b32 v145, 16, v{r}")
            a(f"v_and_b32 v146, 0xffff0000, v{r}")
            a("v_fma_f32 v145, v145, v141, -v140")
            a("v_fma_f32 v146, v146, v141, -v140")
            a(f"v_cvt_pk_bf16_f32 v{r}, v145, v146")
        a(f"buffer_store_dwordx4 v[{8+4*ks}:{11+4*ks}], v6, s[20:23], s29 offen")
        a("s_add_u32 s29, s29, 1024")
    a("L_prep_end:")
    prof_end(a)
    return name, 171, 256, 65536+2048, kernel_desc(name, 152)

def ln_finish(a, vs, vq, vt):
    a(f"v_mul_f32 v{vs}, {hex(f2u(1/512))}, v{vs}")
    a(f"v_mul_f32 v{vt}, v{vs}, v{vs}")
    a(f"v_mov_b32 v{vt+1}, {hex(f2u(1/512))}")
    a(f"v_fma_f32 v{vq}, v{vq}, v{vt+1}, -v{vt}")
    a(f"v_max_f32 v{vq}, 0, v{vq}")
    a(f"v_add_f32 v{vq}, {hex(f2u(1e-5))}, v{vq}")
    a(f"v_rsq_f32 v{vq}, v{vq}")
    a("s_nop 0")

def tr_addr(a, d, lane, with_cg=True):
    t = 4
    a(f"v_lshrrev_b32 v{d}, 5, v{lane}")
    a(f"v_lshlrev_b32 v{d}, 9, v{d}")
    a(f"v_bfe_u32 v{t}, v{lane}, 2, 2")
    a(f"v_lshl_add_u32 v{d}, v{t}, 6, v{d}")
    if with_cg:
        a(f"v_bfe_u32 v{t}, v{lane}, 4, 1")
        a(f"v_lshl_add_u32 v{d}, v{t}, 5, v{d}")
    a(f"v_and_b32 v{t}, 1, v{lane}")
    a(f"v_lshl_add_u32 v{d}, v{t}, 4, v{d}")
    a(f"v_bfe_u32 v{t}, v{lane}, 1, 1")
    a(f"v_lshl_add_u32 v{d}, v{t}, 3, v{d}")

def pi_lane(a, d, lane, t):
    a(f"v_and_b32 v{d}, 0x33, v{lane}")
    a(f"v_bfe_u32 v{t}, v{lane}, 2, 1")
    a(f"v_lshl_add_u32 v{d}, v{t}, 3, v{d}")
    a(f"v_bfe_u32 v{t}, v{lane}, 3, 1")
    a(f"v_lshl_add_u32 v{d}, v{t}, 2, v{d}")

def zero_regs(a, b, n):
    for i in range(n):
        a(f"v_mov_b32 v{b+i}, 0")

def gemm_direct(a, nks, aops, bops, accs, form, srd_a, srd_b, voff, depth=3):
    na, nb = len(aops), len(bops)
    per = na + nb
    FB = gemm_direct.FB
    def buf(st, k): return FB + (st * per + k) * 4
    def issue(ks):
        st = ks % depth
        for i, s in enumerate(aops):
            a(f"buffer_load_dwordx4 {vr(buf(st,i),4)}, v{voff}, {sr(srd_a,4)}, s{s} offen")
            a(f"s_add_u32 s{s}, s{s}, 1024")
        for j, s in enumerate(bops):
            a(f"buffer_load_dwordx4 {vr(buf(st,na+j),4)}, v{voff}, {sr(srd_b,4)}, s{s} offen")
            a(f"s_add_u32 s{s}, s{s}, 1024")
    for ks in range(min(depth - 1, nks)):
        issue(ks)
    for ks in range(nks):
        if ks + depth - 1 < nks:
            issue(ks + depth - 1)
            a(f"s_waitcnt vmcnt({per*(depth-1)})")
        else:
            a(f"s_waitcnt vmcnt({per*(nks-1-ks)})")
        st = ks % depth
        for i in range(na):
            for j in range(nb):
                A, B = buf(st, i), buf(st, na + j)
                c = accs[i][j]
                if form[j] == 'T':
                    a(f"v_mfma_f32_32x32x16_bf16 {vr(c,16)}, {vr(B,4)}, {vr(A,4)}, {vr(c,16)}")
                else:
                    a(f"v_mfma_f32_32x32x16_bf16 {vr(c,16)}, {vr(A,4)}, {vr(B,4)}, {vr(c,16)}")
    a("s_nop 15")

def pack8(a, d, s):
    for j in range(4):
        a(f"v_cvt_pk_bf16_f32 v{d+j}, v{s+2*j}, v{s+2*j+1}")

def gen_qkv(a):
    name = "qkv_kernel"
    kernel_begin(a, name)
    prof_begin(a)
    a("s_cmp_ge_u32 s2, 256")
    a("s_cbranch_scc1 L_qkv_end")
    a(f"s_load_dwordx2 s[18:19], s[0:1], {KA_WS}")
    lane_setup(a)
    a("s_waitcnt lgkmcnt(0)")
    srd(a, 20, 18, WS_END)
    a("s_and_b32 s4, s2, 15")
    a("s_lshr_b32 s5, s2, 4")
    a("s_lshl_b32 s5, s5, 2")
    a("s_add_u32 s5, s5, s3")
    a("v_lshlrev_b32 v3, 4, v1")
    a("s_lshl_b32 s8, s5, 15")
    a(f"s_add_u32 s8, s8, {WS_XN}")
    a("s_lshl_b32 s9, s4, 15")
    a(f"s_add_u32 s9, s9, {WS_WQKV}")
    a(f"s_add_u32 s10, s9, {16*32768}")
    a(f"s_add_u32 s11, s9, {32*32768}")
    zero_regs(a, 16, 48)
    gemm_direct.FB = 64
    gemm_direct(a, 32, [8], [9, 10, 11], [[16, 32, 48]], "TTN", 20, 20, 3, depth=4)
    qs = hex(f2u(0.25 * LOG2E))
    a(f"s_mov_b32 s12, {qs}")
    for r in range(16):
        a(f"v_mul_f32 v{16+r}, s12, v{16+r}")
    pack8(a, 64, 16); pack8(a, 68, 24)
    pack8(a, 72, 32); pack8(a, 76, 40)
    pack8(a, 80, 48); pack8(a, 84, 56)
    a("s_lshl_b32 s13, s4, 7")
    a("s_add_u32 s13, s13, s5")
    a("s_lshl_b32 s13, s13, 10")
    a(f"s_add_u32 s14, s13, {WS_Q}")
    a("s_add_u32 s15, s14, 65536")
    a("buffer_store_dwordx4 v[64:67], v3, s[20:23], s14 offen")
    a("buffer_store_dwordx4 v[68:71], v3, s[20:23], s15 offen")
    pi_lane(a, 4, 1, 5)
    a("v_lshlrev_b32 v4, 4, v4")
    a(f"s_add_u32 s14, s13, {WS_K}")
    a("s_add_u32 s15, s14, 65536")
    a("buffer_store_dwordx4 v[72:75], v4, s[20:23], s14 offen")
    a("buffer_store_dwordx4 v[76:79], v4, s[20:23], s15 offen")
    a("v_and_b32 v5, 15, v1")
    a("v_lshlrev_b32 v5, 4, v5")
    a("v_lshrrev_b32 v6, 5, v1")
    a("v_lshl_add_u32 v5, v6, 8, v5")
    a("v_bfe_u32 v6, v1, 4, 1")
    a("v_lshl_add_u32 v5, v6, 16, v5")
    a(f"s_add_u32 s14, s13, {WS_V}")
    a("buffer_store_dwordx4 v[80:83], v5, s[20:23], s14 offen")
    a("buffer_store_dwordx4 v[84:87], v5, s[20:23], s14 offen offset:512")
    a("L_qkv_end:")
    prof_end(a)
    return name, 256, 256, 0, kernel_desc(name, 128)

def gen_attn(a):
    name = "attn_kernel"
    kernel_begin(a, name)
    prof_begin(a)
    a("s_cmp_ge_u32 s2, 256")
    a("s_cbranch_scc1 L_attn_end")
    a(f"s_load_dwordx2 s[18:19], s[0:1], {KA_WS}")
    lane_setup(a)
    a("s_waitcnt lgkmcnt(0)")
    srd(a, 20, 18, WS_END)
    a("s_and_b32 s4, s2, 7")
    a("s_lshr_b32 s5, s2, 3")
    a("s_lshl_b32 s6, s4, 3")
    a("s_add_u32 s6, s6, s3")
    a("v_lshlrev_b32 v3, 4, v1")
    Q, NM, SA, SB, O, KF, VF, IDX, VK, VV = 4, 8, 24, 40, 56, 72, 80, 96, 3, 97
    a("s_lshl_b32 s7, s5, 6")
    a("s_add_u32 s8, s7, s6")
    a("s_lshl_b32 s8, s8, 10")
    a(f"s_add_u32 s8, s8, {WS_Q}")
    a(f"buffer_load_dwordx4 {vr(Q,4)}, v3, s[20:23], s8 offen")
    a("s_lshl_b32 s9, s3, 13")
    a("s_lshl_b32 s10, s5, 16")
    a("s_add_u32 s10, s10, s9")
    a(f"s_add_u32 s11, s10, {WS_V}")
    a(f"s_add_u32 s10, s10, {WS_K}")
    for i in range(8):
        a(f"s_add_u32 m0, s9, {i*1024}")
        a("s_nop 0")
        a("buffer_load_dwordx4 v3, s[20:23], s10 offen lds")
        a(f"s_add_u32 m0, s9, {65536 + i*1024}")
        a("s_add_u32 s10, s10, 1024")
        a("buffer_load_dwordx4 v3, s[20:23], s11 offen lds")
        a("s_add_u32 s11, s11, 1024")
    a(f"v_mov_b32 v{IDX}, 0xdddddddd")
    a(f"v_and_b32 v{VV}, 15, v1")
    a(f"v_lshlrev_b32 v{VV}, 4, v{VV}")
    a("v_lshrrev_b32 v2, 5, v1")
    a(f"v_lshl_add_u32 v{VV}, v2, 8, v{VV}")
    a(f"v_add_u32 v{VV}, 65536, v{VV}")
    for i in range(16):
        a(f"v_mov_b32 v{VF+i}, 0x3f803f80")
    zero_regs(a, NM, 16)
    a("s_mov_b32 s12, 0x0000ffff")
    a("s_mov_b32 s13, 0x0000ffff")
    a("s_mov_b32 s14, 0")
    a("s_waitcnt vmcnt(0)")
    prof_mark(a, 0)
    a("s_barrier")
    prof_mark(a, 1)
    a("L_attn_pass:")
    zero_regs(a, O, 16)
    def rdK(t):
        a(f"ds_read_b128 {vr(KF+4*(t&1),4)}, v{VK} offset:{t*1024}")
    def rdV(t):
        a("s_mov_b64 exec, s[12:13]")
        a(f"ds_read_b128 {vr(VF+8*(t&1),4)}, v{VV} offset:{t*1024}")
        a(f"ds_read_b128 {vr(VF+8*(t&1)+4,4)}, v{VV} offset:{t*1024+512}")
        a("s_mov_b64 exec, -1")
    def qk(t):
        S = SA if t % 2 == 0 else SB
        a(f"v_mfma_f32_32x32x16_bf16 {vr(S,16)}, {vr(KF+4*(t&1),4)}, {vr(Q,4)}, {vr(NM,16)}")
    def pv(t, jj):
        S = SA if t % 2 == 0 else SB
        a(f"v_smfmac_f32_32x32x32_bf16 {vr(O,16)}, {vr(VF+8*(t&1)+4*jj,4)}, {vr(S+8*jj,8)}, v{IDX}")
    NT = 64
    rdK(0); rdK(1); rdV(0)
    a("s_waitcnt lgkmcnt(3)")
    qk(0)
    a("s_nop 15")
    for t in range(NT):
        S = SA if t % 2 == 0 else SB
        def ex(lo, hi):
            for r in range(lo, hi):
                a(f"v_exp_f32 v{S+r}, v{S+r}")
        if t in (16, 32, 48): prof_mark(a, 1 + t // 16)
        ex(0, 2)
        if t > 0:
            pv(t-1, 1)
        ex(2, 7)
        if t + 1 < NT:
            a("s_waitcnt lgkmcnt(2)")
            qk(t+1)
        if t + 2 < NT:
            rdK(t+2)
        ex(7, 12)
        a(f"s_waitcnt lgkmcnt({1 if t + 2 < NT else 0})")
        pv(t, 0)
        if t + 1 < NT:
            rdV(t+1)
        ex(12, 16)
    a("s_nop 1")
    pv(NT-1, 1)
    a("s_nop 15")
    a("s_nop 3")
    prof_mark(a, 5)
    a("s_cmp_lg_u32 s14, 0")
    a("s_cbranch_scc1 L_attn_fin")
    a("v_mov_b32 v2, 0")
    for r in range(8):
        a(f"v_fma_f32 v2, v{O+r}, 0, v2")
    a(f"v_cmp_u_f32 vcc, v2, v2")
    a(f"v_mov_b32 v2, {hex(f2u(2.0**-64))}")
    a(f"v_cmp_nle_f32 s[16:17], v2, v{O+8}")
    a(f"v_mov_b32 v2, {hex(f2u(2.0**64))}")
    a(f"v_cmp_nge_f32 s[24:25], v2, v{O+8}")
    a("s_nop 1")
    a("s_or_b64 vcc, vcc, s[16:17]")
    a("s_or_b64 vcc, vcc, s[24:25]")
    a("s_cbranch_vccz L_attn_fin")
    a("s_mov_b32 s14, 1")
    a(f"v_mov_b32 v2, 0xff800000")
    a(f"v_mov_b32 v{KF+4}, v{VK}")
    a("s_mov_b32 s15, 64")
    a("L_attn_max:")
    a(f"ds_read_b128 {vr(KF,4)}, v{KF+4}")
    a(f"v_add_u32 v{KF+4}, 1024, v{KF+4}")
    a("s_waitcnt lgkmcnt(0)")
    a(f"v_mfma_f32_32x32x16_bf16 {vr(SA,16)}, {vr(KF,4)}, {vr(Q,4)}, 0")
    a("s_nop 15")
    for r in range(0, 16, 2):
        a(f"v_max3_f32 v2, v2, v{SA+r}, v{SA+r+1}")
    a("s_sub_u32 s15, s15, 1")
    a("s_cmp_lg_u32 s15, 0")
    a("s_cbranch_scc1 L_attn_max")
    a(f"v_mov_b32 v{NM}, v2")
    a("s_nop 1")
    a(f"v_permlane32_swap_b32 v{NM}, v2")
    a("s_nop 1")
    a(f"v_max_f32 v2, v2, v{NM}")
    for r in range(16):
        a(f"v_sub_f32 v{NM+r}, 0, v2")
    a("s_branch L_attn_pass")
    a("L_attn_fin:")
    a(f"v_rcp_f32 v2, v{O+8}")
    a("s_nop 0")
    for r in range(8):
        a(f"v_mul_f32 v{O+r}, v{O+r}, v2")
    pack8(a, KF, O)
    a("s_lshl_b32 s8, s6, 5")
    a("s_add_u32 s8, s8, s5")
    a("s_lshl_b32 s8, s8, 10")
    a(f"s_add_u32 s8, s8, {WS_O}")
    a(f"buffer_store_dwordx4 {vr(KF,4)}, v3, s[20:23], s8 offen")
    a("L_attn_end:")
    prof_end(a)
    return name, 256, 512, 131072, kernel_desc(name, 104)

def unpack_add(a, acc, src, t):
    for j in range(4):
        a(f"v_lshlrev_b32 v{t}, 16, v{src+j}")
        a(f"v_and_b32 v{t+1}, 0xffff0000, v{src+j}")
        a(f"v_add_f32 v{acc+2*j}, v{acc+2*j}, v{t}")
        a(f"v_add_f32 v{acc+2*j+1}, v{acc+2*j+1}, v{t+1}")

def gen_oproj(a):
    name = "oproj_kernel"
    kernel_begin(a, name)
    prof_begin(a)
    a("s_cmp_ge_u32 s2, 256")
    a("s_cbranch_scc1 L_op_end")
    a(f"s_load_dwordx2 s[18:19], s[0:1], {KA_WS}")
    a(f"s_load_dwordx2 s[16:17], s[0:1], {KA_X}")
    lane_setup(a)
    a("s_waitcnt lgkmcnt(0)")
    srd(a, 20, 18, WS_END)
    srd(a, 24, 16, 2048*512*2)
    a("s_and_b32 s4, s2, 7")
    a("s_lshl_b32 s4, s4, 1")
    a("s_and_b32 s6, s3, 1")
    a("s_add_u32 s4, s4, s6")
    a("s_lshr_b32 s5, s2, 3")
    a("s_lshl_b32 s5, s5, 1")
    a("s_lshr_b32 s6, s3, 1")
    a("s_add_u32 s5, s5, s6")
    a("v_lshlrev_b32 v3, 4, v1")
    a("v_and_b32 v4, 31, v1")
    a("v_lshlrev_b32 v4, 10, v4")
    a("v_lshrrev_b32 v5, 5, v1")
    a("v_lshl_add_u32 v4, v5, 4, v4")
    a("s_lshl_b32 s8, s5, 15")
    a("s_lshl_b32 s9, s4, 6")
    a("s_add_u32 s10, s8, s9")
    a("buffer_load_dwordx4 v[8:11], v4, s[24:27], s10 offen")
    a("buffer_load_dwordx4 v[12:15], v4, s[24:27], s10 offen offset:32")
    a(f"s_add_u32 s8, s8, {WS_O}")
    a("s_lshl_b32 s9, s4, 15")
    a(f"s_add_u32 s9, s9, {WS_WO}")
    zero_regs(a, 16, 16)
    gemm_direct.FB = 32
    gemm_direct(a, 32, [8], [9], [[16]], "T", 20, 20, 3, depth=8)
    unpack_add(a, 16, 8, 6)
    unpack_add(a, 24, 12, 6)
    pack8(a, 32, 16); pack8(a, 36, 24)
    a("s_lshl_b32 s8, s5, 5")
    a("s_lshl_b32 s9, s4, 1")
    a("s_add_u32 s8, s8, s9")
    a("s_lshl_b32 s8, s8, 10")
    a(f"s_add_u32 s8, s8, {WS_H}")
    a("buffer_store_dwordx4 v[32:35], v3, s[20:23], s8 offen")
    a("buffer_store_dwordx4 v[36:39], v3, s[20:23], s8 offen offset:1024")
    a("v_mov_b32 v8, 0")
    a("v_mov_b32 v9, 0")
    a("v_mov_b32 v10, 0x3f803f80")
    for r in range(8):
        a(f"v_dot2_f32_bf16 v8, v{32+r}, v10, v8")
        a(f"v_dot2_f32_bf16 v9, v{32+r}, v{32+r}, v9")
    a("s_nop 4")
    a("v_mov_b32 v12, v8")
    a("v_mov_b32 v13, v9")
    a("s_nop 1")
    a("v_permlane32_swap_b32 v12, v8")
    a("v_permlane32_swap_b32 v13, v9")
    a("s_nop 1")
    a("v_add_f32 v8, v8, v12")
    a("v_add_f32 v9, v9, v13")
    a("s_lshl_b32 s8, s5, 4")
    a("s_add_u32 s8, s8, s4")
    a("s_lshl_b32 s8, s8, 8")
    a(f"s_add_u32 s8, s8, {WS_ST}")
    a("v_lshlrev_b32 v4, 3, v1")
    a("s_mov_b64 exec, 0xffffffff")
    a("buffer_store_dwordx2 v[8:9], v4, s[20:23], s8 offen")
    a("L_op_end:")
    prof_end(a)
    return name, 256, 256, 0, kernel_desc(name, 96)

def gen_up(a):
    name = "up_kernel"
    kernel_begin(a, name)
    prof_begin(a)
    a("s_cmp_ge_u32 s2, 240")
    a("s_cbranch_scc1 L_up_end")
    a(f"s_load_dwordx2 s[18:19], s[0:1], {KA_WS}")
    lane_setup(a)
    a("s_waitcnt lgkmcnt(0)")
    srd(a, 20, 18, WS_END)
    a("s_and_b32 s5, s2, 15")
    a("s_lshr_b32 s4, s2, 4")
    a("s_lshl_b32 s5, s5, 2")
    a("s_and_b32 s6, s3, 2")
    a("s_add_u32 s5, s5, s6")
    a("s_mul_i32 s4, s4, 6")
    a("s_and_b32 s6, s3, 1")
    a("s_mul_i32 s6, s6, 3")
    a("s_add_u32 s4, s4, s6")
    a("s_cmp_ge_u32 s4, 86")
    a("s_cbranch_scc1 L_up_end")
    a("v_lshlrev_b32 v3, 4, v1")
    ACC = 64
    accs = [[ACC + 16*(3*i+j) for j in range(3)] for i in range(2)]
    ST = 8
    CS = 160
    a("v_and_b32 v4, 31, v1")
    a("v_lshlrev_b32 v4, 3, v4")
    a("v_lshrrev_b32 v5, 5, v1")
    a("v_lshl_add_u32 v4, v5, 8, v4")
    a("s_lshl_b32 s8, s5, 12")
    a(f"s_add_u32 s8, s8, {WS_ST}")
    for i in range(2):
        for p in range(8):
            a(f"buffer_load_dwordx2 v[{ST+16*i+2*p}:{ST+16*i+2*p+1}], v4, s[20:23], s8 offen offset:{p*512}")
        a("s_add_u32 s8, s8, 4096")
    a("v_lshlrev_b32 v5, 5, v5")
    for j in range(3):
        a(f"s_add_u32 s9, s4, {j}")
        a("s_min_u32 s9, s9, 85")
        a(f"s_lshl_b32 s{12+j}, s9, 15")
        a(f"s_add_u32 s{12+j}, s{12+j}, {WS_W13}")
        a("s_lshl_b32 s9, s9, 7")
        a(f"s_add_u32 s9, s9, {WS_CS}")
        a(f"buffer_load_dwordx4 {vr(CS+16*j,4)}, v5, s[20:23], s9 offen")
        a(f"buffer_load_dwordx4 {vr(CS+16*j+4,4)}, v5, s[20:23], s9 offen offset:16")
        a(f"buffer_load_dwordx4 {vr(CS+16*j+8,4)}, v5, s[20:23], s9 offen offset:64")
        a(f"buffer_load_dwordx4 {vr(CS+16*j+12,4)}, v5, s[20:23], s9 offen offset:80")
    a("s_lshl_b32 s10, s5, 15")
    a(f"s_add_u32 s10, s10, {WS_H}")
    a("s_add_u32 s11, s10, 32768")
    zero_regs(a, ACC, 96)
    a("s_waitcnt vmcnt(0)")
    for i in range(2):
        b = ST + 16*i
        for p in range(1, 8):
            a(f"v_add_f32 v{b}, v{b}, v{b+2*p}")
            a(f"v_add_f32 v{b+1}, v{b+1}, v{b+2*p+1}")
        a(f"v_mov_b32 v{b+2}, v{b}")
        a(f"v_mov_b32 v{b+3}, v{b+1}")
        a("s_nop 1")
        a(f"v_permlane32_swap_b32 v{b+2}, v{b}")
        a(f"v_permlane32_swap_b32 v{b+3}, v{b+1}")
        a("s_nop 1")
        a(f"v_add_f32 v{40+2*i}, v{b}, v{b+2}")
        a(f"v_add_f32 v{41+2*i}, v{b+1}, v{b+3}")
        ln_finish(a, 40+2*i, 41+2*i, 44)
        a(f"v_mul_f32 v{40+2*i}, v{40+2*i}, v{41+2*i}")
    gemm_direct.FB = 208
    gemm_direct(a, 32, [10, 11], [12, 13, 14], accs, "TTT", 20, 20, 3, depth=2)
    a(f"s_mov_b32 s15, {hex(f2u(-LOG2E))}")
    for j in range(3):
        if j > 0:
            a(f"s_add_u32 s9, s4, {j}")
            a("s_cmp_ge_u32 s9, 86")
            a("s_cbranch_scc1 L_up_end")
        for i in range(2):
            c = accs[i][j]
            for r in range(16):
                a(f"v_mul_f32 v46, v{40+2*i}, v{CS+16*j+r}")
                a(f"v_fma_f32 v{c+r}, v{c+r}, v{41+2*i}, -v46")
            for r in range(8):
                a(f"v_mul_f32 v46, s15, v{c+r}")
                a("v_exp_f32 v46, v46")
                a("s_nop 0")
                a("v_add_f32 v46, 1.0, v46")
                a("v_rcp_f32 v46, v46")
                a(f"v_mul_f32 v{c+r}, v{c+r}, v{c+8+r}")
                a(f"v_mul_f32 v{c+r}, v{c+r}, v46")
            pack8(a, c+8, c)
            a(f"s_add_u32 s8, s5, {i}")
            a("s_mul_i32 s8, s8, 86")
            a("s_add_u32 s8, s8, s4")
            a(f"s_add_u32 s8, s8, {j}")
            a("s_lshl_b32 s8, s8, 10")
            a(f"s_add_u32 s8, s8, {WS_ACT}")
            a(f"buffer_store_dwordx4 {vr(c+8,4)}, v3, s[20:23], s8 offen")
    a("L_up_end:")
    prof_end(a)
    return name, 240, 256, 0, kernel_desc(name, 248)

def gen_down(a):
    name = "down_kernel"
    kernel_begin(a, name)
    prof_begin(a)
    a("s_cmp_ge_u32 s2, 256")
    a("s_cbranch_scc1 L_dn_end")
    a(f"s_load_dwordx2 s[18:19], s[0:1], {KA_WS}")
    a(f"s_load_dwordx2 s[16:17], s[0:1], {KA_OUT}")
    lane_setup(a)
    a("s_waitcnt lgkmcnt(0)")
    srd(a, 20, 18, WS_END)
    srd(a, 24, 16, 2048*512*2)
    a("s_and_b32 s4, s2, 7")
    a("s_lshl_b32 s4, s4, 1")
    a("s_and_b32 s6, s3, 1")
    a("s_add_u32 s4, s4, s6")
    a("s_lshr_b32 s5, s2, 3")
    a("s_lshl_b32 s5, s5, 1")
    a("s_lshr_b32 s6, s3, 1")
    a("s_add_u32 s5, s5, s6")
    a("v_lshlrev_b32 v3, 4, v1")
    a("s_lshl_b32 s8, s5, 5")
    a("s_lshl_b32 s9, s4, 1")
    a("s_add_u32 s8, s8, s9")
    a("s_lshl_b32 s8, s8, 10")
    a(f"s_add_u32 s8, s8, {WS_H}")
    a("buffer_load_dwordx4 v[8:11], v3, s[20:23], s8 offen")
    a("buffer_load_dwordx4 v[12:15], v3, s[20:23], s8 offen offset:1024")
    a(f"s_mul_i32 s8, s5, {86*1024}")
    a(f"s_add_u32 s8, s8, {WS_ACT}")
    a(f"s_mul_i32 s9, s4, {86*1024}")
    a(f"s_add_u32 s9, s9, {WS_W2}")
    zero_regs(a, 16, 16)
    gemm_direct.FB = 32
    gemm_direct(a, 86, [8], [9], [[16]], "T", 20, 20, 3, depth=8)
    unpack_add(a, 16, 8, 6)
    unpack_add(a, 24, 12, 6)
    pack8(a, 32, 16); pack8(a, 36, 24)
    a("v_and_b32 v4, 31, v1")
    a("v_lshlrev_b32 v4, 10, v4")
    a("v_lshrrev_b32 v5, 5, v1")
    a("v_lshl_add_u32 v4, v5, 4, v4")
    a("s_lshl_b32 s8, s5, 15")
    a("s_lshl_b32 s9, s4, 6")
    a("s_add_u32 s10, s8, s9")
    a("buffer_store_dwordx4 v[32:35], v4, s[24:27], s10 offen")
    a("buffer_store_dwordx4 v[36:39], v4, s[24:27], s10 offen offset:32")
    a("L_dn_end:")
    prof_end(a)
    return name, 256, 256, 0, kernel_desc(name, 96)

def gen_empty(a, name, grid):
    kernel_begin(a, name)
    prof_begin(a)
    prof_end(a)
    return name, grid, 256, 0, kernel_desc(name, 8)

def build(n_empty=0):
    a = Asm()
    ks = [gen_prep(a), gen_qkv(a), gen_attn(a), gen_oproj(a), gen_up(a), gen_down(a)]
    order = list(ks)
    if n_empty:
        e = gen_empty(a, "empty_kernel", 256)
        ks.append(e)
        order += [e] * n_empty
    hdr = open("cdna_kernels/" + NAME + ".s.ref").read().split("; Override launch")[0]
    out = hdr
    for n, g, b, l, d in order:
        out += f"; @launch kernel={n} grid=({g},1,1) block=({b},1,1) lds={l}\n"
    out += '.amdgcn_target "amdgcn-amd-amdhsa--gfx950"\n.text\n'
    out += a.text()
    out += '.section .rodata,"a"\n'
    for n, g, b, l, d in ks:
        out += ".p2align 6\n" + d
    return out

if __name__ == "__main__":
    Prof.on = "prof" in sys.argv
    Prof.dbg = "dbg" in sys.argv
    n_empty = int(sys.argv[2]) if len(sys.argv) > 2 and sys.argv[2].isdigit() else 0
    open(sys.argv[1], "w").write(build(n_empty))
```

```python
class Asm:
    def __init__(self):
        self.lines = []
        self.uid = 0
    def __call__(self, s):
        for l in s.split("\n"):
            l = l.strip()
            if not l: continue
            if l.endswith(":") or l.startswith("."):
                self.lines.append(l)
            else:
                self.lines.append("    " + l)
    def c(self, s):
        self.lines.append("    ; " + s)
    def label(self, base):
        self.uid += 1
        return f"L_{base}_{self.uid}"
    def text(self):
        return "\n".join(self.lines) + "\n"

def vr(b, n=1):
    return f"v{b}" if n == 1 else f"v[{b}:{b+n-1}]"
def ar(b, n=1):
    return f"a{b}" if n == 1 else f"a[{b}:{b+n-1}]"
def sr(b, n=1):
    return f"s{b}" if n == 1 else f"s[{b}:{b+n-1}]"

def kernel_begin(a, name):
    a(f".globl {name}\n.p2align 8\n.type {name},@function\n{name}:")

def kernel_desc(name, vgpr, sgpr=96, acc=None, extra=""):
    if acc is None:
        acc = (vgpr + 3) // 4 * 4
    return f""".amdhsa_kernel {name}
  .amdhsa_next_free_vgpr {vgpr}
  .amdhsa_next_free_sgpr {sgpr}
  .amdhsa_accum_offset {acc}
  .amdhsa_group_segment_fixed_size 0
  .amdhsa_kernarg_size 80
  .amdhsa_user_sgpr_count 2
  .amdhsa_user_sgpr_kernarg_segment_ptr 1
  .amdhsa_system_sgpr_workgroup_id_x 1
{extra}.end_amdhsa_kernel
"""

def srd(a, d, base, nbytes, add=0):
    if add:
        a(f"s_add_u32 s{d}, s{base}, {hex(add)}")
        a(f"s_addc_u32 s{d+1}, s{base+1}, 0")
    else:
        a(f"s_mov_b32 s{d}, s{base}")
        a(f"s_mov_b32 s{d+1}, s{base+1}")
    a(f"s_mov_b32 s{d+2}, {hex(nbytes)}")
    a(f"s_mov_b32 s{d+3}, 0x00020000")


PROF_OFF = 200 << 20
PROF_STRIDE = 1 << 18
class Prof:
    on = False
    idx = 0
    dbg = False
    n = 6
def prof_begin(a):
    if Prof.on:
        a("s_memrealtime s[92:93]")
        a("s_memtime s[82:83]")
        for k in range(8):
            a(f"s_mov_b32 s{64+2*k}, 0")
def prof_mark(a, k):
    if Prof.on:
        a(f"s_memrealtime s[{64+2*k}:{65+2*k}]")
def prof_end(a, end=True):
    if Prof.on:
        a("s_waitcnt vmcnt(0) lgkmcnt(0)")
        a("s_memrealtime s[94:95]")
        a("s_memtime s[80:81]")
        a("s_load_dwordx2 s[84:85], s[0:1], 72")
        a("s_getreg_b32 s90, hwreg(HW_REG_HW_ID)")
        a("s_getreg_b32 s91, hwreg(HW_REG_XCC_ID)")
        a("s_waitcnt lgkmcnt(0)")
        a("s_lshl_b32 s91, s91, 28")
        a("s_and_b32 s90, s90, 0xfffffff")
        a("s_or_b32 s91, s91, s90")
        a("s_sub_u32 s90, s80, s82")
        a(f"s_add_u32 s84, s84, {hex(PROF_OFF + Prof.idx*PROF_STRIDE)}")
        a("s_addc_u32 s85, s85, 0")
        a(f"s_mov_b32 s86, {PROF_STRIDE}")
        a("s_mov_b32 s87, 0x00020000")
        a("s_mov_b64 exec, 1")
        a("s_lshl_b32 s88, s2, 10")
        a("v_mov_b32 v4, s92")
        a("v_mov_b32 v5, s94")
        a("v_mov_b32 v6, s90")
        a("v_mov_b32 v7, s91")
        a("buffer_store_dwordx4 v[4:7], v0, s[84:87], s88 offen")
        for h in range(2):
            for k in range(4):
                a(f"v_mov_b32 v{8+4*h+k}, s{64+8*h+2*k}")
            a(f"buffer_store_dwordx4 v[{8+4*h}:{11+4*h}], v0, s[84:87], s88 offen offset:{16+16*h}")
        if Prof.dbg:
            lab = a.label("nodbg")
            a("s_cmp_lg_u32 s2, 3")
            a(f"s_cbranch_scc1 {lab}")
            a("s_load_dwordx2 s[84:85], s[0:1], 64")
            a("s_waitcnt lgkmcnt(0) vmcnt(0)")
            a(f"s_add_u32 s84, s84, {(Prof.n-1-Prof.idx)*512}")
            a("s_addc_u32 s85, s85, 0")
            a("s_mov_b32 s86, 256")
            a("v_not_b32 v4, v4")
            a(f"v_mov_b32 v6, {Prof.idx*8}")
            a("buffer_atomic_umax v4, v6, s[84:87], 0 offen sc1")
            a("buffer_atomic_umax v5, v6, s[84:87], 0 offen offset:4 sc1")
            a("s_waitcnt vmcnt(0)")
            a(f"{lab}:")
        Prof.idx += 1
    if end:
        a("s_endpgm")
```

```python
import sys
from asmlib import *

NAME = "sequential_preLN__softmax_full_mha__glu_gated_swiglu__prompt"
MB = 1 << 20
WS_XN   = 0 * MB
WS_WQKV = 2 * MB
WS_WO   = 4 * MB
WS_W13  = 5 * MB
WS_W2   = 8 * MB
WS_Q    = 10 * MB
WS_K    = 12 * MB
WS_V    = 14 * MB
WS_O    = 16 * MB
WS_H    = 18 * MB
WS_ACT  = 20 * MB
WS_ST   = 26 * MB
WS_CS   = 27 * MB
WS_END  = 28 * MB
LOG2E = 1.4426950408889634
import struct
def f2u(x): return struct.unpack("<I", struct.pack("<f", x))[0]

KA_X, KA_WQKV, KA_WO, KA_BX, KA_W1, KA_W3, KA_W2, KA_OUT, KA_DBG, KA_WS = [8*i for i in range(10)]

def lane_setup(a):
    a("v_and_b32 v1, 63, v0")
    a("v_lshrrev_b32 v2, 6, v0")
    a("s_nop 0")
    a("v_readfirstlane_b32 s3, v2")

def gen_prep(a):
    name = "prep_kernel"
    kernel_begin(a, name)
    prof_begin(a)
    a("s_cmp_ge_u32 s2, 171")
    a("s_cbranch_scc1 L_prep_end")
    a(f"s_load_dwordx4 s[4:7], s[0:1], {KA_X}")
    a(f"s_load_dwordx2 s[8:9], s[0:1], {KA_WO}")
    a(f"s_load_dwordx4 s[12:15], s[0:1], {KA_W1}")
    a(f"s_load_dwordx2 s[16:17], s[0:1], {KA_W2}")
    a(f"s_load_dwordx2 s[18:19], s[0:1], {KA_WS}")
    lane_setup(a)
    a("s_waitcnt lgkmcnt(0)")
    srd(a, 20, 18, WS_END)
    a("s_cmp_lt_u32 s2, 16")
    a("s_cbranch_scc1 L_prep_ln")
    a("s_cmp_lt_u32 s2, 80")
    a("s_cbranch_scc0 L_prep_not_plain1")
    a("s_cmp_lt_u32 s2, 64")
    a("s_cbranch_scc0 L_prep_wo")
    srd(a, 24, 6, 512*1536*2)
    a("s_sub_u32 s28, s2, 16")
    a("s_mov_b32 s29, 3072")
    a("s_lshl_b32 s30, s3, 3")
    a("s_lshl_b32 s31, s28, 5")
    a(f"s_mov_b32 s32, {WS_WQKV}")
    a("s_mov_b32 s33, 32")
    a("s_branch L_prep_plain")
    a("L_prep_wo:")
    srd(a, 24, 8, 512*512*2)
    a("s_sub_u32 s28, s2, 64")
    a("s_mov_b32 s29, 1024")
    a("s_lshl_b32 s30, s3, 3")
    a("s_lshl_b32 s31, s28, 5")
    a(f"s_mov_b32 s32, {WS_WO}")
    a("s_mov_b32 s33, 32")
    a("s_branch L_prep_plain")
    a("L_prep_not_plain1:")
    a("s_cmp_lt_u32 s2, 123")
    a("s_cbranch_scc1 L_prep_w13")
    srd(a, 24, 16, 1376*512*2)
    a("s_sub_u32 s34, s2, 123")
    a("s_mul_i32 s28, s34, 21846")
    a("s_lshr_b32 s28, s28, 16")
    a("s_mul_i32 s35, s28, 3")
    a("s_sub_u32 s35, s34, s35")
    a("s_lshl_b32 s35, s35, 2")
    a("s_add_u32 s30, s35, s3")
    a("s_lshl_b32 s30, s30, 3")
    a("s_mov_b32 s29, 1024")
    a("s_mul_i32 s31, s28, 86")
    a(f"s_mov_b32 s32, {WS_W2}")
    a("s_mov_b32 s33, 86")
    a("L_prep_plain:")
    a("v_lshrrev_b32 v3, 2, v1")
    a("v_mul_lo_u32 v3, v3, s29")
    a("v_and_b32 v4, 3, v1")
    a("v_lshlrev_b32 v4, 4, v4")
    a("v_add_u32 v3, v3, v4")
    a("s_lshl_b32 s36, s28, 6")
    a("v_add_u32 v3, s36, v3")
    a("s_lshl_b32 s37, s29, 4")
    a("s_mul_i32 s38, s30, s37")
    a("s_lshl_b32 s39, s3, 13")
    for i in range(8):
        a(f"s_add_u32 m0, s39, {i*1024}")
        a("s_nop 0")
        a("buffer_load_dwordx4 v3, s[24:27], s38 offen lds")
        a("s_add_u32 s38, s38, s37")
    tr_addr(a, 5, 1)
    a("v_add_u32 v5, s39, v5")
    a("v_lshlrev_b32 v6, 4, v1")
    a("s_add_u32 s31, s31, s30")
    a("s_lshl_b32 s31, s31, 10")
    a("s_add_u32 s31, s31, s32")
    a("s_waitcnt vmcnt(0)")
    for i in range(8):
        a(f"ds_read_b64_tr_b16 v[{8+4*i}:{9+4*i}], v5 offset:{i*1024}")
        a(f"ds_read_b64_tr_b16 v[{10+4*i}:{11+4*i}], v5 offset:{i*1024+256}")
    a("s_waitcnt lgkmcnt(0)")
    for i in range(8):
        a(f"s_add_u32 s40, s30, {i}")
        a("s_cmp_ge_u32 s40, s33")
        a("s_cbranch_scc1 L_prep_end")
        a(f"buffer_store_dwordx4 v[{8+4*i}:{11+4*i}], v6, s[20:23], s31 offen")
        a("s_add_u32 s31, s31, 1024")
    a("s_branch L_prep_end")

    a("L_prep_w13:")
    srd(a, 24, 12, 512*1376*2)
    srd(a, 28, 14, 512*1376*2)
    a("s_sub_u32 s34, s2, 80")
    a("v_lshrrev_b32 v3, 2, v1")
    a("s_movk_i32 s35, 2752")
    a("v_mul_lo_u32 v3, v3, s35")
    a("s_lshl_b32 s36, s34, 6")
    a("v_add_u32 v3, s36, v3")
    a("v_and_b32 v4, 3, v1")
    a("v_xor_b32 v7, 2, v4")
    a("v_lshlrev_b32 v4, 4, v4")
    a("v_lshlrev_b32 v7, 4, v7")
    a("v_add_u32 v7, v3, v7")
    a("v_add_u32 v3, v3, v4")
    a(f"s_mul_i32 s38, s3, {8*16*2752}")
    a("s_lshl_b32 s39, s3, 14")
    for i in range(8):
        a(f"s_add_u32 m0, s39, {i*1024}")
        a("s_nop 0")
        a("buffer_load_dwordx4 v3, s[24:27], s38 offen lds")
        a(f"s_add_u32 m0, s39, {8192+i*1024}")
        a("s_nop 0")
        a("buffer_load_dwordx4 v7, s[28:31], s38 offen lds")
        a(f"s_add_u32 s38, s38, {16*2752}")
    tr_addr(a, 5, 1, with_cg=False)
    a("v_bfe_u32 v4, v1, 4, 1")
    a("v_mul_u32_u24 v4, 8224, v4")
    a("v_add_u32 v5, v5, v4")
    a("v_add_u32 v5, s39, v5")
    a("v_xor_b32 v7, 32, v5")
    a("v_lshlrev_b32 v6, 4, v1")
    a("s_waitcnt vmcnt(0)")
    for s in range(2):
        for i in range(8):
            b = 8 + 32*s + 4*i
            a(f"ds_read_b64_tr_b16 v[{b}:{b+1}], v{5 if s == 0 else 7} offset:{i*1024}")
            a(f"ds_read_b64_tr_b16 v[{b+2}:{b+3}], v{5 if s == 0 else 7} offset:{i*1024+256}")
    a("s_lshl_b32 s31, s34, 6")
    a("s_lshl_b32 s35, s3, 3")
    a("s_add_u32 s31, s31, s35")
    a("s_lshl_b32 s31, s31, 10")
    a(f"s_add_u32 s31, s31, {WS_W13}")
    a("v_mov_b32 v72, 0")
    a("v_mov_b32 v73, 0")
    a("v_mov_b32 v74, 0x3f803f80")
    a("s_waitcnt lgkmcnt(0)")
    for s in range(2):
        for i in range(8):
            b = 8 + 32*s + 4*i
            a(f"s_add_u32 s40, s31, {s*32768 + i*1024}")
            a(f"buffer_store_dwordx4 v[{b}:{b+3}], v6, s[20:23], s40 offen")
            for j in range(4):
                a(f"v_dot2_f32_bf16 v{72+s}, v{b+j}, v74, v{72+s}")
    a("v_and_b32 v3, 31, v1")
    a("v_lshrrev_b32 v4, 5, v1")
    a("v_lshlrev_b32 v4, 8, v4")
    a("v_lshl_add_u32 v3, v3, 2, v4")
    a("s_lshl_b32 s35, s3, 9")
    a("s_add_u32 s35, s35, 65536")
    a("v_add_u32 v3, s35, v3")
    a("s_nop 2")
    a("ds_write_b32 v3, v72")
    a("ds_write_b32 v3, v73 offset:128")
    a("s_waitcnt lgkmcnt(0)")
    a("s_barrier")
    a("s_cmp_lg_u32 s3, 0")
    a("s_cbranch_scc1 L_prep_end")
    a("v_lshlrev_b32 v3, 2, v1")
    a("v_add_u32 v3, 65536, v3")
    for p in range(8):
        a(f"ds_read_b32 v{8+p}, v3 offset:{p*256}")
    a("s_waitcnt lgkmcnt(0)")
    for p in range(1, 8):
        a(f"v_add_f32 v8, v8, v{8+p}")
    pi_lane(a, 4, 1, 5)
    a("v_lshlrev_b32 v4, 2, v4")
    a("s_lshl_b32 s35, s34, 8")
    a(f"s_add_u32 s35, s35, {WS_CS}")
    a("buffer_store_dword v8, v4, s[20:23], s35 offen")
    a("s_branch L_prep_end")

    a("L_prep_ln:")
    srd(a, 24, 4, 2048*512*2)
    a("s_lshl_b32 s28, s2, 2")
    a("s_add_u32 s28, s28, s3")
    a("v_and_b32 v3, 31, v1")
    a("v_lshlrev_b32 v3, 10, v3")
    a("v_lshrrev_b32 v4, 5, v1")
    a("v_lshl_add_u32 v3, v4, 4, v3")
    a("s_lshl_b32 s29, s28, 15")
    for ks in range(32):
        a(f"buffer_load_dwordx4 v[{8+4*ks}:{11+4*ks}], v3, s[24:27], s29 offen offset:{ks*32}")
    a("v_mov_b32 v140, 0")
    a("v_mov_b32 v141, 0")
    a("v_mov_b32 v142, 0x3f803f80")
    a("s_waitcnt vmcnt(0)")
    for r in range(128):
        a(f"v_dot2_f32_bf16 v140, v{8+r}, v142, v140")
        a(f"v_dot2_f32_bf16 v141, v{8+r}, v{8+r}, v141")
    a("s_nop 4")
    a("v_mov_b32 v143, v140")
    a("v_mov_b32 v144, v141")
    a("s_nop 1")
    a("v_permlane32_swap_b32 v143, v140")
    a("v_permlane32_swap_b32 v144, v141")
    a("s_nop 1")
    a("v_add_f32 v140, v140, v143")
    a("v_add_f32 v141, v141, v144")
    ln_finish(a, 140, 141, 143)
    a("v_mul_f32 v140, v140, v141")
    a("v_lshlrev_b32 v6, 4, v1")
    a(f"s_add_u32 s29, s29, {WS_XN}")
    for ks in range(32):
        for j in range(4):
            r = 8 + 4*ks + j
            a(f"v_lshlrev_b32 v145, 16, v{r}")
            a(f"v_and_b32 v146, 0xffff0000, v{r}")
            a("v_fma_f32 v145, v145, v141, -v140")
            a("v_fma_f32 v146, v146, v141, -v140")
            a(f"v_cvt_pk_bf16_f32 v{r}, v145, v146")
        a(f"buffer_store_dwordx4 v[{8+4*ks}:{11+4*ks}], v6, s[20:23], s29 offen")
        a("s_add_u32 s29, s29, 1024")
    a("L_prep_end:")
    prof_end(a)
    return name, 171, 256, 65536+2048, kernel_desc(name, 152)

def ln_finish(a, vs, vq, vt):
    a(f"v_mul_f32 v{vs}, {hex(f2u(1/512))}, v{vs}")
    a(f"v_mul_f32 v{vt}, v{vs}, v{vs}")
    a(f"v_mov_b32 v{vt+1}, {hex(f2u(1/512))}")
    a(f"v_fma_f32 v{vq}, v{vq}, v{vt+1}, -v{vt}")
    a(f"v_max_f32 v{vq}, 0, v{vq}")
    a(f"v_add_f32 v{vq}, {hex(f2u(1e-5))}, v{vq}")
    a(f"v_rsq_f32 v{vq}, v{vq}")
    a("s_nop 0")

def tr_addr(a, d, lane, with_cg=True):
    t = 4
    a(f"v_lshrrev_b32 v{d}, 5, v{lane}")
    a(f"v_lshlrev_b32 v{d}, 9, v{d}")
    a(f"v_bfe_u32 v{t}, v{lane}, 2, 2")
    a(f"v_lshl_add_u32 v{d}, v{t}, 6, v{d}")
    if with_cg:
        a(f"v_bfe_u32 v{t}, v{lane}, 4, 1")
        a(f"v_lshl_add_u32 v{d}, v{t}, 5, v{d}")
    a(f"v_and_b32 v{t}, 1, v{lane}")
    a(f"v_lshl_add_u32 v{d}, v{t}, 4, v{d}")
    a(f"v_bfe_u32 v{t}, v{lane}, 1, 1")
    a(f"v_lshl_add_u32 v{d}, v{t}, 3, v{d}")

def pi_lane(a, d, lane, t):
    a(f"v_and_b32 v{d}, 0x33, v{lane}")
    a(f"v_bfe_u32 v{t}, v{lane}, 2, 1")
    a(f"v_lshl_add_u32 v{d}, v{t}, 3, v{d}")
    a(f"v_bfe_u32 v{t}, v{lane}, 3, 1")
    a(f"v_lshl_add_u32 v{d}, v{t}, 2, v{d}")

def zero_regs(a, b, n):
    for i in range(n):
        a(f"v_mov_b32 v{b+i}, 0")

def gemm_direct(a, nks, aops, bops, accs, form, srd_a, srd_b, voff, depth=3):
    na, nb = len(aops), len(bops)
    per = na + nb
    FB = gemm_direct.FB
    def buf(st, k): return FB + (st * per + k) * 4
    def issue(ks):
        st = ks % depth
        for i, s in enumerate(aops):
            a(f"buffer_load_dwordx4 {vr(buf(st,i),4)}, v{voff}, {sr(srd_a,4)}, s{s} offen")
            a(f"s_add_u32 s{s}, s{s}, 1024")
        for j, s in enumerate(bops):
            a(f"buffer_load_dwordx4 {vr(buf(st,na+j),4)}, v{voff}, {sr(srd_b,4)}, s{s} offen")
            a(f"s_add_u32 s{s}, s{s}, 1024")
    for ks in range(min(depth - 1, nks)):
        issue(ks)
    for ks in range(nks):
        if ks + depth - 1 < nks:
            issue(ks + depth - 1)
            a(f"s_waitcnt vmcnt({per*(depth-1)})")
        else:
            a(f"s_waitcnt vmcnt({per*(nks-1-ks)})")
        st = ks % depth
        for i in range(na):
            for j in range(nb):
                A, B = buf(st, i), buf(st, na + j)
                c = accs[i][j]
                if form[j] == 'T':
                    a(f"v_mfma_f32_32x32x16_bf16 {vr(c,16)}, {vr(B,4)}, {vr(A,4)}, {vr(c,16)}")
                else:
                    a(f"v_mfma_f32_32x32x16_bf16 {vr(c,16)}, {vr(A,4)}, {vr(B,4)}, {vr(c,16)}")
    a("s_nop 15")

def pack8(a, d, s):
    for j in range(4):
        a(f"v_cvt_pk_bf16_f32 v{d+j}, v{s+2*j}, v{s+2*j+1}")

def gen_qkv(a):
    name = "qkv_kernel"
    kernel_begin(a, name)
    prof_begin(a)
    a("s_cmp_ge_u32 s2, 256")
    a("s_cbranch_scc1 L_qkv_end")
    a(f"s_load_dwordx2 s[18:19], s[0:1], {KA_WS}")
    lane_setup(a)
    a("s_waitcnt lgkmcnt(0)")
    srd(a, 20, 18, WS_END)
    a("s_and_b32 s4, s2, 15")
    a("s_lshr_b32 s5, s2, 4")
    a("s_lshl_b32 s5, s5, 2")
    a("s_add_u32 s5, s5, s3")
    a("v_lshlrev_b32 v3, 4, v1")
    a("s_lshl_b32 s8, s5, 15")
    a(f"s_add_u32 s8, s8, {WS_XN}")
    a("s_lshl_b32 s9, s4, 15")
    a(f"s_add_u32 s9, s9, {WS_WQKV}")
    a(f"s_add_u32 s10, s9, {16*32768}")
    a(f"s_add_u32 s11, s9, {32*32768}")
    zero_regs(a, 16, 48)
    gemm_direct.FB = 64
    gemm_direct(a, 32, [8], [9, 10, 11], [[16, 32, 48]], "TTN", 20, 20, 3, depth=4)
    qs = hex(f2u(0.25 * LOG2E))
    a(f"s_mov_b32 s12, {qs}")
    for r in range(16):
        a(f"v_mul_f32 v{16+r}, s12, v{16+r}")
    pack8(a, 64, 16); pack8(a, 68, 24)
    pack8(a, 72, 32); pack8(a, 76, 40)
    pack8(a, 80, 48); pack8(a, 84, 56)
    a("s_lshl_b32 s13, s4, 7")
    a("s_add_u32 s13, s13, s5")
    a("s_lshl_b32 s13, s13, 10")
    a(f"s_add_u32 s14, s13, {WS_Q}")
    a("s_add_u32 s15, s14, 65536")
    a("buffer_store_dwordx4 v[64:67], v3, s[20:23], s14 offen")
    a("buffer_store_dwordx4 v[68:71], v3, s[20:23], s15 offen")
    pi_lane(a, 4, 1, 5)
    a("v_lshlrev_b32 v4, 4, v4")
    a(f"s_add_u32 s14, s13, {WS_K}")
    a("s_add_u32 s15, s14, 65536")
    a("buffer_store_dwordx4 v[72:75], v4, s[20:23], s14 offen")
    a("buffer_store_dwordx4 v[76:79], v4, s[20:23], s15 offen")
    a("v_and_b32 v5, 15, v1")
    a("v_lshlrev_b32 v5, 4, v5")
    a("v_lshrrev_b32 v6, 5, v1")
    a("v_lshl_add_u32 v5, v6, 8, v5")
    a("v_bfe_u32 v6, v1, 4, 1")
    a("v_lshl_add_u32 v5, v6, 16, v5")
    a(f"s_add_u32 s14, s13, {WS_V}")
    a("buffer_store_dwordx4 v[80:83], v5, s[20:23], s14 offen")
    a("buffer_store_dwordx4 v[84:87], v5, s[20:23], s14 offen offset:512")
    a("L_qkv_end:")
    prof_end(a)
    return name, 256, 256, 0, kernel_desc(name, 128)

def gen_attn(a):
    name = "attn_kernel"
    kernel_begin(a, name)
    prof_begin(a)
    a("s_cmp_ge_u32 s2, 256")
    a("s_cbranch_scc1 L_attn_end")
    a(f"s_load_dwordx2 s[18:19], s[0:1], {KA_WS}")
    lane_setup(a)
    a("s_waitcnt lgkmcnt(0)")
    srd(a, 20, 18, WS_END)
    a("s_lshr_b32 s4, s2, 5")
    a("s_and_b32 s5, s2, 31")
    a("s_lshl_b32 s6, s4, 3")
    a("s_add_u32 s6, s6, s3")
    a("v_lshlrev_b32 v3, 4, v1")
    Q, NM, SA, SB, O, KF, VF, IDX, VK, VV = 4, 8, 24, 40, 56, 72, 80, 96, 3, 97
    a("s_lshl_b32 s7, s5, 6")
    a("s_add_u32 s8, s7, s6")
    a("s_lshl_b32 s8, s8, 10")
    a(f"s_add_u32 s8, s8, {WS_Q}")
    a(f"buffer_load_dwordx4 {vr(Q,4)}, v3, s[20:23], s8 offen")
    a("s_lshl_b32 s9, s3, 13")
    a("s_lshl_b32 s10, s5, 16")
    a("s_add_u32 s10, s10, s9")
    a(f"s_add_u32 s11, s10, {WS_V}")
    a(f"s_add_u32 s10, s10, {WS_K}")
    for i in range(8):
        a(f"s_add_u32 m0, s9, {i*1024}")
        a("s_nop 0")
        a("buffer_load_dwordx4 v3, s[20:23], s10 offen lds")
        a(f"s_add_u32 m0, s9, {65536 + i*1024}")
        a("s_add_u32 s10, s10, 1024")
        a("buffer_load_dwordx4 v3, s[20:23], s11 offen lds")
        a("s_add_u32 s11, s11, 1024")
    a(f"v_mov_b32 v{IDX}, 0xdddddddd")
    a(f"v_and_b32 v{VV}, 15, v1")
    a(f"v_lshlrev_b32 v{VV}, 4, v{VV}")
    a("v_lshrrev_b32 v2, 5, v1")
    a(f"v_lshl_add_u32 v{VV}, v2, 8, v{VV}")
    a(f"v_add_u32 v{VV}, 65536, v{VV}")
    for i in range(16):
        a(f"v_mov_b32 v{VF+i}, 0x3f803f80")
    zero_regs(a, NM, 16)
    a("s_mov_b32 s12, 0x0000ffff")
    a("s_mov_b32 s13, 0x0000ffff")
    a("s_mov_b32 s14, 0")
    a("s_waitcnt vmcnt(0)")
    prof_mark(a, 0)
    a("s_barrier")
    prof_mark(a, 1)
    a("L_attn_pass:")
    zero_regs(a, O, 16)
    def rdK(t):
        a(f"ds_read_b128 {vr(KF+4*(t&1),4)}, v{VK} offset:{t*1024}")
    def rdV(t):
        a("s_mov_b64 exec, s[12:13]")
        a(f"ds_read_b128 {vr(VF+8*(t&1),4)}, v{VV} offset:{t*1024}")
        a(f"ds_read_b128 {vr(VF+8*(t&1)+4,4)}, v{VV} offset:{t*1024+512}")
        a("s_mov_b64 exec, -1")
    def qk(t):
        S = SA if t % 2 == 0 else SB
        a(f"v_mfma_f32_32x32x16_bf16 {vr(S,16)}, {vr(KF+4*(t&1),4)}, {vr(Q,4)}, {vr(NM,16)}")
    def pv(t, jj):
        S = SA if t % 2 == 0 else SB
        a(f"v_smfmac_f32_32x32x32_bf16 {vr(O,16)}, {vr(VF+8*(t&1)+4*jj,4)}, {vr(S+8*jj,8)}, v{IDX}")
    NT = 64
    rdK(0); rdK(1); rdV(0)
    a("s_waitcnt lgkmcnt(3)")
    qk(0)
    a("s_nop 15")
    for t in range(NT):
        S = SA if t % 2 == 0 else SB
        def ex(lo, hi):
            for r in range(lo, hi):
                a(f"v_exp_f32 v{S+r}, v{S+r}")
        if t in (16, 32, 48): prof_mark(a, 1 + t // 16)
        ex(0, 2)
        if t > 0:
            pv(t-1, 1)
        ex(2, 7)
        if t + 1 < NT:
            a("s_waitcnt lgkmcnt(2)")
            qk(t+1)
        if t + 2 < NT:
            rdK(t+2)
        ex(7, 12)
        a(f"s_waitcnt lgkmcnt({1 if t + 2 < NT else 0})")
        pv(t, 0)
        if t + 1 < NT:
            rdV(t+1)
        ex(12, 16)
    a("s_nop 1")
    pv(NT-1, 1)
    a("s_nop 15")
    a("s_nop 3")
    prof_mark(a, 5)
    a("s_cmp_lg_u32 s14, 0")
    a("s_cbranch_scc1 L_attn_fin")
    a("v_mov_b32 v2, 0")
    for r in range(8):
        a(f"v_fma_f32 v2, v{O+r}, 0, v2")
    a(f"v_cmp_u_f32 vcc, v2, v2")
    a(f"v_mov_b32 v2, {hex(f2u(2.0**-64))}")
    a(f"v_cmp_nle_f32 s[16:17], v2, v{O+8}")
    a(f"v_mov_b32 v2, {hex(f2u(2.0**64))}")
    a(f"v_cmp_nge_f32 s[24:25], v2, v{O+8}")
    a("s_nop 1")
    a("s_or_b64 vcc, vcc, s[16:17]")
    a("s_or_b64 vcc, vcc, s[24:25]")
    a("s_cbranch_vccz L_attn_fin")
    a("s_mov_b32 s14, 1")
    a(f"v_mov_b32 v2, 0xff800000")
    a(f"v_mov_b32 v{KF+4}, v{VK}")
    a("s_mov_b32 s15, 64")
    a("L_attn_max:")
    a(f"ds_read_b128 {vr(KF,4)}, v{KF+4}")
    a(f"v_add_u32 v{KF+4}, 1024, v{KF+4}")
    a("s_waitcnt lgkmcnt(0)")
    a(f"v_mfma_f32_32x32x16_bf16 {vr(SA,16)}, {vr(KF,4)}, {vr(Q,4)}, 0")
    a("s_nop 15")
    for r in range(0, 16, 2):
        a(f"v_max3_f32 v2, v2, v{SA+r}, v{SA+r+1}")
    a("s_sub_u32 s15, s15, 1")
    a("s_cmp_lg_u32 s15, 0")
    a("s_cbranch_scc1 L_attn_max")
    a(f"v_mov_b32 v{NM}, v2")
    a("s_nop 1")
    a(f"v_permlane32_swap_b32 v{NM}, v2")
    a("s_nop 1")
    a(f"v_max_f32 v2, v2, v{NM}")
    for r in range(16):
        a(f"v_sub_f32 v{NM+r}, 0, v2")
    a("s_branch L_attn_pass")
    a("L_attn_fin:")
    a(f"v_rcp_f32 v2, v{O+8}")
    a("s_nop 0")
    for r in range(8):
        a(f"v_mul_f32 v{O+r}, v{O+r}, v2")
    pack8(a, KF, O)
    a("s_lshl_b32 s8, s6, 5")
    a("s_add_u32 s8, s8, s5")
    a("s_lshl_b32 s8, s8, 10")
    a(f"s_add_u32 s8, s8, {WS_O}")
    a(f"buffer_store_dwordx4 {vr(KF,4)}, v3, s[20:23], s8 offen")
    a("L_attn_end:")
    prof_end(a)
    return name, 256, 512, 131072, kernel_desc(name, 104)

def unpack_add(a, acc, src, t):
    for j in range(4):
        a(f"v_lshlrev_b32 v{t}, 16, v{src+j}")
        a(f"v_and_b32 v{t+1}, 0xffff0000, v{src+j}")
        a(f"v_add_f32 v{acc+2*j}, v{acc+2*j}, v{t}")
        a(f"v_add_f32 v{acc+2*j+1}, v{acc+2*j+1}, v{t+1}")

def gen_oproj(a):
    name = "oproj_kernel"
    kernel_begin(a, name)
    prof_begin(a)
    a("s_cmp_ge_u32 s2, 256")
    a("s_cbranch_scc1 L_op_end")
    a(f"s_load_dwordx2 s[18:19], s[0:1], {KA_WS}")
    a(f"s_load_dwordx2 s[16:17], s[0:1], {KA_X}")
    lane_setup(a)
    a("s_waitcnt lgkmcnt(0)")
    srd(a, 20, 18, WS_END)
    srd(a, 24, 16, 2048*512*2)
    a("s_and_b32 s4, s2, 7")
    a("s_lshl_b32 s4, s4, 1")
    a("s_and_b32 s6, s3, 1")
    a("s_add_u32 s4, s4, s6")
    a("s_lshr_b32 s5, s2, 3")
    a("s_lshl_b32 s5, s5, 1")
    a("s_lshr_b32 s6, s3, 1")
    a("s_add_u32 s5, s5, s6")
    a("v_lshlrev_b32 v3, 4, v1")
    a("v_and_b32 v4, 31, v1")
    a("v_lshlrev_b32 v4, 10, v4")
    a("v_lshrrev_b32 v5, 5, v1")
    a("v_lshl_add_u32 v4, v5, 4, v4")
    a("s_lshl_b32 s8, s5, 15")
    a("s_lshl_b32 s9, s4, 6")
    a("s_add_u32 s10, s8, s9")
    a("buffer_load_dwordx4 v[8:11], v4, s[24:27], s10 offen")
    a("buffer_load_dwordx4 v[12:15], v4, s[24:27], s10 offen offset:32")
    a(f"s_add_u32 s8, s8, {WS_O}")
    a("s_lshl_b32 s9, s4, 15")
    a(f"s_add_u32 s9, s9, {WS_WO}")
    zero_regs(a, 16, 16)
    gemm_direct.FB = 32
    gemm_direct(a, 32, [8], [9], [[16]], "T", 20, 20, 3, depth=8)
    unpack_add(a, 16, 8, 6)
    unpack_add(a, 24, 12, 6)
    pack8(a, 32, 16); pack8(a, 36, 24)
    a("s_lshl_b32 s8, s5, 5")
    a("s_lshl_b32 s9, s4, 1")
    a("s_add_u32 s8, s8, s9")
    a("s_lshl_b32 s8, s8, 10")
    a(f"s_add_u32 s8, s8, {WS_H}")
    a("buffer_store_dwordx4 v[32:35], v3, s[20:23], s8 offen")
    a("buffer_store_dwordx4 v[36:39], v3, s[20:23], s8 offen offset:1024")
    a("v_mov_b32 v8, 0")
    a("v_mov_b32 v9, 0")
    a("v_mov_b32 v10, 0x3f803f80")
    for r in range(8):
        a(f"v_dot2_f32_bf16 v8, v{32+r}, v10, v8")
        a(f"v_dot2_f32_bf16 v9, v{32+r}, v{32+r}, v9")
    a("s_nop 4")
    a("v_mov_b32 v12, v8")
    a("v_mov_b32 v13, v9")
    a("s_nop 1")
    a("v_permlane32_swap_b32 v12, v8")
    a("v_permlane32_swap_b32 v13, v9")
    a("s_nop 1")
    a("v_add_f32 v8, v8, v12")
    a("v_add_f32 v9, v9, v13")
    a("s_lshl_b32 s8, s5, 4")
    a("s_add_u32 s8, s8, s4")
    a("s_lshl_b32 s8, s8, 8")
    a(f"s_add_u32 s8, s8, {WS_ST}")
    a("v_lshlrev_b32 v4, 3, v1")
    a("s_mov_b64 exec, 0xffffffff")
    a("buffer_store_dwordx2 v[8:9], v4, s[20:23], s8 offen")
    a("L_op_end:")
    prof_end(a)
    return name, 256, 256, 0, kernel_desc(name, 96)

def gen_up(a):
    name = "up_kernel"
    kernel_begin(a, name)
    prof_begin(a)
    a("s_cmp_ge_u32 s2, 240")
    a("s_cbranch_scc1 L_up_end")
    a(f"s_load_dwordx2 s[18:19], s[0:1], {KA_WS}")
    lane_setup(a)
    a("s_waitcnt lgkmcnt(0)")
    srd(a, 20, 18, WS_END)
    a("s_and_b32 s5, s2, 15")
    a("s_lshr_b32 s4, s2, 4")
    a("s_lshl_b32 s5, s5, 2")
    a("s_and_b32 s6, s3, 2")
    a("s_add_u32 s5, s5, s6")
    a("s_mul_i32 s4, s4, 6")
    a("s_and_b32 s6, s3, 1")
    a("s_mul_i32 s6, s6, 3")
    a("s_add_u32 s4, s4, s6")
    a("s_cmp_ge_u32 s4, 86")
    a("s_cbranch_scc1 L_up_end")
    a("v_lshlrev_b32 v3, 4, v1")
    ACC = 64
    accs = [[ACC + 16*(3*i+j) for j in range(3)] for i in range(2)]
    ST = 8
    CS = 160
    a("v_and_b32 v4, 31, v1")
    a("v_lshlrev_b32 v4, 3, v4")
    a("v_lshrrev_b32 v5, 5, v1")
    a("v_lshl_add_u32 v4, v5, 8, v4")
    a("s_lshl_b32 s8, s5, 12")
    a(f"s_add_u32 s8, s8, {WS_ST}")
    for i in range(2):
        for p in range(8):
            a(f"buffer_load_dwordx2 v[{ST+16*i+2*p}:{ST+16*i+2*p+1}], v4, s[20:23], s8 offen offset:{p*512}")
        a("s_add_u32 s8, s8, 4096")
    a("v_lshlrev_b32 v5, 5, v5")
    for j in range(3):
        a(f"s_add_u32 s9, s4, {j}")
        a("s_min_u32 s9, s9, 85")
        a(f"s_lshl_b32 s{12+j}, s9, 15")
        a(f"s_add_u32 s{12+j}, s{12+j}, {WS_W13}")
        a("s_lshl_b32 s9, s9, 7")
        a(f"s_add_u32 s9, s9, {WS_CS}")
        a(f"buffer_load_dwordx4 {vr(CS+16*j,4)}, v5, s[20:23], s9 offen")
        a(f"buffer_load_dwordx4 {vr(CS+16*j+4,4)}, v5, s[20:23], s9 offen offset:16")
        a(f"buffer_load_dwordx4 {vr(CS+16*j+8,4)}, v5, s[20:23], s9 offen offset:64")
        a(f"buffer_load_dwordx4 {vr(CS+16*j+12,4)}, v5, s[20:23], s9 offen offset:80")
    a("s_lshl_b32 s10, s5, 15")
    a(f"s_add_u32 s10, s10, {WS_H}")
    a("s_add_u32 s11, s10, 32768")
    zero_regs(a, ACC, 96)
    a("s_waitcnt vmcnt(0)")
    for i in range(2):
        b = ST + 16*i
        for p in range(1, 8):
            a(f"v_add_f32 v{b}, v{b}, v{b+2*p}")
            a(f"v_add_f32 v{b+1}, v{b+1}, v{b+2*p+1}")
        a(f"v_mov_b32 v{b+2}, v{b}")
        a(f"v_mov_b32 v{b+3}, v{b+1}")
        a("s_nop 1")
        a(f"v_permlane32_swap_b32 v{b+2}, v{b}")
        a(f"v_permlane32_swap_b32 v{b+3}, v{b+1}")
        a("s_nop 1")
        a(f"v_add_f32 v{40+2*i}, v{b}, v{b+2}")
        a(f"v_add_f32 v{41+2*i}, v{b+1}, v{b+3}")
        ln_finish(a, 40+2*i, 41+2*i, 44)
        a(f"v_mul_f32 v{40+2*i}, v{40+2*i}, v{41+2*i}")
    gemm_direct.FB = 208
    gemm_direct(a, 32, [10, 11], [12, 13, 14], accs, "TTT", 20, 20, 3, depth=2)
    a(f"s_mov_b32 s15, {hex(f2u(-LOG2E))}")
    for j in range(3):
        if j > 0:
            a(f"s_add_u32 s9, s4, {j}")
            a("s_cmp_ge_u32 s9, 86")
            a("s_cbranch_scc1 L_up_end")
        for i in range(2):
            c = accs[i][j]
            for r in range(16):
                a(f"v_mul_f32 v46, v{40+2*i}, v{CS+16*j+r}")
                a(f"v_fma_f32 v{c+r}, v{c+r}, v{41+2*i}, -v46")
            for r in range(8):
                a(f"v_mul_f32 v46, s15, v{c+r}")
                a("v_exp_f32 v46, v46")
                a("s_nop 0")
                a("v_add_f32 v46, 1.0, v46")
                a("v_rcp_f32 v46, v46")
                a(f"v_mul_f32 v{c+r}, v{c+r}, v{c+8+r}")
                a(f"v_mul_f32 v{c+r}, v{c+r}, v46")
            pack8(a, c+8, c)
            a(f"s_add_u32 s8, s5, {i}")
            a("s_mul_i32 s8, s8, 86")
            a("s_add_u32 s8, s8, s4")
            a(f"s_add_u32 s8, s8, {j}")
            a("s_lshl_b32 s8, s8, 10")
            a(f"s_add_u32 s8, s8, {WS_ACT}")
            a(f"buffer_store_dwordx4 {vr(c+8,4)}, v3, s[20:23], s8 offen")
    a("L_up_end:")
    prof_end(a)
    return name, 240, 256, 0, kernel_desc(name, 248)

def gen_down(a):
    name = "down_kernel"
    kernel_begin(a, name)
    prof_begin(a)
    a("s_cmp_ge_u32 s2, 256")
    a("s_cbranch_scc1 L_dn_end")
    a(f"s_load_dwordx2 s[18:19], s[0:1], {KA_WS}")
    a(f"s_load_dwordx2 s[16:17], s[0:1], {KA_OUT}")
    lane_setup(a)
    a("s_waitcnt lgkmcnt(0)")
    srd(a, 20, 18, WS_END)
    srd(a, 24, 16, 2048*512*2)
    a("s_and_b32 s4, s2, 7")
    a("s_lshl_b32 s4, s4, 1")
    a("s_and_b32 s6, s3, 1")
    a("s_add_u32 s4, s4, s6")
    a("s_lshr_b32 s5, s2, 3")
    a("s_lshl_b32 s5, s5, 1")
    a("s_lshr_b32 s6, s3, 1")
    a("s_add_u32 s5, s5, s6")
    a("v_lshlrev_b32 v3, 4, v1")
    a("s_lshl_b32 s8, s5, 5")
    a("s_lshl_b32 s9, s4, 1")
    a("s_add_u32 s8, s8, s9")
    a("s_lshl_b32 s8, s8, 10")
    a(f"s_add_u32 s8, s8, {WS_H}")
    a("buffer_load_dwordx4 v[8:11], v3, s[20:23], s8 offen")
    a("buffer_load_dwordx4 v[12:15], v3, s[20:23], s8 offen offset:1024")
    a(f"s_mul_i32 s8, s5, {86*1024}")
    a(f"s_add_u32 s8, s8, {WS_ACT}")
    a(f"s_mul_i32 s9, s4, {86*1024}")
    a(f"s_add_u32 s9, s9, {WS_W2}")
    zero_regs(a, 16, 16)
    gemm_direct.FB = 32
    gemm_direct(a, 86, [8], [9], [[16]], "T", 20, 20, 3, depth=8)
    unpack_add(a, 16, 8, 6)
    unpack_add(a, 24, 12, 6)
    pack8(a, 32, 16); pack8(a, 36, 24)
    a("v_and_b32 v4, 31, v1")
    a("v_lshlrev_b32 v4, 10, v4")
    a("v_lshrrev_b32 v5, 5, v1")
    a("v_lshl_add_u32 v4, v5, 4, v4")
    a("s_lshl_b32 s8, s5, 15")
    a("s_lshl_b32 s9, s4, 6")
    a("s_add_u32 s10, s8, s9")
    a("buffer_store_dwordx4 v[32:35], v4, s[24:27], s10 offen")
    a("buffer_store_dwordx4 v[36:39], v4, s[24:27], s10 offen offset:32")
    a("L_dn_end:")
    prof_end(a)
    return name, 256, 256, 0, kernel_desc(name, 96)

def gen_empty(a, name, grid):
    kernel_begin(a, name)
    prof_begin(a)
    prof_end(a)
    return name, grid, 256, 0, kernel_desc(name, 8)

def build(n_empty=0):
    a = Asm()
    ks = [gen_prep(a), gen_qkv(a), gen_attn(a), gen_oproj(a), gen_up(a), gen_down(a)]
    order = list(ks)
    if n_empty:
        e = gen_empty(a, "empty_kernel", 256)
        ks.append(e)
        order += [e] * n_empty
    hdr = open("cdna_kernels/" + NAME + ".s.ref").read().split("; Override launch")[0]
    out = hdr
    for n, g, b, l, d in order:
        out += f"; @launch kernel={n} grid=({g},1,1) block=({b},1,1) lds={l}\n"
    out += '.amdgcn_target "amdgcn-amd-amdhsa--gfx950"\n.text\n'
    out += a.text()
    out += '.section .rodata,"a"\n'
    for n, g, b, l, d in ks:
        out += ".p2align 6\n" + d
    return out

if __name__ == "__main__":
    Prof.on = "prof" in sys.argv
    Prof.dbg = "dbg" in sys.argv
    n_empty = int(sys.argv[2]) if len(sys.argv) > 2 and sys.argv[2].isdigit() else 0
    open(sys.argv[1], "w").write(build(n_empty))
```

```python
import re, copy, struct

def vr(b, n=1): return f"v{b}" if n == 1 else f"v[{b}:{b+n-1}]"
def sr(b, n=1): return f"s{b}" if n == 1 else f"s[{b}:{b+n-1}]"
def f2u(x): return struct.unpack("<I", struct.pack("<f", x))[0]
def fh(x): return hex(f2u(x))

TRANS = ("v_exp_f32", "v_log_f32", "v_rcp_f32", "v_rsq_f32", "v_sqrt_f32", "v_sin_f32", "v_cos_f32")
RE_V = re.compile(r"^-?\|?v(\d+)\|?$|^-?\|?v\[(\d+):(\d+)\]\|?$")
RE_S = re.compile(r"^-?\|?s(\d+)\|?$|^-?\|?s\[(\d+):(\d+)\]\|?$")

def regs(tok):
    tok = tok.strip()
    m = RE_V.match(tok)
    if m:
        if m.group(1) is not None: return {int(m.group(1))}, set()
        return set(range(int(m.group(2)), int(m.group(3)) + 1)), set()
    m = RE_S.match(tok)
    if m:
        if m.group(1) is not None: return set(), {int(m.group(1))}
        return set(), set(range(int(m.group(2)), int(m.group(3)) + 1))
    if tok == "vcc": return set(), {106, 107}
    if tok == "vcc_lo": return set(), {106}
    if tok == "vcc_hi": return set(), {107}
    if tok == "exec": return set(), {126, 127}
    if tok == "exec_lo": return set(), {126}
    if tok == "exec_hi": return set(), {127}
    if tok == "m0": return set(), {124}
    return set(), set()

class Ins:
    __slots__ = ("text", "op", "kind", "dv", "sv", "ds", "ss", "tag", "srcC", "srcAB", "wide", "dpp", "target", "passes", "n")
    def __init__(self, text, tag=None):
        self.text = text; self.tag = tag
        self.dv = set(); self.sv = set(); self.ds = set(); self.ss = set()
        self.srcC = set(); self.srcAB = set(); self.wide = False; self.dpp = False; self.target = None; self.passes = 0; self.n = 0
        t = text.split(";")[0].strip()
        if t.endswith(":"):
            self.kind = "label"; self.op = t[:-1]; return
        if t.startswith("."):
            self.kind = "dir"; self.op = t; return
        if t.startswith("@"):
            self.kind = "pseudo"; self.op = t; return
        if not t:
            self.kind = "dir"; self.op = ""; return
        sp = t.split(None, 1)
        op = self.op = sp[0]
        rest = sp[1] if len(sp) > 1 else ""
        ops = []; cur = ""; depth = 0
        for ch in rest:
            if ch in "[(": depth += 1
            if ch in "])": depth -= 1
            if ch == "," and depth == 0: ops.append(cur.strip()); cur = ""
            else: cur += ch
        if cur.strip(): ops.append(cur.strip())
        mods = ""
        if ops:
            q = ops[-1].split(None, 1)
            ops[-1] = q[0]
            mods = q[1] if len(q) > 1 else ""
        def S(i):
            v, s = regs(ops[i]); self.sv |= v; self.ss |= s; return v
        def D(i):
            v, s = regs(ops[i]); self.dv |= v; self.ds |= s; return v
        if op.startswith("v_mfma"):
            self.kind = "mfma"; D(0); self.srcAB = S(1) | S(2); self.srcC = S(3); self.passes = 8 if "32x32" in op else 4
        elif op.startswith("v_smfmac"):
            self.kind = "mfma"; d = D(0); self.srcAB = S(1) | S(2) | S(3); self.sv |= d; self.srcC = set(d); self.passes = 16 if "32x32" in op else 8
        elif op.startswith("v_"):
            self.kind = "trans" if op.replace("_e32", "").replace("_e64", "") in TRANS else "valu"
            if op.startswith("v_permlane"):
                D(0); D(1); S(0); S(1); self.dpp = True
            elif op.startswith("v_readfirstlane") or op.startswith("v_readlane"):
                D(0); [S(i) for i in range(1, len(ops))]
            elif op.startswith("v_cmp"):
                assert not op.startswith("v_cmpx")
                D(0); [S(i) for i in range(1, len(ops))]
            else:
                D(0); [S(i) for i in range(1, len(ops))]
                if op.startswith(("v_fmac", "v_mac", "v_dot2c", "v_writelane")): S(0)
                if op.startswith("v_cndmask") and len(ops) == 3: self.ss |= {106, 107}
                if "_co_" in op: raise NotImplementedError(op)
            if any(k in mods for k in ("quad_perm", "row_", "wave_")):
                self.dpp = True
                if "bound_ctrl" not in mods or "row_mask" in mods or "bank_mask" in mods: S(0)
        elif op.startswith("buffer_load"):
            if re.search(r"\blds\b", mods):
                self.kind = "dma"; [S(i) for i in range(len(ops))]; self.ss |= {124}
            else:
                self.kind = "vload"; D(0); [S(i) for i in range(1, len(ops))]
        elif op.startswith("buffer_store") or op.startswith("buffer_atomic"):
            self.kind = "vstore"; [S(i) for i in range(len(ops))]
            self.wide = op.endswith("x4") or op.endswith("x3")
            if self.wide: self.srcC = regs(ops[0])[0]
        elif op.startswith("ds_read"):
            self.kind = "dsr"; D(0); [S(i) for i in range(1, len(ops))]
        elif op.startswith("ds_"):
            self.kind = "dsw"; [S(i) for i in range(len(ops))]
        elif op == "s_waitcnt":
            self.kind = "wait"
        elif op == "s_nop":
            self.kind = "nop"; self.n = int(ops[0], 0) + 1
        elif op.startswith("s_cbranch") or op == "s_branch":
            self.kind = "branch"; self.target = ops[0]
        elif op == "s_barrier": self.kind = "barrier"
        elif op == "s_endpgm": self.kind = "end"
        elif op.startswith(("s_load", "s_memtime", "s_memrealtime", "s_buffer_load")):
            self.kind = "smem"; D(0); [S(i) for i in range(1, len(ops))]
        elif op.startswith("s_"):
            self.kind = "salu"
            if op.startswith(("s_cmp", "s_setprio", "s_sleep", "s_bitcmp", "s_setreg")):
                [S(i) for i in range(len(ops))]
            else:
                D(0); [S(i) for i in range(1, len(ops))]
                if "saveexec" in op: self.ds |= {126, 127}
        else:
            raise ValueError("unknown instr: " + text)

class State:
    def __init__(self):
        self.vm = []
        self.lg = []
        self.slot = 0
        self.valu_w = {}
        self.trans_w = {}
        self.mfma_w = {}
        self.mfma_c = {}
        self.valu_sw = {}
        self.m0_w = -99
        self.store_d = {}
    def rebase(self, slot):
        d = slot - self.slot
        self.slot = slot
        for m in (self.valu_w, self.trans_w, self.valu_sw, self.store_d):
            for k in m: m[k] += d
        for m in (self.mfma_w, self.mfma_c):
            for k in m: m[k] = (m[k][0] + d,) + m[k][1:]
        self.m0_w += d
    def prune(self):
        for m in (self.valu_w, self.trans_w, self.valu_sw, self.store_d):
            for k in [k for k, v in m.items() if self.slot - v > 30]: del m[k]
        for m in (self.mfma_w, self.mfma_c):
            for k in [k for k, v in m.items() if self.slot - v[0] > 30]: del m[k]
    def merge(self, o, where):
        o = copy.deepcopy(o); o.rebase(self.slot)
        for name in ("vm", "lg"):
            a, b = getattr(self, name), getattr(o, name)
            if [x[0] for x in a] != [x[0] for x in b]:
                l, s = (a, b) if len(a) >= len(b) else (b, a)
                if [x[0] for x in l[len(l)-len(s):]] == [x[0] for x in s] and (len(s) == 0 or True):
                    setattr(self, name, list(l))
                else:
                    raise RuntimeError(f"pending {name} mismatch at {where}: {a} vs {b}")
        for m, n in ((self.valu_w, o.valu_w), (self.trans_w, o.trans_w), (self.valu_sw, o.valu_sw), (self.store_d, o.store_d)):
            for k, v in n.items(): m[k] = max(m.get(k, -99), v)
        for m, n in ((self.mfma_w, o.mfma_w), (self.mfma_c, o.mfma_c)):
            for k, v in n.items():
                if k not in m or m[k][0] < v[0]: m[k] = v
        self.m0_w = max(self.m0_w, o.m0_w)

MF_D = {4: 8, 8: 12, 16: 20}
MF_CO = {4: 6, 8: 10, 16: 18}
MF_WAR = {4: 3, 8: 7, 16: 15}

class Asm:
    def __init__(self):
        self.ins = []
        self.uid = 0
        self.stats = {"nop": 0, "wait": 0}
    def __call__(self, s, tag=None):
        for l in s.split("\n"):
            l = l.strip()
            if l: self.ins.append(Ins(l, tag))
    def c(self, s): self.ins.append(Ins("; " + s))
    def label(self, base):
        self.uid += 1
        return f"L_{base}_{self.uid}"
    def waitvm(self, tag=None): self(f"@waitvm {tag if tag is not None else '*'}")
    def waitlg(self, tag=None): self(f"@waitlg {tag if tag is not None else '*'}")

    def finalize(self):
        out = []
        st = State()
        saved = {}
        seen = set()
        live = True
        def emit(t):
            out.append(t if (t.endswith(":") or t.startswith(".")) else "    " + t)
        def do_wait(vm=None, lg=None):
            parts = []
            if vm is not None:
                vm = min(vm, 63); parts.append(f"vmcnt({vm})"); st.vm = st.vm[len(st.vm)-vm:] if vm < len(st.vm) and vm > 0 else ([] if vm == 0 else st.vm)
            if lg is not None:
                lg = min(lg, 15); parts.append(f"lgkmcnt({lg})"); st.lg = st.lg[len(st.lg)-lg:] if lg < len(st.lg) and lg > 0 else ([] if lg == 0 else st.lg)
            emit("s_waitcnt " + " ".join(parts)); st.slot += 1; self.stats["wait"] += 1
        for x in self.ins:
            k = x.kind
            if k == "dir":
                emit(x.text)
                if x.text.startswith(".p2align 8"):
                    st = State(); live = True
                continue
            if k == "label":
                seen.add(x.op)
                if x.op in saved:
                    ss = saved.pop(x.op)
                    if not live:
                        base = st.slot
                        st = copy.deepcopy(ss[0]); ss = ss[1:]
                    for o in ss: st.merge(o, x.op)
                elif not live:
                    st = State()
                live = True
                emit(x.text); continue
            if k == "pseudo":
                cmd, tag = x.op.split()
                q = st.vm if cmd == "@waitvm" else st.lg
                idx = [i for i, p in enumerate(q) if tag == "*" or p[1] == tag]
                if idx:
                    n = len(q) - 1 - idx[-1]
                    if cmd == "@waitvm": do_wait(vm=n)
                    else: do_wait(lg=n)
                continue
            if k == "wait":
                mv = re.search(r"vmcnt\((\d+)\)", x.text); ml = re.search(r"lgkmcnt\((\d+)\)", x.text)
                do_wait(int(mv.group(1)) if mv else None, int(ml.group(1)) if ml else None)
                continue
            touch = x.sv | x.dv
            nv = nl = None
            for i, p in enumerate(st.vm):
                hit = p[0] & (x.sv if k == "vload" else touch)
                if hit: nv = len(st.vm) - 1 - i
            for i, p in enumerate(st.lg):
                hit = p[0] & (x.sv if k == "dsr" else touch)
                if hit: nl = len(st.lg) - 1 - i
            if nv is not None or nl is not None: do_wait(nv, nl)
            need = 0
            def req(slot, n):
                nonlocal need
                need = max(need, n - (st.slot - slot - 1))
            isv = k in ("valu", "trans")
            if k == "mfma":
                for r in x.sv:
                    if r in st.valu_w: req(st.valu_w[r], 2)
                for r in x.srcAB:
                    if r in st.mfma_w: req(st.mfma_w[r][0], MF_D[st.mfma_w[r][1]])
                for r in x.srcC:
                    if r in st.mfma_w:
                        s0, p0, d0 = st.mfma_w[r]
                        if not (d0 == frozenset(x.srcC) and p0 == x.passes): req(s0, MF_CO[p0])
                for r in x.dv - x.srcC:
                    if r in st.mfma_w and st.mfma_w[r][1] != x.passes: req(st.mfma_w[r][0], MF_CO[st.mfma_w[r][1]])
            else:
                for r in touch:
                    if r in st.mfma_w: req(st.mfma_w[r][0], MF_D[st.mfma_w[r][1]])
            if isv:
                for r in x.dv:
                    if r in st.mfma_c: req(st.mfma_c[r][0], MF_WAR[st.mfma_c[r][1]])
                    if r in st.store_d: req(st.store_d[r], 2)
                for r in x.sv:
                    if r in st.trans_w and k != "trans": req(st.trans_w[r], 1)
                    if x.dpp and r in st.valu_w: req(st.valu_w[r], 2)
                    if x.op.startswith(("v_readfirstlane", "v_readlane")) and r in st.valu_w: req(st.valu_w[r], 1)
                for r in x.ss:
                    if r in st.valu_sw: req(st.valu_sw[r], 4 if x.op.startswith(("v_readlane", "v_writelane")) else 2)
            if k in ("vload", "dsr"):
                for r in x.dv:
                    if r in st.store_d: req(st.store_d[r], 1)
            if k in ("vload", "vstore", "dma"):
                for r in x.ss:
                    if r in st.valu_sw: req(st.valu_sw[r], 5)
            if k in ("vload", "vstore", "dma", "dsr", "dsw"):
                for r in x.sv:
                    if r in st.trans_w: req(st.trans_w[r], 1)
            if k == "dma": req(st.m0_w, 1)
            while need > 0:
                n = min(need, 16)
                emit(f"s_nop {n-1}"); st.slot += n; need -= n; self.stats["nop"] += n
            emit(x.text)
            s = st.slot
            if isv:
                for r in x.dv:
                    st.valu_w[r] = s
                    if k == "trans": st.trans_w[r] = s
                    else: st.trans_w.pop(r, None)
                    st.mfma_w.pop(r, None)
                for r in x.ds: st.valu_sw[r] = s
            elif k == "mfma":
                for r in x.dv:
                    st.mfma_w[r] = (s, x.passes, frozenset(x.dv)); st.valu_w.pop(r, None); st.trans_w.pop(r, None)
                for r in x.srcC: st.mfma_c[r] = (s, x.passes)
            elif k == "salu" or k == "smem":
                if 124 in x.ds: st.m0_w = s
                for r in x.ds: st.valu_sw.pop(r, None)
            elif k == "vload": st.vm.append((frozenset(x.dv), x.tag))
            elif k in ("vstore", "dma"):
                st.vm.append((frozenset(), x.tag))
                if x.wide:
                    for r in x.srcC: st.store_d[r] = s
            elif k == "dsr": st.lg.append((frozenset(x.dv), x.tag))
            elif k == "dsw": st.lg.append((frozenset(), x.tag))
            assert len(st.vm) <= 63, f"vmcnt overflow at {x.text}"
            if len(st.lg) > 15: st.lg = st.lg[-15:] if False else st.lg
            st.slot += x.n if k == "nop" else 1
            if k == "branch":
                st.prune()
                if x.target not in seen:
                    saved.setdefault(x.target, []).append(copy.deepcopy(st))
                if x.op == "s_branch": live = False
            if k == "end": live = False
            if s % 64 == 0: st.prune()
        assert not saved, f"unresolved labels {list(saved)}"
        return "\n".join(out) + "\n"

def kernel_begin(a, name):
    a(f".globl {name}\n.p2align 8\n.type {name},@function\n{name}:")

def kernel_desc(name, vgpr, sgpr=102, acc=None):
    if acc is None: acc = (vgpr + 3) // 4 * 4
    return f""".amdhsa_kernel {name}
  .amdhsa_next_free_vgpr {vgpr}
  .amdhsa_next_free_sgpr {sgpr}
  .amdhsa_accum_offset {acc}
  .amdhsa_group_segment_fixed_size 0
  .amdhsa_kernarg_size 80
  .amdhsa_user_sgpr_count 2
  .amdhsa_user_sgpr_kernarg_segment_ptr 1
  .amdhsa_system_sgpr_workgroup_id_x 1
.end_amdhsa_kernel
"""

def srd(a, d, base, nbytes):
    a(f"s_mov_b32 s{d}, s{base}")
    a(f"s_mov_b32 s{d+1}, s{base+1}")
    a(f"s_mov_b32 s{d+2}, {hex(nbytes)}")
    a(f"s_mov_b32 s{d+3}, 0x00020000")

PROF_OFF = 200 << 20
class Prof:
    on = False
    cyc = False
    NM = 12
def prof_begin(a):
    if Prof.on:
        a("s_memrealtime s[92:93]")
        a("s_memtime s[90:91]")
        for k in range(Prof.NM): a(f"s_mov_b32 s{64+2*k}, 0")
def prof_mark(a, k):
    if Prof.on: a(f"{'s_memtime' if Prof.cyc else 's_memrealtime'} s[{64+2*k}:{65+2*k}]")
def prof_end(a):
    if Prof.on:
        a("s_waitcnt vmcnt(0) lgkmcnt(0)")
        a("s_memrealtime s[94:95]")
        a("s_memtime s[88:89]")
        a("s_load_dwordx2 s[96:97], s[0:1], 72")
        a("s_getreg_b32 s91, hwreg(HW_REG_HW_ID)")
        a("s_getreg_b32 s93, hwreg(HW_REG_XCC_ID)")
        a("s_waitcnt lgkmcnt(0)")
        a("s_lshl_b32 s93, s93, 28")
        a("s_and_b32 s91, s91, 0xfffffff")
        a("s_or_b32 s91, s91, s93")
        a("s_sub_u32 s90, s88, s90")
        a(f"s_add_u32 s96, s96, {hex(PROF_OFF)}")
        a("s_addc_u32 s97, s97, 0")
        a(f"s_mov_b32 s98, {1 << 18}")
        a("s_mov_b32 s99, 0x00020000")
        a("s_mov_b64 exec, 1")
        a("s_lshl_b32 s88, s2, 10")
        a("s_lshl_b32 s89, s3, 6")
        a("s_add_u32 s88, s88, s89")
        a("v_mov_b32 v0, 0")
        a("v_mov_b32 v4, s92\nv_mov_b32 v5, s94\nv_mov_b32 v6, s90\nv_mov_b32 v7, s91")
        a("buffer_store_dwordx4 v[4:7], v0, s[96:99], s88 offen")
        for h in range(3):
            for k in range(4): a(f"v_mov_b32 v{8+4*h+k}, s{64+8*h+2*k}")
            a(f"buffer_store_dwordx4 v[{8+4*h}:{11+4*h}], v0, s[96:99], s88 offen offset:{16+16*h}")
    a("s_endpgm")
```

```python
import sys
from asm2 import *

NAME = "sequential_preLN__softmax_full_mha__glu_gated_swiglu__prompt"
KB = 1024; MB = 1 << 20
WS_EPOCH = 0
WS_IDS  = 4 * KB
WS_FQKV = 8 * KB
WS_FO   = 16 * KB
WS_FH   = 24 * KB
WS_FA   = 32 * KB
WS_ST1  = 64 * KB
WS_ST2  = 128 * KB
WS_Q    = 1 * MB
WS_KV   = 4 * MB
WS_O    = 8 * MB
WS_H    = 10 * MB
WS_ACT  = 12 * MB
WS_END  = 18 * MB
LOG2E = 1.4426950408889634
L_W    = 96 * KB
L_MISC = 156 * KB
L_CS1  = L_MISC
L_CS13 = L_MISC + 512
L_ST2  = L_MISC + 1024
L_RS   = L_MISC + 2048
L_STG  = 128 * KB
L_REDC = 96 * KB
L_REDE = 0
LDS_BYTES = 160 * KB
SX, SWQ, SWS, SWO, SW1, SW3, SW2, SOUT = 4, 8, 12, 16, 20, 24, 28, 32
sT, sG, sM, sFAST, sID, sCNT = 36, 37, 38, 39, 40, 41
sP, sTB, sHEAD, sTT, sTC, sCS, sRES = 56, 57, 58, 59, 60, 61, 62
POLL_LIMIT = 1 << 17
OPT = dict(stop=99, fast=False, la=2, rot=1, sj=7)

def R(d, n=4): return sr(d, n)

def tr_addr(a, d, t, row_shift=6, cg_mul=32):
    a(f"v_lshrrev_b32 v{d}, 5, v1")
    a(f"v_lshlrev_b32 v{d}, {row_shift+3}, v{d}")
    a(f"v_bfe_u32 v{t}, v1, 2, 2")
    a(f"v_lshl_add_u32 v{d}, v{t}, {row_shift}, v{d}")
    a(f"v_bfe_u32 v{t}, v1, 4, 1")
    a(f"v_mul_u32_u24 v{t}, {cg_mul}, v{t}")
    a(f"v_add_u32 v{d}, v{d}, v{t}")
    a(f"v_and_b32 v{t}, 1, v1")
    a(f"v_lshl_add_u32 v{d}, v{t}, 4, v{d}")
    a(f"v_bfe_u32 v{t}, v1, 1, 1")
    a(f"v_lshl_add_u32 v{d}, v{t}, 3, v{d}")

def pi_lane(a, d, t):
    a(f"v_and_b32 v{d}, 0x33, v1")
    a(f"v_bfe_u32 v{t}, v1, 2, 1")
    a(f"v_lshl_add_u32 v{d}, v{t}, 3, v{d}")
    a(f"v_bfe_u32 v{t}, v1, 3, 1")
    a(f"v_lshl_add_u32 v{d}, v{t}, 2, v{d}")

def pack8(a, d, s):
    for j in range(4): a(f"v_cvt_pk_bf16_f32 v{d+j}, v{s+2*j}, v{s+2*j+1}")

def mfma(a, d, A, B, c=None):
    a(f"v_mfma_f32_32x32x16_bf16 {vr(d,16)}, {vr(A,4)}, {vr(B,4)}, {vr(d,16) if c is None else c}")

def tr2(a, d, addr, off, addr2=None, tag=None):
    a(f"ds_read_b64_tr_b16 {vr(d,2)}, v{addr} offset:{off}", tag)
    if addr2 is None: a(f"ds_read_b64_tr_b16 {vr(d+2,2)}, v{addr} offset:{off+256}", tag)
    else: a(f"ds_read_b64_tr_b16 {vr(d+2,2)}, v{addr2} offset:{off}", tag)

def exec_lo32(a): a("s_mov_b64 exec, 0xffffffff")
def exec_all(a): a("s_mov_b64 exec, -1")

def flavored(a, lines, tag=None):
    if not OPT["fast"]:
        for l in lines: a(l + " sc1", tag)
        return
    lf, ld = a.label("fast"), a.label("fdone")
    a(f"s_cmp_lg_u32 s{sFAST}, 0")
    a(f"s_cbranch_scc1 {lf}")
    for l in lines: a(l + " sc1", tag)
    a(f"s_branch {ld}")
    a(f"{lf}:")
    for l in lines: a(l, tag)
    a(f"{ld}:")

def flag_store(a, soff, vt, local=True):
    a(f"v_mov_b32 v{vt}, s{sT}")
    a("s_mov_b64 exec, 1")
    l = f"buffer_store_dword v{vt}, off, {R(SWS)}, s{soff}"
    if local: flavored(a, [l])
    else: a(l + " sc1")
    exec_all(a)

def poll(a, load, checks, first_issued=False):
    lp, dn, ck = a.label("poll"), a.label("pdone"), a.label("pchk")
    a(f"s_mov_b32 s{sCNT}, {POLL_LIMIT}")
    if first_issued: a(f"s_branch {ck}")
    a(f"{lp}:")
    load()
    a("s_waitcnt vmcnt(0)")
    if first_issued: a(f"{ck}:")
    a(f"v_cmp_ne_u32 vcc, s{sT}, v{checks[0]}")
    for c in checks[1:]:
        a(f"v_cmp_ne_u32 s[42:43], s{sT}, v{c}")
        a("s_or_b64 vcc, vcc, s[42:43]")
    a(f"s_cbranch_vccz {dn}")
    a(f"s_sub_u32 s{sCNT}, s{sCNT}, 1")
    a(f"s_cbranch_scc0 {lp}")
    a(f"{dn}:")

def hilo(a, d, src, t, dup):
    a(f"v_and_b32 v{t}, 0xffff0000, v{src}")
    a(f"v_sub_f32 v{t+1}, v{src}, v{t}")
    if dup:
        a(f"v_cvt_pk_bf16_f32 v{d}, v{t}, v{t}")
        a(f"v_cvt_pk_bf16_f32 v{d+1}, v{t+1}, v{t+1}")
    else:
        a(f"v_cvt_pk_bf16_f32 v{d}, v{t}, v{t+1}")
        a(f"v_cvt_pk_bf16_f32 v{d+1}, v{t}, v{t+1}")
    a(f"v_mov_b32 v{d+2}, 0")
    a(f"v_mov_b32 v{d+3}, 0")

def allreduce32(a, v, t):
    for m in ("quad_perm:[1,0,3,2]", "quad_perm:[2,3,0,1]", "row_half_mirror", "row_mirror"):
        a(f"v_add_f32 v{v}, v{v}, v{v} {m} row_mask:0xf bank_mask:0xf")
    a(f"v_mov_b32 v{t}, v{v}")
    a(f"v_permlane16_swap_b32 v{t}, v{v}")
    a(f"v_add_f32 v{v}, v{v}, v{t}")

def ids_check(a, v):
    a(f"v_cmp_ne_u32 vcc, s{sID}, v{v}")
    a("s_cmp_eq_u64 vcc, 0")
    a(f"s_cselect_b32 s{sFAST}, 1, 0")

def prologue(a):
    a("s_cmp_ge_u32 s2, 256")
    a("s_cbranch_scc1 L_exit")
    a("s_load_dwordx16 s[40:55], s[0:1], 0")
    a("s_load_dwordx2 s[62:63], s[0:1], 72")
    prof_begin(a)
    a("v_and_b32 v1, 63, v0")
    a("v_lshrrev_b32 v2, 6, v0")
    a("v_readfirstlane_b32 s3, v2")
    a("v_lshlrev_b32 v2, 4, v1")
    a(f"s_and_b32 s{sG}, s2, 7")
    a(f"s_lshr_b32 s{sM}, s2, 3")
    a(f"s_lshr_b32 s{sP}, s{sM}, 4")
    a(f"s_lshl_b32 s{sTB}, s{sG}, 1")
    a(f"s_add_u32 s{sP}, s{sP}, s{sTB}")
    a(f"s_and_b32 s{sTB}, s{sM}, 15")
    a(f"s_bfe_u32 s{sHEAD}, s{sM}, 0x10003")
    a(f"s_lshl_b32 s{sTT}, s{sP}, 1")
    a(f"s_add_u32 s{sHEAD}, s{sHEAD}, s{sTT}")
    a(f"s_and_b32 s{sCS}, s{sM}, 7")
    a(f"s_mov_b32 s{sFAST}, 0")

def prologue2(a):
    a("s_waitcnt lgkmcnt(0)")
    a("s_load_dword s36, s[62:63], 0")
    srd(a, SX, 40, 2048*1024)
    srd(a, SWQ, 42, 512*3072)
    srd(a, SWS, 62, WS_END)
    srd(a, SWO, 44, 512*1024)
    srd(a, SW1, 48, 512*2752)
    srd(a, SW3, 50, 512*2752)
    srd(a, SW2, 52, 1376*1024)
    srd(a, SOUT, 54, 2048*1024)

def tag_ready(a):
    a("s_waitcnt lgkmcnt(0)")
    a(f"s_add_u32 s63, s{sT}, 1")
    a(f"s_mul_i32 s{sT}, s63, 0x9E3779B1")
    a(f"s_getreg_b32 s{sID}, hwreg(HW_REG_XCC_ID)")
    a(f"s_lshl_b32 s{sID}, s{sID}, 28")
    a(f"s_and_b32 s42, s{sT}, 0x0fffffff")
    a(f"s_or_b32 s{sID}, s{sID}, s42")

def phaseA_mfma(a):
    AQ, AK, AV, XF, WF, VXA, VWA, G, TM = 16, 32, 48, 144, 156, 4, 8, 96, 104
    CSF, MF, RSB = 112, 124, 128
    a("v_and_b32 v9, 31, v1")
    a("v_lshrrev_b32 v10, 5, v1")
    a("v_bfe_u32 v11, v1, 1, 3")
    a("v_xor_b32 v11, v11, v10")
    a("v_lshlrev_b32 v11, 4, v11")
    a("v_lshl_add_u32 v11, v9, 7, v11")
    a(f"s_mul_i32 s96, s3, {24*KB}")
    a("v_add_u32 v11, s96, v11")
    for k in range(4): a(f"v_xor_b32 v{VXA+k}, {32*k}, v11")
    tr_addr(a, VWA, 11)
    a(f"v_add_u32 v{VWA}, {L_W}, v{VWA}")
    a(f"s_lshl_b32 s96, s{sTB}, 7")
    a(f"s_lshl_b32 s97, s{sP}, 3")
    a("s_add_u32 s96, s96, s97")
    a("s_lshl_b32 s97, s3, 1")
    a("s_add_u32 s96, s96, s97")
    a("v_add_u32 v12, s96, v10")
    a("v_lshlrev_b32 v11, 10, v12")
    a("v_lshl_add_u32 v11, v9, 4, v11")
    a("v_lshlrev_b32 v12, 4, v12")
    prologue2(a)
    a(f"buffer_load_dwordx4 v[16:19], v11, {R(SX)}, 0 offen")
    a(f"buffer_load_dwordx4 v[20:23], v11, {R(SX)}, 0 offen offset:512")
    tag_ready(a)
    a(f"s_lshl_b32 s42, s{sG}, 7")
    a(f"s_lshl_b32 s43, s{sM}, 2")
    a("s_add_u32 s42, s42, s43")
    a(f"s_add_u32 s42, s42, {WS_IDS}")
    a(f"v_mov_b32 v13, s{sID}")
    a("s_mov_b64 exec, 1")
    a(f"buffer_store_dword v13, off, {R(SWS)}, s42 sc1")
    exec_all(a)
    for j in range(8):
        a(f"v_lshlrev_b32 v{32+2*j}, 16, v{16+j}")
        a(f"v_and_b32 v{33+2*j}, 0xffff0000, v{16+j}")
    for j in range(8): a(f"v_add_f32 v{48+j}, v{32+2*j}, v{33+2*j}")
    for j in range(4): a(f"v_add_f32 v{48+j}, v{48+j}, v{52+j}")
    a("v_add_f32 v48, v48, v50\nv_add_f32 v49, v49, v51\nv_add_f32 v48, v48, v49")
    allreduce32(a, 48, 49)
    a(f"v_mul_f32 v56, {fh(-1/512)}, v48")
    for j in range(16): a(f"v_add_f32 v{32+j}, v{32+j}, v56")
    a("v_mul_f32 v48, v32, v32\nv_mul_f32 v49, v33, v33")
    for j in range(2, 16): a(f"v_fmac_f32 v{48+(j&1)}, v{32+j}, v{32+j}")
    a("v_add_f32 v48, v48, v49")
    allreduce32(a, 48, 49)
    a(f"v_mov_b32 v58, {fh(1e-5)}")
    a(f"v_fmac_f32 v58, {fh(1/512)}, v48")
    a("v_rsq_f32 v58, v58")
    a(f"v_mov_b32 v57, s{sT}\nv_mov_b32 v59, s{sT}")
    a("s_mov_b32 exec_lo, 1\ns_mov_b32 exec_hi, 1")
    a(f"s_mov_b32 s42, {WS_ST1}")
    a(f"buffer_store_dwordx4 v[56:59], v12, {R(SWS)}, s42 offen sc1")
    exec_all(a)
    a(f"s_lshl_b32 s44, s{sTB}, 2")
    a("s_add_u32 s44, s44, s3")
    a("s_lshl_b32 s45, s44, 9")
    a(f"s_add_u32 s45, s45, {WS_ST1}")
    a("v_lshlrev_b32 v12, 4, v9")
    a("v_lshlrev_b32 v13, 2, v9")
    a(f"s_lshl_b32 s46, s{sG}, 7")
    a(f"s_add_u32 s46, s46, {WS_IDS}")
    for pn in range(3): a(f"v_mov_b32 v{TM+4+pn}, 0")
    a("s_mul_i32 s47, s3, 128")
    a(f"s_add_u32 s47, s47, {L_RS}")
    a("v_add_u32 v14, s47, v13")
    a("v_lshl_add_u32 v15, v10, 4, s47")
    def ldst(): a(f"buffer_load_dwordx4 {vr(G,4)}, v12, {R(SWS)}, s45 offen sc1")
    def reads(n, part):
        c, k, b = n >> 2, n & 3, n % 3
        if part == 0: a(f"ds_read_b128 {vr(XF+4*b,4)}, v{VXA+k} offset:{(c%6)*4096}")
        tr2(a, WF+12*b+4*part, VWA, (c%5)*12*KB + (k*3+part)*KB)
    prof_mark(a, 0)
    a("s_barrier")
    prof_mark(a, 1)
    for p in range(3): reads(0, p)
    for p in range(3): reads(1, p)
    for n in range(32):
        b = n % 3
        if (n & 3) == 2 and n < 30: a("s_barrier")
        if n == 20:
            ldst()
            a(f"buffer_load_dword v{G+4}, v13, {R(SWS)}, s46 offen sc1")
        if n == 27:
            poll(a, ldst, [G+1, G+3], first_issued=True)
            ids_check(a, G+4)
            hilo(a, MF, G, TM, False)
            a(f"ds_write_b32 v14, v{G+2}")
            for q in range(4): a(f"ds_read_b128 {vr(RSB+4*q,4)}, v15 offset:{32*q}")
            a(f"v_mul_f32 v{G+1}, {fh(0.25*LOG2E)}, v{G+2}")
        if n == 30:
            a.waitlg()
            a("s_barrier")
            exec_lo32(a)
            a(f"v_add_u32 v13, {L_CS1}, v13")
            for pn in range(3): a(f"ds_read_b32 v{TM+4+pn}, v13 offset:{128*pn}")
            exec_all(a)
        for p in range(3):
            if n < 30: reads(n+2, p)
            c0 = "0" if n == 0 else None
            if p < 2: mfma(a, AQ+16*p, WF+12*b+4*p, XF+4*b, c0)
            else: mfma(a, AV, XF+4*b, WF+12*b+8, c0)
    prof_mark(a, 2)
    for pn in range(3): hilo(a, CSF+4*pn, TM+4+pn, TM, True)
    mfma(a, AQ, CSF, MF); mfma(a, AK, CSF+4, MF); mfma(a, AV, MF, CSF+8)
    pi_lane(a, 4, 5)
    a("v_lshlrev_b32 v4, 4, v4")
    a("v_and_b32 v5, 15, v1\nv_lshlrev_b32 v5, 4, v5")
    a("v_lshl_add_u32 v5, v10, 8, v5")
    a("v_bfe_u32 v6, v1, 4, 1")
    a("v_lshl_add_u32 v5, v6, 17, v5")
    a(f"s_lshl_b32 s42, s{sP}, 7")
    a("s_add_u32 s42, s42, s44")
    a("s_lshl_b32 s43, s42, 11")
    a("s_lshl_b32 s42, s42, 10")
    a(f"s_add_u32 s42, s42, {WS_Q}")
    a(f"s_add_u32 s43, s43, {WS_KV}")
    a(f"s_add_u32 s45, s42, {64*KB}")
    a(f"s_add_u32 s46, s43, {128*KB}")
    for r in range(16): a(f"v_mul_f32 v{AK+r}, v{AK+r}, v{G+2}")
    pack8(a, 72, AK); pack8(a, 76, AK+8)
    for r in range(16): a(f"v_mul_f32 v{AV+r}, v{AV+r}, v{RSB+r}")
    pack8(a, 80, AV); pack8(a, 84, AV+8)
    for r in range(16): a(f"v_mul_f32 v{AQ+r}, v{AQ+r}, v{G+1}")
    pack8(a, 64, AQ); pack8(a, 68, AQ+8)
    flavored(a, [f"buffer_store_dwordx4 v[72:75], v4, {R(SWS)}, s43 offen",
                 f"buffer_store_dwordx4 v[76:79], v4, {R(SWS)}, s46 offen",
                 f"buffer_store_dwordx4 v[80:83], v5, {R(SWS)}, s43 offen offset:1024",
                 f"buffer_store_dwordx4 v[84:87], v5, {R(SWS)}, s43 offen offset:1536",
                 f"buffer_store_dwordx4 v[64:67], v2, {R(SWS)}, s42 offen",
                 f"buffer_store_dwordx4 v[68:71], v2, {R(SWS)}, s45 offen"])
    a(f"s_lshl_b32 s42, s{sP}, 8")
    a("s_lshl_b32 s43, s44, 2")
    a("s_add_u32 s42, s42, s43")
    a(f"s_add_u32 s42, s42, {WS_FQKV}")

def phaseA_mfma_pub(a):
    a.waitvm()
    flag_store(a, 42, 3)
    prof_mark(a, 3)

def phaseA_helper(a):
    VXE, VXO, VW, VWA, ONES, CS, WF = 4, 5, 6, 8, 12, 16, 72
    a("s_sub_u32 s100, s3, 4")
    a("v_lshrrev_b32 v9, 3, v1")
    a("v_lshrrev_b32 v10, 4, v1")
    a("v_and_b32 v11, 7, v1")
    a("v_xor_b32 v11, v11, v10")
    a("v_lshlrev_b32 v11, 4, v11")
    a(f"v_lshl_add_u32 v{VXE}, v9, 10, v11")
    a(f"v_xor_b32 v{VXO}, 64, v{VXE}")
    a("v_lshrrev_b32 v9, 2, v1")
    a(f"v_mul_u32_u24 v{VW}, 3072, v9")
    a("v_and_b32 v9, 3, v1")
    a(f"v_lshl_add_u32 v{VW}, v9, 4, v{VW}")
    a(f"s_lshl_b32 s96, s{sTB}, 2")
    a("s_add_u32 s96, s96, s100")
    a("s_lshl_b32 s96, s96, 15")
    a(f"s_mul_i32 s97, s100, {16*3072}")
    a(f"s_lshl_b32 s98, s{sP}, 6")
    a("s_add_u32 s97, s97, s98")
    a(f"s_mul_i32 s98, s100, {24*KB}")
    a(f"s_mul_i32 s99, s100, {3*KB}")
    a(f"s_add_u32 s99, s99, {L_W}")
    if OPT["rot"]:
        a(f"s_lshr_b32 s101, s{sM}, 2")
        a(f"s_and_b32 s101, s101, 4")
        a(f"s_add_u32 s101, s101, s{sTB}")
    else: a("s_mov_b32 s101, 0")
    prologue2(a)
    LA = OPT["la"]
    def dma(c):
        a(f"s_add_u32 s43, s101, {c}")
        a("s_and_b32 s43, s43, 7")
        a(f"s_mul_i32 s42, s43, {64*3072}")
        a(f"s_add_u32 m0, s99, {(c%5)*12*KB}")
        a(f"s_add_u32 s42, s42, s97")
        for pn in range(3):
            a(f"buffer_load_dwordx4 v{VW}, {R(SWQ)}, s42 offen offset:{pn*1024} lds", f"c{c}")
        a("s_lshl_b32 s43, s43, 7")
        a("s_add_u32 s43, s43, s96")
        for j in range(4):
            a(f"s_add_u32 m0, s98, {(c%6)*4096 + j*1024}")
            a(f"s_add_u32 s42, s43, {j*8192}")
            a(f"buffer_load_dwordx4 v{VXO if j&1 else VXE}, {R(SX)}, s42 offen lds", f"c{c}")
    for c in range(LA): dma(c)
    if OPT["stop"] == 1: prof_mark(a, 3)
    tag_ready(a)
    tr_addr(a, VWA, 11)
    a(f"v_add_u32 v{VWA}, s99, v{VWA}")
    for i in range(4): a(f"v_mov_b32 v{ONES+i}, 0x3f803f80")
    a("v_mov_b32 v16, 0\nv_mov_b32 v17, 0")
    a("s_lshl_b32 s42, s100, 9")
    a(f"s_add_u32 s42, s42, {L_MISC}")
    a("v_lshl_add_u32 v9, v1, 3, s42")
    a("ds_write_b64 v9, v[16:17]")
    a.waitlg()
    for c in range(8):
        a.waitvm(f"c{c}")
        if c == 0: prof_mark(a, 0)
        elif OPT["stop"] == 1: prof_mark(a, 3+c)
        a("s_barrier")
        if c == 0: prof_mark(a, 1)
        for pn in range(3): tr2(a, WF+4*pn, VWA, (c%5)*12*KB + pn*KB)
        if c + LA <= 7: dma(c+LA)
        for pn in range(3): mfma(a, CS+16*pn, ONES, WF+4*pn, "0" if c == 0 else None)
    a("v_and_b32 v9, 31, v1")
    a(f"v_lshlrev_b32 v9, 2, v9")
    a(f"v_add_u32 v10, {L_CS1}, v9")
    exec_lo32(a)
    for pn in range(3): a(f"ds_add_f32 v10, v{CS+16*pn} offset:{128*pn}")
    exec_all(a)
    a.waitlg()
    a("s_barrier")
    prof_mark(a, 2)
    a(f"s_lshl_b32 s42, s{sG}, 7")
    a(f"s_add_u32 s42, s42, {WS_IDS}")
    a(f"buffer_load_dword v10, v9, {R(SWS)}, s42 offen sc1")
    a(f"s_lshl_b32 s44, s{sP}, 8")
    a(f"s_add_u32 s44, s44, {WS_FQKV}")
    a("v_lshlrev_b32 v9, 2, v1")

def phaseA_helper_load(a):
    poll(a, lambda: a(f"buffer_load_dword v11, v9, {R(SWS)}, s44 offen sc1"), [11])
    prof_mark(a, 3)
    a(f"s_lshl_b32 s42, s{sHEAD}, 6")
    a(f"s_lshl_b32 s43, s{sCS}, 3")
    a("s_add_u32 s42, s42, s43")
    a("s_lshl_b32 s43, s100, 1")
    a("s_add_u32 s42, s42, s43")
    a("s_lshl_b32 s42, s42, 10")
    a(f"s_add_u32 s42, s42, {WS_Q}")
    a("s_lshl_b32 s43, s100, 11")
    a(f"s_add_u32 m0, s43, {L_STG}")
    a("s_lshl_b32 s43, s100, 12")
    for o in (0, 1024): a(f"buffer_load_dwordx4 v2, {R(SWS)}, s42 offen offset:{o} sc1 lds", "kv0")
    a(f"s_lshl_b32 s42, s{sHEAD}, 17")
    a("s_add_u32 s42, s42, s43")
    a(f"s_add_u32 s42, s42, {WS_KV}")
    for i in range(8):
        a(f"s_add_u32 m0, s43, {i*16*KB}")
        if i: a(f"s_add_u32 s42, s42, {16*KB}")
        for o in range(4): a(f"buffer_load_dwordx4 v2, {R(SWS)}, s42 offen offset:{o*1024} sc1 lds", "kv0" if i == 0 else "kv1")
    ids_check(a, 10)

Q, SA, SB, O, KF, VF = 4, 8, 24, 40, 56, 64
IDX, VK, VV, VK2, VV2, VWR0, VWR1, VST, VTR, VD1, VD3 = range(80, 91)
WO, W2, XRES, HB, VRES = 92, 156, 244, 248, 252

def attn_setup(a):
    a(f"s_lshl_b32 s{sTT}, s{sCS}, 3")
    a(f"s_add_u32 s{sTT}, s{sTT}, s3")
    a(f"s_lshr_b32 s{sTC}, s{sM}, 3")
    a(f"s_lshl_b32 s{sTC}, s{sTC}, 1")
    a(f"s_lshl_b32 s50, s{sG}, 3")
    a(f"s_add_u32 s{sTC}, s{sTC}, s50")
    a("s_and_b32 s50, s3, 1")
    a(f"s_add_u32 s{sTC}, s{sTC}, s50")
    a(f"v_mov_b32 v{IDX}, 0xdddddddd")
    a(f"v_mov_b32 v{VK}, v2")
    a(f"v_add_u32 v{VK2}, 0x10000, v2")
    a(f"v_and_b32 v{VV}, 15, v1")
    a(f"v_lshlrev_b32 v{VV}, 4, v{VV}")
    a(f"v_lshrrev_b32 v{VV2}, 5, v1")
    a(f"v_lshl_add_u32 v{VV}, v{VV2}, 8, v{VV}")
    a(f"v_add_u32 v{VV}, 1024, v{VV}")
    a(f"v_and_b32 v{VRES}, 31, v1")
    a(f"v_lshlrev_b32 v{VRES}, 10, v{VRES}")
    a(f"v_lshl_add_u32 v{VRES}, v{VV2}, 4, v{VRES}")
    a(f"v_add_u32 v{VV2}, 0x10000, v{VV}")
    a(f"s_lshl_b32 s{sRES}, s{sTC}, 15")
    a(f"s_lshl_b32 s50, s{sCS}, 7")
    a(f"s_add_u32 s{sRES}, s{sRES}, s50")
    a("s_lshr_b32 s50, s3, 1")
    a("s_lshl_b32 s50, s50, 5")
    a(f"s_add_u32 s{sRES}, s{sRES}, s50")
    a(f"v_lshrrev_b32 v{VWR0}, 2, v1")
    a(f"v_lshlrev_b32 v{VWR0}, 10, v{VWR0}")
    a(f"v_and_b32 v{VWR1}, 3, v1")
    a(f"v_lshl_add_u32 v{VWR0}, v{VWR1}, 4, v{VWR0}")
    a(f"v_xor_b32 v{VWR0}, s50, v{VWR0}")
    a(f"v_xor_b32 v{VWR1}, 64, v{VWR0}")
    a("s_lshl_b32 s50, s3, 10")
    a(f"s_add_u32 s50, s50, {L_STG}")
    a(f"v_add_u32 v{VST}, s50, v2")
    tr_addr(a, VTR, VD1)
    a(f"v_add_u32 v{VTR}, s50, v{VTR}")
    a(f"v_lshrrev_b32 v{VD1}, 1, v1")
    a(f"v_xor_b32 v{VD3}, 4, v{VD1}")
    a(f"v_mul_u32_u24 v{VD1}, 2752, v{VD1}")
    a(f"v_mul_u32_u24 v{VD3}, 2752, v{VD3}")
    a("v_and_b32 v91, 1, v1")
    a(f"v_lshl_add_u32 v{VD1}, v91, 4, v{VD1}")
    a(f"v_lshl_add_u32 v{VD3}, v91, 4, v{VD3}")
    a("s_lshr_b32 s51, s3, 1")
    a("s_lshl_b32 s51, s51, 17")
    a(f"s_lshl_b32 s50, s{sCS}, 7")
    a("s_add_u32 s51, s51, s50")
    a(f"s_mul_i32 s52, s3, {11*16*KB}")
    a("s_add_u32 s52, s52, s50")
    a(f"s_mul_i32 s53, s3, {32*2752}")
    a(f"s_mul_i32 s50, s{sM}, 96")
    a("s_add_u32 s53, s53, s50")
    a("s_lshl_b32 s54, s3, 10")
    a("s_mov_b32 s48, 0x0000ffff\ns_mov_b32 s49, 0x0000ffff")

def attn_setup2(a):
    for i in range(16): a(f"v_mov_b32 v{VF+i}, 0")
    for i in range(16): a(f"v_mov_b32 v{O+i}, 0")
    a("s_mov_b32 exec_lo, 0x00110000\ns_mov_b32 exec_hi, 0x00110000")
    for i in range(16): a(f"v_mov_b32 v{VF+i}, 0x3f803f80")
    exec_all(a)

def attn_loop(a, older):
    NT = 64
    def rdK(t): a(f"ds_read_b128 {vr(KF+4*(t&1),4)}, v{VK if t < 32 else VK2} offset:{(t%32)*2048}")
    def rdV(t):
        a("s_mov_b64 exec, s[48:49]")
        for jj in range(2): a(f"ds_read_b128 {vr(VF+8*(t&1)+4*jj,4)}, v{VV if t < 32 else VV2} offset:{(t%32)*2048+512*jj}")
        exec_all(a)
    def qk(t): mfma(a, SB if t & 1 else SA, KF+4*(t&1), Q, "0")
    def pv(t, jj):
        S = SB if t & 1 else SA
        a(f"v_smfmac_f32_32x32x32_bf16 {vr(O,16)}, {vr(VF+8*(t&1)+4*jj,4)}, {vr(S+8*jj,8)}, v{IDX}")
    def wreg(f): return WO + 4*f
    def wload(f):
        if f < 16: s, srdn = 51, SWO
        else: s, srdn = 52, SW2
        a(f"buffer_load_dwordx4 {vr(wreg(f),4)}, v{VWR1 if f & 1 else VWR0}, {R(srdn)}, s{s} offen")
        if f & 1: a(f"s_add_u32 s{s}, s{s}, {16*KB}")
    def wtr(f):
        a(f"ds_write_b128 v{VST}, {vr(wreg(f),4)}")
        tr2(a, wreg(f), VTR, 0)
    def w13(hf, u):
        mat, j = u & 1, u >> 1
        a(f"s_add_u32 m0, s54, {hf*48*KB + mat*24*KB + j*8*KB}")
        a(f"s_add_u32 s50, s53, {hf*256*2752 + j*32}")
        a(f"buffer_load_dwordx4 v{VD3 if mat else VD1}, {R(SW3 if mat else SW1)}, s50 offen lds")
    if not older: a.waitvm("kv0")
    a("s_barrier")
    prof_mark(a, 4)
    a(f"ds_read_b128 {vr(Q,4)}, v{VST}")
    rdK(0); rdK(1); rdV(0)
    qk(0)
    if not older: a("s_setprio 1")
    for t in range(NT):
        S = SB if t & 1 else SA
        def ex(lo, hi):
            for r in range(lo, hi): a(f"v_exp_f32 v{S+r}, v{S+r}")
        if older:
            if t % 4 == 0: a("s_setprio 2")
            if t % 4 == 3: a("s_setprio 0")
        pm = OPT["stop"] == 2 and t in (6, 24, 48)
        if pm: prof_mark(a, {6: 6, 24: 8, 48: 10}[t])
        if t == 6:
            if not older: a.waitvm("kv1")
            a("s_barrier")
        if t in (24, 48): a("s_barrier")
        if pm: prof_mark(a, {6: 7, 24: 9, 48: 11}[t])
        ex(0, 2)
        if t > 0: pv(t-1, 1)
        sj = OPT["sj"]
        if 9 <= t < 28 and sj & 1: wload(2*(t-9)); wload(2*(t-9)+1)
        if 24 <= t < 30 and sj & 2: w13(0, t-24)
        if 48 <= t < 54 and sj & 2: w13(1, t-48)
        if t == 56: a(f"buffer_load_dwordx4 {vr(XRES,4)}, v{VRES}, {R(SX)}, s{sRES} offen")
        ex(2, 7)
        if t + 1 < NT: qk(t+1)
        if t + 2 < NT: rdK(t+2)
        ex(7, 12)
        pv(t, 0)
        if t + 1 < NT: rdV(t+1)
        if 22 <= t < 60 and sj & 4: wtr(t-22)
        ex(12, 16)
    pv(NT-1, 1)
    a("s_setprio 0")
    a("s_waitcnt vmcnt(0) lgkmcnt(0)")
    a("s_nop 15\ns_nop 3")

def attn_finish(a):
    prof_mark(a, 5)
    a("v_mov_b32 v3, 0")
    for r in range(8): a(f"v_fma_f32 v3, v{O+r}, 0, v3")
    a("v_cmp_u_f32 vcc, v3, v3")
    a(f"v_mov_b32 v3, {fh(2.0**-64)}")
    a(f"v_cmp_nle_f32 s[42:43], v3, v{O+8}")
    a(f"v_mov_b32 v3, {fh(2.0**64)}")
    a(f"v_cmp_nge_f32 s[44:45], v3, v{O+8}")
    a("s_or_b64 vcc, vcc, s[42:43]")
    a("s_or_b64 vcc, vcc, s[44:45]")
    a("s_cbranch_scc1 L_fallback")
    a("L_attn_fin:")
    a(f"v_rcp_f32 v3, v{O+8}")
    a(f"s_lshl_b32 s42, s{sTT}, 5")
    a(f"s_add_u32 s42, s42, s{sHEAD}")
    a("s_lshl_b32 s43, s42, 2")
    a("s_lshl_b32 s42, s42, 10")
    a(f"s_add_u32 s42, s42, {WS_O}")
    a(f"s_add_u32 s43, s43, {WS_FO}")
    for r in range(8): a(f"v_mul_f32 v{O+r}, v{O+r}, v3")
    pack8(a, KF, O)
    a(f"buffer_store_dwordx4 {vr(KF,4)}, v2, {R(SWS)}, s42 offen sc1")

def fallback(a):
    a("L_fallback:")
    a(f"s_lshl_b32 s42, s{sHEAD}, 17")
    a(f"s_add_u32 s42, s42, {WS_KV}")
    a("s_mov_b32 s43, s42")
    a("v_mov_b32 v3, 0xff800000")
    a("s_mov_b32 s44, 64")
    a("L_fb_max:")
    a(f"buffer_load_dwordx4 {vr(KF,4)}, v2, {R(SWS)}, s43 offen sc1")
    a("s_add_u32 s43, s43, 2048")
    mfma(a, SA, KF, Q, "0")
    for r in range(0, 16, 2): a(f"v_max3_f32 v3, v3, v{SA+r}, v{SA+r+1}")
    a("s_sub_u32 s44, s44, 1")
    a("s_cmp_lg_u32 s44, 0")
    a("s_cbranch_scc1 L_fb_max")
    a(f"v_mov_b32 v{SB}, v3")
    a(f"v_permlane32_swap_b32 v{SB}, v3")
    a(f"v_max_f32 v3, v3, v{SB}")
    for r in range(16):
        a(f"v_sub_f32 v{SB+r}, 0, v3")
        a(f"v_mov_b32 v{O+r}, 0")
    a("s_mov_b32 s44, 64")
    a("L_fb_pv:")
    a(f"buffer_load_dwordx4 {vr(KF,4)}, v2, {R(SWS)}, s42 offen sc1")
    a("s_mov_b64 exec, s[48:49]")
    for jj in range(2): a(f"buffer_load_dwordx4 {vr(VF+4*jj,4)}, v{VV}, {R(SWS)}, s42 offen offset:{512*jj} sc1")
    exec_all(a)
    a("s_add_u32 s42, s42, 2048")
    mfma(a, SA, KF, Q, vr(SB, 16))
    for r in range(16): a(f"v_exp_f32 v{SA+r}, v{SA+r}")
    for jj in range(2): a(f"v_smfmac_f32_32x32x32_bf16 {vr(O,16)}, {vr(VF+4*jj,4)}, {vr(SA+8*jj,8)}, v{IDX}")
    a("s_nop 15\ns_nop 3")
    a("s_sub_u32 s44, s44, 1")
    a("s_cmp_lg_u32 s44, 0")
    a("s_cbranch_scc1 L_fb_pv")
    a("s_branch L_attn_fin")

VA1, VA2 = 254, 255
def phaseC(a):
    tr_addr(a, VA1, 3, row_shift=5, cg_mul=24*KB+128)
    a(f"v_xor_b32 v{VA2}, 128, v{VA1}")
    a("s_lshr_b32 s44, s3, 2")
    a(f"s_mul_i32 s44, s44, {48*KB}")
    a("s_and_b32 s45, s3, 3")
    a("s_lshl_b32 s45, s45, 11")
    a("s_add_u32 s44, s44, s45")
    a(f"v_add_u32 v88, s44, v{VA1}")
    a(f"v_add_u32 v89, s44, v{VA2}")
    for i in range(4): a(f"v_mov_b32 v{84+i}, 0x3f803f80")
    a.waitvm()
    flag_store(a, 43, 3, local=False)
    prof_mark(a, 6)
    a("s_barrier")
    for j in range(3):
        for kk in range(4): tr2(a, 4+16*j+4*kk, 88, j*8*KB + kk*512, 89)
    accs = [52, 68, 4]
    for j in range(3):
        for kk in range(4): mfma(a, accs[j], 84, 4+16*j+4*kk, "0" if kk == 0 else None)
    a("v_and_b32 v90, 31, v1")
    a("v_lshlrev_b32 v90, 2, v90")
    a(f"v_add_u32 v91, {L_CS13}, v90")
    exec_lo32(a)
    for j in range(3): a(f"ds_add_f32 v91, v{accs[j]} offset:{128*j}")
    exec_all(a)
    a("s_lshr_b32 s46, s3, 1")
    a(f"s_lshl_b32 s44, s{sTC}, 5")
    a("s_lshl_b32 s45, s46, 3")
    a("s_add_u32 s44, s44, s45")
    a("s_lshl_b32 s45, s44, 10")
    a(f"s_add_u32 s45, s45, {WS_O}")
    a("s_lshl_b32 s44, s44, 2")
    a(f"s_add_u32 s44, s44, {WS_FO}")
    a("s_mov_b64 exec, 0xff")
    poll(a, lambda: a(f"buffer_load_dword v3, v90, {R(SWS)}, s44 offen sc1"), [3])
    exec_all(a)
    prof_mark(a, 7)
    for kk in range(8):
        if kk == 4: a("s_add_u32 s45, s45, 4096")
        a(f"buffer_load_dwordx4 {vr(4+4*kk,4)}, v2, {R(SWS)}, s45 offen offset:{(kk&3)*1024} sc1")
    for s in range(1, 4):
        a(f"s_xor_b32 s44, s3, {2*s}")
        a(f"s_mul_i32 s44, s44, {6*KB}")
        a(f"s_add_u32 s44, s44, {L_REDC + (s-1)*2*KB}")
        a(f"v_add_u32 v{84+s}, s44, v2")
    a(f"s_mul_i32 s44, s3, {6*KB}")
    a(f"s_add_u32 s44, s44, {L_REDC}")
    a("v_add_u32 v84, s44, v2")
    for kk in range(8):
        for tj in range(2): mfma(a, 36+16*tj, WO+4*(2*kk+tj), 4+4*kk, "0" if kk == 0 else None)
    for s in (1, 2, 3):
        b = 36 + 8*s
        a(f"ds_write_b128 v{84+s}, {vr(b,4)}")
        a(f"ds_write_b128 v{84+s}, {vr(b+4,4)} offset:1024")
    for j in range(4):
        a(f"v_lshlrev_b32 v{4+2*j}, 16, v{XRES+j}")
        a(f"v_and_b32 v{5+2*j}, 0xffff0000, v{XRES+j}")
    for r in range(8): a(f"v_add_f32 v{36+r}, v{36+r}, v{4+r}")
    a.waitlg()
    a("s_barrier")
    for s in range(3):
        a(f"ds_read_b128 {vr(44+8*s,4)}, v84 offset:{s*2048}")
        a(f"ds_read_b128 {vr(48+8*s,4)}, v84 offset:{s*2048+1024}")
    a(f"s_lshl_b32 s44, s{sTC}, 5")
    a(f"s_lshl_b32 s45, s{sCS}, 2")
    a("s_add_u32 s44, s44, s45")
    a("s_add_u32 s44, s44, s46")
    a("s_lshl_b32 s45, s44, 2")
    a("s_lshl_b32 s44, s44, 10")
    a(f"s_add_u32 s44, s44, {WS_H}")
    a(f"s_add_u32 s45, s45, {WS_FH}")
    for s in range(3):
        for r in range(8): a(f"v_add_f32 v{36+r}, v{36+r}, v{44+8*s+r}")
    pack8(a, HB, 36)
    flavored(a, [f"buffer_store_dwordx4 {vr(HB,4)}, v2, {R(SWS)}, s44 offen"])
    a("v_add_f32 v4, v36, v37\nv_mul_f32 v5, v36, v36\nv_fmac_f32 v5, v37, v37")
    for r in range(2, 8):
        a(f"v_add_f32 v4, v4, v{36+r}")
        a(f"v_fmac_f32 v5, v{36+r}, v{36+r}")
    a("v_mov_b32 v6, v4\nv_mov_b32 v7, v5")
    a("v_permlane32_swap_b32 v6, v4\nv_permlane32_swap_b32 v7, v5")
    a("v_add_f32 v4, v4, v6\nv_add_f32 v5, v5, v7")
    a("s_and_b32 s44, s3, 1")
    a("s_lshl_b32 s44, s44, 8")
    a(f"s_add_u32 s44, s44, {L_ST2}")
    a("v_lshl_add_u32 v6, v90, 1, s44")
    exec_lo32(a)
    a("ds_add_f32 v6, v4\nds_add_f32 v6, v5 offset:4")
    exec_all(a)
    for j in range(3): a(f"v_mov_b32 v{8+j}, 0")
    exec_lo32(a)
    for j in range(3): a(f"ds_read_b32 v{8+j}, v91 offset:{128*j}")
    exec_all(a)
    a.waitvm()
    flag_store(a, 45, 3)
    prof_mark(a, 8)
    a.waitlg()
    a("s_barrier")
    lab = a.label("nost")
    a("s_cmp_ge_u32 s3, 2")
    a(f"s_cbranch_scc1 {lab}")
    a("ds_read_b64 v[4:5], v6")
    a(f"s_lshl_b32 s44, s{sTC}, 3")
    a(f"s_add_u32 s44, s44, s{sCS}")
    a("s_lshl_b32 s44, s44, 9")
    a(f"s_add_u32 s44, s44, {WS_ST2}")
    a(f"v_mov_b32 v13, s{sT}\nv_mov_b32 v15, s{sT}")
    a("v_lshlrev_b32 v7, 2, v90")
    a("v_mov_b32 v12, v4\nv_mov_b32 v14, v5")
    exec_lo32(a)
    flavored(a, [f"buffer_store_dwordx4 v[12:15], v7, {R(SWS)}, s44 offen"])
    exec_all(a)
    a("s_waitcnt vmcnt(0)")
    a(f"{lab}:")

def bump(a):
    lab2 = a.label("nobump")
    a("s_or_b32 s44, s2, s3")
    a("s_cmp_lg_u32 s44, 0")
    a(f"s_cbranch_scc1 {lab2}")
    a("v_mov_b32 v3, s63")
    a("s_mov_b64 exec, 1")
    a(f"buffer_store_dword v3, off, {R(SWS)}, 0 sc1")
    a("s_waitcnt vmcnt(0)")
    a(f"{lab2}:")

def phaseD(a):
    ACC, WF, HR, CSF, STL, MF, C1, IR = 4, 52, 76, 124, 136, 152, 244, 245
    NR = 12
    a(f"s_cmp_ge_u32 s{sM}, 29")
    a("s_cbranch_scc1 L_dskip")
    for j in range(3): hilo(a, CSF+4*j, 8+j, 246, True)
    a(f"s_lshl_b32 s46, s{sG}, 3")
    a("s_add_u32 s46, s46, s3")
    a("s_lshl_b32 s44, s46, 7")
    a(f"s_add_u32 s44, s44, {WS_FH}")
    a("s_lshl_b32 s45, s46, 15")
    a(f"s_add_u32 s45, s45, {WS_H}")
    a("s_lshl_b32 s47, s46, 12")
    a(f"s_add_u32 s47, s47, {WS_ST2}")
    a("v_lshrrev_b32 v3, 5, v1")
    a("v_lshlrev_b32 v3, 11, v3")
    a("v_lshl_add_u32 v247, v90, 2, v3")
    def rdW(ks, j, b):
        tr2(a, WF+12*b+4*j, VA1, j*8*KB + (ks & 15)*512, VA2)
    for j in range(3): rdW(0, j, 0)
    lab = a.label("dyoung")
    a("s_cmp_ge_u32 s3, 4")
    a(f"s_cbranch_scc1 {lab}")
    a("s_setprio 2")
    a(f"{lab}:")
    exec_lo32(a)
    poll(a, lambda: a(f"buffer_load_dword v3, v90, {R(SWS)}, s44 offen sc1"), [3])
    exec_all(a)
    prof_mark(a, 9)
    def ldH(ks):
        if ks and ks % 4 == 0: a("s_add_u32 s45, s45, 4096")
        a(f"buffer_load_dwordx4 {vr(HR+4*(ks%NR),4)}, v2, {R(SWS)}, s45 offen offset:{(ks&3)*1024} sc1")
    def ldst():
        for p in range(4): a(f"buffer_load_dwordx4 {vr(STL+4*p,4)}, v247, {R(SWS)}, s47 offen offset:{p*512} sc1")
    def stats():
        poll(a, ldst, [STL+1, STL+3, STL+5, STL+7, STL+9, STL+11, STL+13, STL+15], first_issued=True)
        for p in range(1, 4):
            a(f"v_add_f32 v{STL}, v{STL}, v{STL+4*p}")
            a(f"v_add_f32 v{STL+2}, v{STL+2}, v{STL+4*p+2}")
        a(f"v_mov_b32 v{STL+1}, v{STL}\nv_mov_b32 v{STL+3}, v{STL+2}")
        a(f"v_permlane32_swap_b32 v{STL+1}, v{STL}\nv_permlane32_swap_b32 v{STL+3}, v{STL+2}")
        a(f"v_add_f32 v{STL}, v{STL}, v{STL+1}\nv_add_f32 v{STL+2}, v{STL+2}, v{STL+3}")
        a(f"v_mul_f32 v{STL}, {fh(-1/512)}, v{STL}")
        a(f"v_mul_f32 v{STL+1}, v{STL}, v{STL}")
        a(f"v_mov_b32 v{STL+3}, {fh(1/512)}")
        a(f"v_fma_f32 v{IR}, v{STL+2}, v{STL+3}, -v{STL+1}")
        a(f"v_max_f32 v{IR}, 0, v{IR}")
        a(f"v_add_f32 v{IR}, {fh(1e-5)}, v{IR}")
        a(f"v_rsq_f32 v{C1}, v{IR}")
        hilo(a, MF, STL, STL+4, False)
        a(f"v_mul_f32 v{C1}, {fh(-LOG2E)}, v{C1}")
        a(f"s_mul_i32 s44, s46, 86")
        a(f"s_mul_i32 s45, s{sM}, 3")
        a("s_add_u32 s44, s44, s45")
        a("s_lshl_b32 s44, s44, 10")
        a(f"s_add_u32 s44, s44, {WS_ACT}")
    seq = [(j, ks) for j in range(3) for ks in range(24, 32)]
    def rdT(n):
        j, ks = seq[n]
        tr2(a, WF+4*(n%6), VA1, j*8*KB + (ks & 15)*512, VA2)
    for ks in range(NR): ldH(ks)
    for ks in range(24):
        b = ks & 1
        if ks == 15:
            a(f"v_add_u32 v{VA1}, {48*KB}, v{VA1}\nv_add_u32 v{VA2}, {48*KB}, v{VA2}")
        if ks == 22: stats()
        for j in range(3):
            if ks < 23: rdW(ks+1, j, b ^ 1)
            else: rdT(j)
            mfma(a, ACC+16*j, WF+12*b+4*j, HR+4*(ks%NR), "0" if ks == 0 else None)
        if ks + NR < 32: ldH(ks+NR)
        if ks == 8: ldst()
    def epi(j):
        c = ACC + 16*j; T = STL + 8*(j & 1)
        L = []
        for r in range(8): L.append(f"v_mul_f32 v{T+r}, v{C1}, v{c+r}")
        for r in range(8): L.append(f"v_exp_f32 v{T+r}, v{T+r}")
        for r in range(8): L.append(f"v_mul_f32 v{c+r}, v{c+r}, v{c+8+r}")
        for r in range(8): L.append(f"v_fma_f32 v{T+r}, v{T+r}, v{IR}, v{IR}")
        for r in range(8): L.append(f"v_rcp_f32 v{T+r}, v{T+r}")
        for r in range(8): L.append(f"v_mul_f32 v{c+r}, v{c+r}, v{T+r}")
        for q in range(4): L.append(f"v_cvt_pk_bf16_f32 v{c+8+q}, v{c+2*q}, v{c+2*q+1}")
        return L
    def st(j):
        l = f"buffer_store_dwordx4 {vr(ACC+16*j+8,4)}, v2, {R(SWS)}, s44 offen offset:{j*1024}"
        if j == 2:
            lab = a.label("no86")
            a.waitvm()
            a(f"s_cmp_eq_u32 s{sM}, 28")
            a(f"s_cbranch_scc1 {lab}")
            flavored(a, [l])
            a.waitvm()
            a(f"{lab}:")
        else: flavored(a, [l])
    pend = []
    for n, (j, ks) in enumerate(seq):
        if n + 3 < len(seq): rdT(n+3)
        mfma(a, ACC+16*j, WF+4*(n%6), HR+4*(ks%NR))
        if ks == 31:
            mfma(a, ACC+16*j, CSF+4*j, MF)
            if pend:
                for l in pend: a(l)
                st(j-1)
            pend = epi(j)
        elif pend and ks >= 26:
            for l in pend[:10]: a(l)
            pend = pend[10:]
    for l in pend: a(l)
    st(2)
    a("s_lshl_b32 s44, s46, 5")
    a(f"s_add_u32 s44, s44, s{sM}")
    a("s_lshl_b32 s44, s44, 2")
    a(f"s_add_u32 s44, s44, {WS_FA}")
    flag_store(a, 44, 3)
    a("s_setprio 0")
    a("s_waitcnt vmcnt(1) lgkmcnt(0)")
    a("L_dskip:")
    prof_mark(a, 10)
    a("s_barrier")

def phaseE(a):
    AF, ACC = 4, 92
    a("s_mul_i32 s46, s3, 11")
    a("s_mul_i32 s44, s46, 43691\ns_lshr_b32 s44, s44, 17")
    a("s_add_u32 s45, s46, 10\ns_mul_i32 s45, s45, 43691\ns_lshr_b32 s45, s45, 17\ns_min_u32 s45, s45, 28")
    a("s_sub_u32 s45, s45, s44\ns_add_u32 s45, s45, 1")
    a("s_bfm_b32 s50, s45, s44")
    a(f"s_and_b32 s44, s{sTC}, 0xfffffffe")
    a("s_lshl_b32 s44, s44, 7")
    a(f"s_add_u32 s44, s44, {WS_FA}")
    a("v_lshlrev_b32 v3, 2, v1")
    for ti in range(2):
        a(f"s_xor_b32 s{52+ti}, s{sTC}, {ti}")
        a(f"s_mul_i32 s{52+ti}, s{52+ti}, 86")
        a(f"s_add_u32 s{54+ti}, s{52+ti}, 85")
        a(f"s_add_u32 s{52+ti}, s{52+ti}, s46")
        a(f"s_lshl_b32 s{52+ti}, s{52+ti}, 10\ns_lshl_b32 s{54+ti}, s{54+ti}, 10")
        a(f"s_add_u32 s{52+ti}, s{52+ti}, {WS_ACT}\ns_add_u32 s{54+ti}, s{54+ti}, {WS_ACT}")
    a("s_mov_b32 exec_lo, s50\ns_mov_b32 exec_hi, s50")
    poll(a, lambda: a(f"buffer_load_dword v244, v3, {R(SWS)}, s44 offen sc1"), [244])
    exec_all(a)
    prof_mark(a, 11)
    for ti in (1, 0):
        for kk in range(11):
            d = vr(AF + 44*ti + 4*kk, 4)
            if kk < 9:
                if kk in (4, 8): a(f"s_add_u32 s{52+ti}, s{52+ti}, 4096")
                a(f"buffer_load_dwordx4 {d}, v2, {R(SWS)}, s{52+ti} offen offset:{(kk&3)*1024} sc1")
            else:
                a(f"s_add_u32 s50, s{52+ti}, {(kk-8)*1024}")
                a(f"s_min_u32 s50, s50, s{54+ti}")
                a(f"buffer_load_dwordx4 {d}, v2, {R(SWS)}, s50 offen sc1")
    def wr(s):
        ti, half, tj = s & 1, (s >> 1) & 1, s >> 2
        b = ACC + 32*ti + 16*tj + 8*half
        a(f"s_xor_b32 s44, s3, {s}")
        a(f"s_mul_i32 s44, s44, {14*KB}")
        a(f"s_add_u32 s44, s44, {L_REDE + (s-1)*2*KB}")
        a(f"v_add_u32 v{244+(s&3)}, s44, v2")
        a(f"ds_write_b128 v{244+(s&3)}, {vr(b,4)}")
        a(f"ds_write_b128 v{244+(s&3)}, {vr(b+4,4)} offset:1024")
    for ti in (1, 0):
        for kk in range(11):
            for tj in range(2): mfma(a, ACC+32*ti+16*tj, W2+4*(2*kk+tj), AF+44*ti+4*kk, "0" if kk == 0 else None)
            if ti == 0 and kk in (2, 4, 6, 8): wr({2: 1, 4: 3, 6: 5, 8: 7}[kk])
    for j in range(4):
        a(f"v_lshlrev_b32 v{4+2*j}, 16, v{HB+j}")
        a(f"v_and_b32 v{5+2*j}, 0xffff0000, v{HB+j}")
    a(f"s_mul_i32 s45, s3, {14*KB}")
    a(f"v_add_u32 v3, s45, v2")
    for s in (2, 4, 6): wr(s)
    for r in range(8): a(f"v_add_f32 v{ACC+r}, v{ACC+r}, v{4+r}")
    a.waitlg()
    a("s_barrier")
    for s in range(7):
        a(f"ds_read_b128 {vr(4+8*s,4)}, v3 offset:{L_REDE+s*2048}")
        a(f"ds_read_b128 {vr(8+8*s,4)}, v3 offset:{L_REDE+s*2048+1024}")
    for s in range(7):
        for r in range(8): a(f"v_add_f32 v{ACC+r}, v{ACC+r}, v{4+8*s+r}")
    pack8(a, 4, ACC)
    a(f"buffer_store_dwordx4 v[4:7], v{VRES}, {R(SOUT)}, s{sRES} offen")

def build():
    a = Asm()
    name = NAME + "_kernel"
    kernel_begin(a, name)
    prologue(a)
    stop = OPT["stop"]
    a("s_cmp_ge_u32 s3, 4")
    a("s_cbranch_scc1 L_helper")
    phaseA_mfma(a)
    if stop > 1: attn_setup(a)
    phaseA_mfma_pub(a)
    if stop > 1:
        attn_setup2(a)
        attn_loop(a, True)
    else: a("s_waitcnt vmcnt(0) lgkmcnt(0)")
    a("s_branch L_attn_done")
    a("L_helper:")
    phaseA_helper(a)
    if stop > 1:
        attn_setup(a); attn_setup2(a)
        phaseA_helper_load(a)
        attn_loop(a, False)
    else: a("s_waitcnt vmcnt(0) lgkmcnt(0)")
    a("L_attn_done:")
    if stop > 1:
        attn_finish(a)
        if stop > 2:
            phaseC(a)
            if stop > 3:
                phaseD(a)
                if stop > 4: phaseE(a)
            bump(a)
    prof_end(a)
    if stop > 1: fallback(a)
    a("L_exit:")
    a("s_endpgm")
    hdr = open("cdna_kernels/" + NAME + ".s.ref").read().split("; Override launch")[0]
    out = hdr + f"; @launch grid=(256,1,1) block=(512,1,1) lds={LDS_BYTES}\n"
    out += '.amdgcn_target "amdgcn-amd-amdhsa--gfx950"\n.text\n'
    out += a.finalize()
    out += '.section .rodata,"a"\n.p2align 6\n' + kernel_desc(name, 256)
    print("auto:", a.stats, "instrs", len(a.ins), file=sys.stderr)
    return out

if __name__ == "__main__":
    Prof.on = "prof" in sys.argv
    OPT["fast"] = "fast" in sys.argv
    for x in sys.argv[2:]:
        if "=" in x: OPT[x.split("=")[0]] = int(x.split("=")[1])
    open(sys.argv[1], "w").write(build())
```

```python
import sys
from asm2 import *

NAME = "sequential_preLN__softmax_full_mha__glu_gated_swiglu__prompt"
KB = 1024; MB = 1 << 20
WS_EPOCH = 0
WS_IDS  = 4 * KB
WS_FQKV = 8 * KB
WS_FO   = 16 * KB
WS_FH   = 24 * KB
WS_FA   = 32 * KB
WS_FW   = 40 * KB
WS_CSP  = 3 * MB
WS_ST2  = 128 * KB
WS_Q    = 1 * MB
WS_KV   = 4 * MB
WS_O    = 8 * MB
WS_H    = 10 * MB
WS_ACT  = 12 * MB
WS_WTO  = 18 * MB
WS_WT2  = 19 * MB
WS_WT13 = 21 * MB
WS_END  = 24 * MB
LOG2E = 1.4426950408889634
L_X    = 96 * KB
L_MISC = 156 * KB
L_CS13 = L_MISC + 768
L_ST2  = L_MISC + 1280
L_MFW  = L_MISC + 3584
L_RS   = L_MISC + 3840
L_PR1  = 136 * KB
L_PR2  = 152 * KB
L_STG  = 128 * KB
L_REDC = 96 * KB
L_REDE = 0
LDS_BYTES = 160 * KB
SX, SWQ, SWS, SWO, SW1, SW3, SW2, SOUT = 4, 8, 12, 16, 20, 24, 28, 32
sT, sG, sM, sFAST, sID, sCNT = 36, 37, 38, 39, 40, 41
sP, sTB, sHEAD, sTT, sTC, sCS, sRES = 56, 57, 58, 59, 60, 61, 62
POLL_LIMIT = 1 << 17
OPT = dict(stop=99, fast=False, lax=4, sj=7, tw=18, nid=22, nck=28, xa=0, xo=1, sm=1)

MARKS = "a0,a1,a2,a3,b0,b9,c0,c1,c2,d0,d9,e0".split(",")
def pm(a, name):
    if name in MARKS: prof_mark(a, MARKS.index(name))
def R(d, n=4): return sr(d, n)

def tr_addr(a, d, t, row_shift=6, cg_mul=32):
    a(f"v_lshrrev_b32 v{d}, 5, v1")
    a(f"v_lshlrev_b32 v{d}, {row_shift+3}, v{d}")
    a(f"v_bfe_u32 v{t}, v1, 2, 2")
    a(f"v_lshl_add_u32 v{d}, v{t}, {row_shift}, v{d}")
    a(f"v_bfe_u32 v{t}, v1, 4, 1")
    a(f"v_mul_u32_u24 v{t}, {cg_mul}, v{t}")
    a(f"v_add_u32 v{d}, v{d}, v{t}")
    a(f"v_and_b32 v{t}, 1, v1")
    a(f"v_lshl_add_u32 v{d}, v{t}, 4, v{d}")
    a(f"v_bfe_u32 v{t}, v1, 1, 1")
    a(f"v_lshl_add_u32 v{d}, v{t}, 3, v{d}")

def pi_lane(a, d, t):
    a(f"v_and_b32 v{d}, 0x33, v1")
    a(f"v_bfe_u32 v{t}, v1, 2, 1")
    a(f"v_lshl_add_u32 v{d}, v{t}, 3, v{d}")
    a(f"v_bfe_u32 v{t}, v1, 3, 1")
    a(f"v_lshl_add_u32 v{d}, v{t}, 2, v{d}")

def pack8(a, d, s):
    for j in range(4): a(f"v_cvt_pk_bf16_f32 v{d+j}, v{s+2*j}, v{s+2*j+1}")

def mfma(a, d, A, B, c=None):
    a(f"v_mfma_f32_32x32x16_bf16 {vr(d,16)}, {vr(A,4)}, {vr(B,4)}, {vr(d,16) if c is None else c}")

def tr2(a, d, addr, off, addr2=None, tag=None):
    a(f"ds_read_b64_tr_b16 {vr(d,2)}, v{addr} offset:{off}", tag)
    if addr2 is None: a(f"ds_read_b64_tr_b16 {vr(d+2,2)}, v{addr} offset:{off+256}", tag)
    else: a(f"ds_read_b64_tr_b16 {vr(d+2,2)}, v{addr2} offset:{off}", tag)

def exec_lo32(a): a("s_mov_b64 exec, 0xffffffff")
def exec_all(a): a("s_mov_b64 exec, -1")

def flavored(a, lines, tag=None):
    if not OPT["fast"]:
        for l in lines: a(l + " sc1", tag)
        return
    lf, ld = a.label("fast"), a.label("fdone")
    a(f"s_cmp_lg_u32 s{sFAST}, 0")
    a(f"s_cbranch_scc1 {lf}")
    for l in lines: a(l + " sc1", tag)
    a(f"s_branch {ld}")
    a(f"{lf}:")
    for l in lines: a(l, tag)
    a(f"{ld}:")

def flag_store(a, soff, vt, local=True):
    a(f"v_mov_b32 v{vt}, s{sT}")
    a("s_mov_b64 exec, 1")
    l = f"buffer_store_dword v{vt}, off, {R(SWS)}, s{soff}"
    if local: flavored(a, [l])
    else: a(l + " sc1")
    exec_all(a)

def poll(a, load, checks, first_issued=False):
    lp, dn, ck = a.label("poll"), a.label("pdone"), a.label("pchk")
    a(f"s_mov_b32 s{sCNT}, {POLL_LIMIT}")
    if first_issued: a(f"s_branch {ck}")
    a(f"{lp}:")
    load()
    a("s_waitcnt vmcnt(0)")
    if first_issued: a(f"{ck}:")
    a(f"v_cmp_ne_u32 vcc, s{sT}, v{checks[0]}")
    for c in checks[1:]:
        a(f"v_cmp_ne_u32 s[42:43], s{sT}, v{c}")
        a("s_or_b64 vcc, vcc, s[42:43]")
    a(f"s_cbranch_vccz {dn}")
    a(f"s_sub_u32 s{sCNT}, s{sCNT}, 1")
    a(f"s_cbranch_scc0 {lp}")
    a(f"{dn}:")

def hilo(a, d, src, t, dup):
    a(f"v_and_b32 v{t}, 0xffff0000, v{src}")
    a(f"v_sub_f32 v{t+1}, v{src}, v{t}")
    if dup:
        a(f"v_cvt_pk_bf16_f32 v{d}, v{t}, v{t}")
        a(f"v_cvt_pk_bf16_f32 v{d+1}, v{t+1}, v{t+1}")
    else:
        a(f"v_cvt_pk_bf16_f32 v{d}, v{t}, v{t+1}")
        a(f"v_cvt_pk_bf16_f32 v{d+1}, v{t}, v{t+1}")
    a(f"v_mov_b32 v{d+2}, 0")
    a(f"v_mov_b32 v{d+3}, 0")

def allreduce32(a, v, t):
    for m in ("quad_perm:[1,0,3,2]", "quad_perm:[2,3,0,1]", "row_half_mirror", "row_mirror"):
        a(f"v_add_f32 v{v}, v{v}, v{v} {m} row_mask:0xf bank_mask:0xf")
    a(f"v_mov_b32 v{t}, v{v}")
    a(f"v_permlane16_swap_b32 v{t}, v{v}")
    a(f"v_add_f32 v{v}, v{v}, v{t}")

def ids_check(a, v):
    a(f"v_cmp_ne_u32 vcc, s{sID}, v{v}")
    a("s_cmp_eq_u64 vcc, 0")
    a(f"s_cselect_b32 s{sFAST}, 1, 0")

def prologue(a):
    a("s_cmp_ge_u32 s2, 256")
    a("s_cbranch_scc1 L_exit")
    a("s_load_dwordx16 s[40:55], s[0:1], 0")
    a("s_load_dwordx2 s[62:63], s[0:1], 72")
    prof_begin(a)
    a("v_and_b32 v1, 63, v0")
    a("v_lshrrev_b32 v2, 6, v0")
    a("v_readfirstlane_b32 s3, v2")
    a("v_lshlrev_b32 v2, 4, v1")
    a(f"s_and_b32 s{sG}, s2, 7")
    a(f"s_lshr_b32 s{sM}, s2, 3")
    a(f"s_lshr_b32 s{sP}, s{sM}, 4")
    a(f"s_lshl_b32 s{sTB}, s{sG}, 1")
    a(f"s_add_u32 s{sP}, s{sP}, s{sTB}")
    a(f"s_and_b32 s{sTB}, s{sM}, 15")
    a(f"s_bfe_u32 s{sHEAD}, s{sM}, 0x10003")
    a(f"s_lshl_b32 s{sTT}, s{sP}, 1")
    a(f"s_add_u32 s{sHEAD}, s{sHEAD}, s{sTT}")
    a(f"s_and_b32 s{sCS}, s{sM}, 7")
    a(f"s_mov_b32 s{sFAST}, 0")

def prologue2(a, part=3):
    if part & 1:
        a("s_waitcnt lgkmcnt(0)")
        a("s_load_dword s36, s[62:63], 0")
        srd(a, SX, 40, 2048*1024)
        srd(a, SWQ, 42, 512*3072)
    if not part & 2: return
    srd(a, SWS, 62, WS_END)
    srd(a, SWO, 44, 512*1024)
    srd(a, SW1, 48, 512*2752)
    srd(a, SW3, 50, 512*2752)
    srd(a, SW2, 52, 1376*1024)
    srd(a, SOUT, 54, 2048*1024)

def tag_ready(a):
    a("s_waitcnt lgkmcnt(0)")
    a(f"s_add_u32 s63, s{sT}, 1")
    a(f"s_mul_i32 s{sT}, s63, 0x9E3779B1")
    a(f"s_getreg_b32 s{sID}, hwreg(HW_REG_XCC_ID)")
    a(f"s_lshl_b32 s{sID}, s{sID}, 28")
    a(f"s_and_b32 s42, s{sT}, 0x0fffffff")
    a(f"s_or_b32 s{sID}, s{sID}, s42")

def wq_addr(a, d, t, sp):
    a(f"v_lshrrev_b32 v{d}, 5, v1")
    a(f"v_mul_u32_u24 v{d}, 3072, v{d}")
    a(f"v_bfe_u32 v{t}, v1, 2, 2")
    a(f"v_lshl_add_u32 v{d}, v{t}, 7, v{d}")
    a(f"v_bfe_u32 v{t}, v1, 3, 1")
    if sp is not None: a(f"v_xor_b32 v{t}, s{sp}, v{t}")
    a(f"v_lshl_add_u32 v{d}, v{t}, 6, v{d}")
    a(f"v_bfe_u32 v{t}, v1, 4, 1")
    a(f"v_lshl_add_u32 v{d}, v{t}, 5, v{d}")
    a(f"v_and_b32 v{t}, 1, v1")
    a(f"v_lshl_add_u32 v{d}, v{t}, 4, v{d}")
    a(f"v_bfe_u32 v{t}, v1, 1, 1")
    a(f"v_lshl_add_u32 v{d}, v{t}, 3, v{d}")

def trw(a, d, addr, off):
    a(f"ds_read_b64_tr_b16 {vr(d,2)}, v{addr} offset:{off}")
    a(f"ds_read_b64_tr_b16 {vr(d+2,2)}, v{addr} offset:{off+512}")

def mfs(a, d, A, B, c=None):
    a(f"v_mfma_f32_16x16x32_bf16 {vr(d,4)}, {vr(A,4)}, {vr(B,4)}, {vr(d,4) if c is None else c}")

def phaseA_mfma(a):
    AQ, AK, AV, XF, WF, VXA, VWA, VWB, G, TM = 16, 32, 48, 144, 156, 4, 8, 3, 96, 104
    CSF, MF, RSB, SEL, CSD, PL, VS, VG, OWN, PUB = 112, 124, 128, 192, 196, 212, 236, 239, 208, 220
    a("s_and_b32 s96, s3, 1")
    a("s_lshr_b32 s97, s3, 1")
    a("v_and_b32 v9, 31, v1")
    a("v_lshrrev_b32 v10, 5, v1")
    a("v_bfe_u32 v11, v1, 1, 3")
    a("v_xor_b32 v11, v11, v10")
    a("v_lshlrev_b32 v11, 4, v11")
    a("v_lshl_add_u32 v11, v9, 7, v11")
    a(f"s_lshl_b32 s98, s96, 12")
    a(f"s_add_u32 s98, s98, {L_X}")
    a("v_add_u32 v11, s98, v11")
    for k in range(4): a(f"v_xor_b32 v{VXA+k}, {32*k}, v11")
    wq_addr(a, VWA, 11, 97)
    a(f"v_add_u32 v{VWB}, {48*KB}, v{VWA}")
    a("v_mov_b32 v16, 0\nv_mov_b32 v17, 0")
    a("s_lshl_b32 s98, s3, 9")
    a(f"s_add_u32 s98, s98, {L_MISC}")
    a("v_lshl_add_u32 v11, v1, 3, s98")
    a("ds_write_b64 v11, v[16:17]")
    prologue2(a)
    a("v_lshrrev_b32 v11, 2, v1")
    a("v_xor_b32 v11, v11, v1")
    a("v_bfe_u32 v11, v11, 2, 1")
    a("v_add_u32 v11, -1, v11")
    for q in range(4): a(f"v_and_b32 v{SEL+q}, 0x3f803f80, v11")
    a("v_lshlrev_b32 v13, 2, v9")
    a("v_lshlrev_b32 v12, 3, v9")
    a(f"v_lshl_add_u32 v{VG}, v10, 10, v12")
    a(f"s_add_u32 s98, s{sM}, 6\ns_add_u32 s99, s{sM}, 3")
    a("s_and_b32 s98, s98, 7\ns_and_b32 s99, s99, 7")
    a("s_lshl_b32 s98, s98, 12\ns_lshl_b32 s99, s99, 12")
    a("s_add_u32 s98, s98, 1024")
    a("s_sub_u32 s99, s99, s98")
    a("v_mul_lo_u32 v11, v10, s99")
    a("v_add3_u32 v12, v12, v11, s98")
    for p in range(3): a(f"v_mov_b32 v{OWN+p}, 0")
    a("s_lshl_b32 s98, s96, 7")
    a(f"s_add_u32 s98, s98, {L_MFW}")
    a("v_add_u32 v14, s98, v13")
    a("v_lshl_add_u32 v15, v10, 4, s98")
    a(f"v_mov_b32 v{MF+2}, 0\nv_mov_b32 v{MF+3}, 0")
    a(f"s_lshl_b32 s44, s{sM}, 1")
    a("s_add_u32 s44, s44, s96")
    a(f"s_lshl_b32 s47, s{sG}, 1")
    a("s_add_u32 s47, s47, s97")
    a(f"s_lshl_b32 s46, s{sG}, 7")
    a(f"s_add_u32 s46, s46, {WS_IDS}")
    a(f"s_lshl_b32 s45, s{sM}, 2")
    a("s_add_u32 s45, s45, s46")
    a(f"s_lshl_b32 s98, s{sG}, 5")
    a(f"s_add_u32 s98, s98, s{sM}")
    a("s_and_b32 s99, s98, 0xfffffff8")
    a("s_lshl_b32 s98, s98, 1\ns_lshl_b32 s99, s99, 1")
    a("s_add_u32 s98, s98, s97\ns_add_u32 s99, s99, s97")
    a("s_lshl_b32 s98, s98, 11\ns_lshl_b32 s99, s99, 11")
    a(f"s_add_u32 s98, s98, {WS_CSP}\ns_add_u32 s99, s99, {WS_CSP}")
    tag_ready(a)
    a(f"v_mov_b32 v{G+5}, s{sID}")
    for p in range(3): a(f"v_mov_b32 v{PUB+2*p+1}, s{sT}")
    def reads(n, part):
        c, k, b = n >> 2, n & 3, n % 3
        if OPT["xa"] & 4 and n > 2: return
        if part == 0: a(f"ds_read_b128 {vr(XF+4*b,4)}, v{VXA+k} offset:{(c%6)*8*KB}")
        trw(a, WF+12*b+4*part, VWB if c & 2 else VWA, (c&1)*24*KB + k*6*KB + part*KB)
    def ldp():
        for p in range(3): a(f"buffer_load_dwordx2 {vr(PL+2*p,2)}, v12, {R(SWS)}, s99 offen offset:{p*256} sc1")
    def csum(p):
        a(f"v_add_f32 v{PL+2*p}, v{PL+2*p}, v{OWN+p}")
        a(f"v_and_b32 v{TM}, 0xffff0000, v{PL+2*p}")
        a(f"v_sub_f32 v{TM+1}, v{PL+2*p}, v{TM}")
        a(f"v_cvt_pk_bf16_f32 v{CSF+4*p}, v{TM}, v{TM}")
        a(f"v_cvt_pk_bf16_f32 v{CSF+4*p+1}, v{TM+1}, v{TM+1}")
    for p in range(3): a(f"v_mov_b32 v{CSF+4*p+2}, 0\nv_mov_b32 v{CSF+4*p+3}, 0")
    pi_lane(a, VS, VS+1)
    a(f"v_lshlrev_b32 v{VS}, 4, v{VS}")
    a(f"v_and_b32 v{VS+1}, 15, v1\nv_lshlrev_b32 v{VS+1}, 4, v{VS+1}")
    a(f"v_lshl_add_u32 v{VS+1}, v10, 8, v{VS+1}")
    a(f"v_bfe_u32 v{VS+2}, v1, 4, 1")
    a(f"v_lshl_add_u32 v{VS+1}, v{VS+2}, 17, v{VS+1}")
    a("s_lshl_b32 s50, s47, 7")
    a("s_add_u32 s50, s50, s44")
    a("s_lshl_b32 s51, s50, 11")
    a("s_lshl_b32 s50, s50, 10")
    a(f"s_add_u32 s50, s50, {WS_Q}")
    a(f"s_add_u32 s51, s51, {WS_KV}")
    a(f"s_add_u32 s52, s50, {64*KB}")
    a(f"s_add_u32 s53, s51, {128*KB}")
    a("s_lshl_b32 s101, s47, 8")
    a("s_lshl_b32 s44, s44, 2")
    a("s_add_u32 s101, s101, s44")
    a(f"s_add_u32 s101, s101, {WS_FQKV}")
    a("s_cmp_eq_u32 s3, 0")
    a("s_cselect_b64 s[54:55], 1, 0")
    a("s_cmp_eq_u32 s96, 1")
    a("s_cselect_b64 s[48:49], -1, 0")
    F = {}
    def at(n, p, f): F.setdefault((n, p), []).append(f)
    def f_ids():
        a("s_mov_b64 exec, s[54:55]")
        a(f"buffer_store_dword v{G+5}, off, {R(SWS)}, s45 sc1")
        exec_all(a)
    at(5, 0, f_ids)
    def f_s3(p):
        exec_lo32(a)
        a(f"v_mov_b32 v{PUB+2*p}, v{CSD+4*p}\nv_mov_b32 v{OWN+p}, v{CSD+4*p}")
        a("s_mov_b64 exec, s[48:49]")
        a(f"buffer_store_dwordx2 {vr(PUB+2*p,2)}, v{VG}, {R(SWS)}, s98 offen offset:{p*256} sc1")
        exec_all(a)
    NI, NC = OPT["nid"], OPT["nck"]
    for p in range(3):
        at(12, p, lambda p=p: f_s3(p))
        at(NI, p, lambda p=p: a(f"buffer_load_dwordx2 {vr(PL+2*p,2)}, v12, {R(SWS)}, s99 offen offset:{p*256} sc1"))
        at(NC+1, p, lambda p=p: csum(p))
        at(NC+2, p, lambda p=p: mfma(a, AQ+16*p, CSF+4*p, MF) if p < 2 else mfma(a, AV, MF, CSF+8))
    at(NI-1, 2, lambda: a(f"buffer_load_dword v{G+4}, v13, {R(SWS)}, s46 offen sc1"))
    at(NC, 1, lambda: ids_check(a, G+4))
    at(NC, 2, lambda: poll(a, ldp, [PL+1, PL+3, PL+5], first_issued=True))
    at(26, 1, lambda: a(f"ds_read_b32 v{MF}, v14\nds_read_b32 v{MF+1}, v14"))
    at(26, 2, lambda: a(f"ds_read_b32 v{G+2}, v14 offset:{L_RS-L_MFW}"))
    for q in range(4): at(30 + q//3, q%3, lambda q=q: a(f"ds_read_b128 {vr(RSB+4*q,4)}, v15 offset:{L_RS-L_MFW+32*q}"))
    pm(a, "a0")
    a("s_barrier")
    pm(a, "a1")
    for p in range(3): reads(0, p)
    for p in range(3): reads(1, p)
    for n in range(32):
        b = n % 3
        pm(a, f"an{n}")
        if (n & 3) == 2 and n < 30: a("s_barrier")
        for pi_, p in enumerate(range(3) if n < 31 else (1, 2, 0)):
            if n < 30: reads(n+2, p)
            c0 = "0" if n == 0 else None
            if p < 2: mfma(a, AQ+16*p, WF+12*b+4*p, XF+4*b, c0)
            else: mfma(a, AV, XF+4*b, WF+12*b+8, c0)
            if n == 8: a(f"v_mov_b32 v{PUB+2*p}, v{CSD+4*p}")
            if n < 12: mfs(a, CSD+4*p, SEL, WF+12*b+4*p, c0)
            for f in F.get((n, pi_), []): f()
    a("s_barrier")
    pm(a, "a2")
    a(f"v_mul_f32 v{G}, {fh(0.25*LOG2E)}, v{G+2}")
    def scal(A, S, bc):
        for r in range(0, 16, 2):
            if bc: a(f"v_pk_mul_f32 {vr(A+r,2)}, {vr(A+r,2)}, {vr(S,2)} op_sel_hi:[1,0]")
            else: a(f"v_pk_mul_f32 {vr(A+r,2)}, {vr(A+r,2)}, {vr(S+r,2)}")
    scal(AK, G+2, True)
    pack8(a, 72, AK); pack8(a, 76, AK+8)
    flavored(a, [f"buffer_store_dwordx4 v[72:75], v{VS}, {R(SWS)}, s51 offen",
                 f"buffer_store_dwordx4 v[76:79], v{VS}, {R(SWS)}, s53 offen"])
    scal(AV, RSB, False)
    pack8(a, 80, AV); pack8(a, 84, AV+8)
    flavored(a, [f"buffer_store_dwordx4 v[80:83], v{VS+1}, {R(SWS)}, s51 offen offset:1024",
                 f"buffer_store_dwordx4 v[84:87], v{VS+1}, {R(SWS)}, s51 offen offset:1536"])
    scal(AQ, G, True)
    pack8(a, 64, AQ); pack8(a, 68, AQ+8)
    flavored(a, [f"buffer_store_dwordx4 v[64:67], v2, {R(SWS)}, s50 offen",
                 f"buffer_store_dwordx4 v[68:71], v2, {R(SWS)}, s52 offen"])

def phaseA_mfma_pub(a):
    pm(a, "a2s")
    a.waitvm()
    flag_store(a, 101, 3)
    pm(a, "a3")

def phaseA_helper(a):
    VXE, VXO, VW, VSX, ONES, XD, SUM, GR, U = 4, 5, 6, 7, 12, 48, 32, 36, 40
    a("s_sub_u32 s100, s3, 4")
    a("v_lshrrev_b32 v9, 3, v1")
    a("v_lshrrev_b32 v10, 4, v1")
    a("v_and_b32 v11, 7, v1")
    a("v_xor_b32 v12, v11, v10")
    a("v_lshlrev_b32 v12, 4, v12")
    a(f"v_lshl_add_u32 v{VXE}, v9, 10, v12")
    a(f"v_xor_b32 v{VXO}, 64, v{VXE}")
    a("v_and_b32 v10, 1, v10")
    a("v_lshlrev_b32 v10, 2, v10")
    a("v_xor_b32 v11, v11, v10")
    a(f"v_mul_u32_u24 v{VW}, 3072, v9")
    a(f"v_lshl_add_u32 v{VW}, v11, 4, v{VW}")
    a(f"s_lshl_b32 s96, s{sM}, 2")
    a("s_add_u32 s96, s96, s100")
    a("s_lshl_b32 s96, s96, 14")
    a(f"s_mul_i32 s97, s100, {16*3072}")
    a(f"s_lshl_b32 s98, s{sG}, 7")
    a("s_add_u32 s97, s97, s98")
    a("s_lshl_b32 s98, s100, 11")
    a(f"s_add_u32 s98, s98, {L_X}")
    a(f"s_mul_i32 s99, s100, {6*KB}")
    prologue2(a, 1)
    LAX = OPT["lax"]
    def dmx(c):
        a(f"s_add_u32 s43, s{sM}, {c}")
        a("s_and_b32 s43, s43, 7")
        a("s_lshl_b32 s43, s43, 7")
        a("s_add_u32 s43, s43, s96")
        a(f"s_add_u32 m0, s98, {(c%6)*8*KB}")
        a(f"s_add_u32 s42, s43, 8192")
        a(f"buffer_load_dwordx4 v{VXE}, {R(SX)}, s43 offen lds", f"x{c}")
        a(f"s_add_u32 m0, s98, {(c%6)*8*KB + KB}")
        a(f"buffer_load_dwordx4 v{VXO}, {R(SX)}, s42 offen lds", f"x{c}")
    def dmw(c):
        a(f"s_add_u32 s43, s{sM}, {c}")
        a("s_and_b32 s43, s43, 7")
        a(f"s_mul_i32 s43, s43, {64*3072}")
        a(f"s_add_u32 m0, s99, {(c%4)*24*KB}")
        a(f"s_add_u32 s43, s43, s97")
        a(f"s_add_u32 s42, s43, {8*3072}")
        for pn in range(3): a(f"buffer_load_dwordx4 v{VW}, {R(SWQ)}, s43 offen offset:{pn*1024} lds", f"w{c}")
        a(f"s_add_u32 m0, s99, {(c%4)*24*KB + 3*KB}")
        for pn in range(3): a(f"buffer_load_dwordx4 v{VW}, {R(SWQ)}, s42 offen offset:{pn*1024} lds", f"w{c}")
    XO = OPT["xo"]
    if XO: dmx(0); dmw(0); dmx(1); dmw(1); dmx(2)
    else: dmx(0); dmw(0); dmx(1); dmx(2); dmw(1)
    for c in range(3, LAX): dmx(c)
    pm(a, "ai")
    prologue2(a, 2)
    a("v_and_b32 v9, 15, v1")
    a("v_bfe_u32 v10, v1, 1, 3")
    a("v_lshrrev_b32 v11, 4, v1")
    a("v_xor_b32 v10, v10, v11")
    a("v_lshlrev_b32 v10, 4, v10")
    a("v_lshl_add_u32 v10, v9, 7, v10")
    a(f"v_add_u32 v{VSX}, s98, v10")
    a(f"v_xor_b32 v{VSX+1}, 64, v{VSX}")
    for i in range(4): a(f"v_mov_b32 v{ONES+i}, 0x3f803f80")
    a("s_lshl_b32 s44, s100, 6")
    a(f"s_add_u32 s44, s44, {L_MFW}")
    a("v_lshl_add_u32 v3, v9, 2, s44")
    tag_ready(a)
    SCH = {0: [0], 1: [1, 2], 2: [3, 4], 3: [5], 4: [6], 5: [7]}
    if XO: SCH = {0: [0], 1: [1], 2: [2, 3], 3: [4], 4: [5], 5: [6, 7]}
    SMF = [{0: [0], 1: [1], 2: [2, 3], 3: [4], 4: [5], 5: [6, 7]}, {3: [0, 1, 2], 4: [3, 4, 5], 5: [6, 7]}, {0: [0], 3: [1, 2], 4: [3, 4], 5: [5, 6], 6: [7]}][OPT["sm"]]
    if OPT['xa'] & 2: SCH = {}
    for c in range(8):
        a.waitvm(f"w{c}")
        if c == 0: pm(a, "a0")
        else: pm(a, f"ac{c}")
        a("s_barrier")
        if c == 0: pm(a, "a1")
        def srd_(q, cc):
            a.waitvm(f"x{cc}")
            for j in range(2): a(f"ds_read_b128 {vr(XD+8*cc+4*j,4)}, v{VSX+j} offset:{(cc%6)*8*KB}")
        for q, cc in enumerate(SCH.get(c, [])):
            if cc <= c + 1 or not XO: srd_(q, cc)
        if c + LAX <= 7 and not OPT['xa'] & 8 and not XO: dmx(c+LAX)
        if c + 2 <= 7 and not OPT['xa'] & 8: dmw(c+2)
        if c + LAX <= 7 and not OPT['xa'] & 8 and XO: dmx(c+LAX)
        for q, cc in enumerate(SCH.get(c, [])):
            if cc > c + 1 and XO: srd_(q, cc)
        pm(a, f"h{c}a")
        for cc in SMF.get(c, []):
            for j in range(2):
                c0 = "0" if cc == 0 and j == 0 else None
                mfs(a, SUM, ONES, XD+8*cc+4*j, c0)
                mfs(a, GR, XD+8*cc+4*j, XD+8*cc+4*j, c0)
        if c == 6:
            for q in range(1, 4):
                a(f"s_mov_b32 exec_lo, {hex(0x00100001 << q)}\ns_mov_b32 exec_hi, {hex(0x10000100 << q)}")
                a(f"v_mov_b32 v{GR}, v{GR+q}")
            a("s_mov_b32 exec_lo, 0x00f0000f\ns_mov_b32 exec_hi, 0xf0000f00")
            a(f"v_mov_b32 v{U+6}, {fh(1/512)}")
            a(f"v_mul_f32 v{SUM}, {fh(-1/512)}, v{SUM}")
            a(f"v_mul_f32 v{U}, v{SUM}, v{SUM}")
            a(f"v_fma_f32 v{U}, v{GR}, v{U+6}, -v{U}")
            a(f"v_max_f32 v{U}, 0, v{U}")
            a(f"v_add_f32 v{U}, {fh(1e-5)}, v{U}")
            a(f"v_rsq_f32 v{U}, v{U}")
            a(f"v_and_b32 v{U+2}, 0xffff0000, v{SUM}")
            a(f"v_sub_f32 v{U+4}, v{SUM}, v{U+2}")
            a(f"v_cvt_pk_bf16_f32 v{U+2}, v{U+2}, v{U+4}")
            a(f"ds_write_b32 v3, v{U+2}")
            a(f"ds_write_b32 v3, v{U} offset:{L_RS-L_MFW}")
            exec_all(a)
            a.waitlg()
        pm(a, f"h{c}c")
    a(f"s_lshl_b32 s44, s{sP}, 8")
    a(f"s_add_u32 s44, s44, {WS_FQKV}")
    a("v_lshlrev_b32 v9, 2, v1")
    pm(a, "aq")
    a("s_barrier")
    pm(a, "a2")

def phaseA_helper_load(a):
    poll(a, lambda: a(f"buffer_load_dword v11, v9, {R(SWS)}, s44 offen sc1"), [11])
    pm(a, "a3")
    a(f"s_lshl_b32 s42, s{sHEAD}, 6")
    a(f"s_lshl_b32 s43, s{sCS}, 3")
    a("s_add_u32 s42, s42, s43")
    a("s_lshl_b32 s43, s100, 1")
    a("s_add_u32 s42, s42, s43")
    a("s_lshl_b32 s42, s42, 10")
    a(f"s_add_u32 s42, s42, {WS_Q}")
    a("s_lshl_b32 s43, s100, 11")
    a(f"s_add_u32 m0, s43, {L_STG}")
    a("s_lshl_b32 s43, s100, 12")
    for o in (0, 1024): a(f"buffer_load_dwordx4 v2, {R(SWS)}, s42 offen offset:{o} sc1 lds", "kv0")
    a(f"s_lshl_b32 s42, s{sHEAD}, 17")
    a("s_add_u32 s42, s42, s43")
    a(f"s_add_u32 s42, s42, {WS_KV}")
    a("s_mov_b32 m0, s43")
    for o in range(4): a(f"buffer_load_dwordx4 v2, {R(SWS)}, s42 offen offset:{o*1024} sc1 lds", "kv0")

Q, SA, SB, O, KF, VF = 4, 8, 24, 40, 56, 64
IDX, VK, VV, VK2, VV2, VWR0, VWR1, VD1, VD3 = range(80, 89)
VST, VTR = 253, 0
WO, W2, XRES, HB, VRES = 92, 156, 244, 248, 252

def attn_setup(a):
    a(f"s_lshl_b32 s{sTT}, s{sCS}, 3")
    a(f"s_add_u32 s{sTT}, s{sTT}, s3")
    a(f"s_lshr_b32 s{sTC}, s{sM}, 3")
    a(f"s_lshl_b32 s{sTC}, s{sTC}, 1")
    a(f"s_lshl_b32 s50, s{sG}, 3")
    a(f"s_add_u32 s{sTC}, s{sTC}, s50")
    a("s_and_b32 s50, s3, 1")
    a(f"s_add_u32 s{sTC}, s{sTC}, s50")
    a(f"v_mov_b32 v{IDX}, 0xdddddddd")
    a(f"v_mov_b32 v{VK}, v2")
    a(f"v_add_u32 v{VK2}, 0x10000, v2")
    a(f"v_and_b32 v{VV}, 15, v1")
    a(f"v_lshlrev_b32 v{VV}, 4, v{VV}")
    a(f"v_lshrrev_b32 v{VV2}, 5, v1")
    a(f"v_lshl_add_u32 v{VV}, v{VV2}, 8, v{VV}")
    a(f"v_add_u32 v{VV}, 1024, v{VV}")
    a(f"v_and_b32 v{VRES}, 31, v1")
    a(f"v_lshlrev_b32 v90, 2, v{VRES}")
    a(f"v_lshlrev_b32 v{VRES}, 10, v{VRES}")
    a(f"v_lshl_add_u32 v{VRES}, v{VV2}, 4, v{VRES}")
    a(f"v_add_u32 v{VV2}, 0x10000, v{VV}")
    a(f"s_lshl_b32 s{sRES}, s{sTC}, 15")
    a(f"s_lshl_b32 s50, s{sCS}, 7")
    a(f"s_add_u32 s{sRES}, s{sRES}, s50")
    a("s_lshr_b32 s50, s3, 1")
    a("s_lshl_b32 s50, s50, 5")
    a(f"s_add_u32 s{sRES}, s{sRES}, s50")
    a(f"v_lshrrev_b32 v{VWR0}, 2, v1")
    a(f"v_lshlrev_b32 v{VWR0}, 10, v{VWR0}")
    a(f"v_and_b32 v{VWR1}, 3, v1")
    a(f"v_lshl_add_u32 v{VWR0}, v{VWR1}, 4, v{VWR0}")
    a(f"v_xor_b32 v{VWR0}, s50, v{VWR0}")
    a(f"v_xor_b32 v{VWR1}, 64, v{VWR0}")
    a("s_lshl_b32 s50, s3, 10")
    a(f"s_add_u32 s50, s50, {L_STG}")
    a(f"v_add_u32 v{VST}, s50, v2")
    tr_addr(a, VTR, VD1)
    a(f"v_add_u32 v{VTR}, s50, v{VTR}")
    a(f"v_lshrrev_b32 v{VD1}, 1, v1")
    a(f"v_xor_b32 v{VD3}, 4, v{VD1}")
    a(f"v_mul_u32_u24 v{VD1}, 2752, v{VD1}")
    a(f"v_mul_u32_u24 v{VD3}, 2752, v{VD3}")
    a("v_and_b32 v91, 1, v1")
    a(f"v_lshl_add_u32 v{VD1}, v91, 4, v{VD1}")
    a(f"v_lshl_add_u32 v{VD3}, v91, 4, v{VD3}")
    a("s_lshr_b32 s51, s3, 1")
    a("s_lshl_b32 s51, s51, 17")
    a(f"s_lshl_b32 s50, s{sCS}, 7")
    a("s_add_u32 s51, s51, s50")
    a(f"s_mul_i32 s52, s3, {11*16*KB}")
    a("s_add_u32 s52, s52, s50")
    a(f"s_mul_i32 s53, s3, {32*2752}")
    a(f"s_mul_i32 s50, s{sM}, 96")
    a("s_add_u32 s53, s53, s50")
    a("s_lshl_b32 s54, s3, 10")
    a("s_mov_b32 s48, 0x0000ffff\ns_mov_b32 s49, 0x0000ffff")
    a(f"s_lshl_b32 s55, s{sHEAD}, 17")
    a(f"s_add_u32 s55, s55, {WS_KV}")
    a(f"s_mul_i32 s47, s3, {6*KB}")
    a(f"s_add_u32 s47, s47, {16*KB}")
    a("s_lshl_b32 s46, s3, 13")
    a(f"s_add_u32 s46, s46, {64*KB}")

def attn_setup2(a):
    for i in range(16): a(f"v_mov_b32 v{VF+i}, 0")
    for i in range(16): a(f"v_mov_b32 v{O+i}, 0")
    a("s_mov_b32 exec_lo, 0x00110000\ns_mov_b32 exec_hi, 0x00110000")
    for i in range(16): a(f"v_mov_b32 v{VF+i}, 0x3f803f80")
    exec_all(a)

def wreg(f): return WO + 4*f
def wtr(a, f):
    a(f"ds_write_b128 v{VST}, {vr(wreg(f),4)}")
    tr2(a, wreg(f), VTR, 0)

def attn_loop(a, older):
    NT = 64
    WSCH = {11 + (5*p)//2: p for p in range(19)}
    DSCH = {}
    for t0, hf, mat in ((25, 0, 0), (35, 0, 1), (49, 1, 0), (53, 1, 1)):
        for j in range(3): DSCH[t0+j] = (hf, 2*j+mat)
    def rdK(t): a(f"ds_read_b128 {vr(KF+4*(t&1),4)}, v{VK if t < 32 else VK2} offset:{(t%32)*2048}")
    def rdV(t):
        a("s_mov_b64 exec, s[48:49]")
        for jj in range(2): a(f"ds_read_b128 {vr(VF+8*(t&1)+4*jj,4)}, v{VV if t < 32 else VV2} offset:{(t%32)*2048+512*jj}")
        exec_all(a)
    def qk(t): mfma(a, SB if t & 1 else SA, KF+4*(t&1), Q, "0")
    def pv(t, jj):
        S = SB if t & 1 else SA
        a(f"v_smfmac_f32_32x32x32_bf16 {vr(O,16)}, {vr(VF+8*(t&1)+4*jj,4)}, {vr(S+8*jj,8)}, v{IDX}")
    def wload(f):
        if f < 16: s, srdn = 51, SWO
        else: s, srdn = 52, SW2
        a(f"buffer_load_dwordx4 {vr(wreg(f),4)}, v{VWR1 if f & 1 else VWR0}, {R(srdn)}, s{s} offen")
        if f & 1: a(f"s_add_u32 s{s}, s{s}, {16*KB}")
    def kvp(stage, u):
        if u % 4 == 0:
            a(f"s_add_u32 m0, s{47 if stage == 1 else 46}, {u*KB}")
            a(f"s_add_u32 s45, s55, m0")
        a(f"buffer_load_dwordx4 v2, {R(SWS)}, s45 offen offset:{(u%4)*KB} sc1 lds", f"kv{stage}")
    def w13(hf, u):
        mat, j = u & 1, u >> 1
        a(f"s_add_u32 m0, s54, {hf*48*KB + mat*24*KB + j*8*KB}")
        a(f"s_add_u32 s50, s53, {hf*256*2752 + j*32}")
        a(f"buffer_load_dwordx4 v{VD3 if mat else VD1}, {R(SW3 if mat else SW1)}, s50 offen lds")
    if not older: a.waitvm("kv0")
    a("s_barrier")
    pm(a, "b0")
    a(f"ds_read_b128 {vr(Q,4)}, v{VST}")
    rdK(0); rdK(1); rdV(0)
    qk(0)
    if not older: a("s_setprio 1")
    for t in range(NT):
        S = SB if t & 1 else SA
        def ex(lo, hi):
            for r in range(lo, hi): a(f"v_exp_f32 v{S+r}, v{S+r}")
        if older:
            if t % 4 == 0: a("s_setprio 2")
            if t % 4 == 3: a("s_setprio 0")
        pm(a, f"bt{t}")
        if t == 6: a.waitvm("kv1")
        if t == 24: a.waitvm("kv2")
        if t in (6, 24, 48): a("s_barrier")
        pm(a, f"bu{t}")
        ex(0, 2)
        if t > 0: pv(t-1, 1)
        sj = OPT["sj"]
        if t < 3: kvp(1, 2*t); kvp(1, 2*t+1)
        if 3 <= t < 11: kvp(2, t-3)
        if t in WSCH and sj & 1: wload(2*WSCH[t]); wload(2*WSCH[t]+1)
        if t in DSCH and sj & 2: w13(*DSCH[t])
        if t == 56: a(f"buffer_load_dwordx4 {vr(XRES,4)}, v{VRES}, {R(SX)}, s{sRES} offen")
        if t == 58:
            a(f"s_lshl_b32 s44, s{sG}, 7")
            a(f"s_add_u32 s44, s44, {WS_IDS}")
            a(f"buffer_load_dword v89, v90, {R(SWS)}, s44 offen sc1")
        ex(2, 7)
        if t + 1 < NT: qk(t+1)
        if t + 2 < NT: rdK(t+2)
        ex(7, 12)
        pv(t, 0)
        if t + 1 < NT: rdV(t+1)
        ex(12, 16)
    pv(NT-1, 1)
    a("s_setprio 0")
    a("s_waitcnt vmcnt(0) lgkmcnt(0)")
    ids_check(a, 89)
    a("s_nop 15\ns_nop 3")

NPRE = 8
def attn_finish(a):
    pm(a, "b9")
    a("v_mov_b32 v3, 0")
    for r in range(8): a(f"v_fma_f32 v3, v{O+r}, 0, v3")
    a("v_cmp_u_f32 vcc, v3, v3")
    a(f"v_mov_b32 v3, {fh(2.0**-64)}")
    a(f"v_cmp_nle_f32 s[42:43], v3, v{O+8}")
    a(f"v_mov_b32 v3, {fh(2.0**64)}")
    a(f"v_cmp_nge_f32 s[44:45], v3, v{O+8}")
    a("s_or_b64 vcc, vcc, s[42:43]")
    a("s_or_b64 vcc, vcc, s[44:45]")
    a("s_cbranch_scc1 L_fallback")
    a("L_attn_fin:")
    a(f"v_rcp_f32 v3, v{O+8}")
    a(f"s_lshl_b32 s42, s{sTT}, 5")
    a(f"s_add_u32 s42, s42, s{sHEAD}")
    a("s_lshl_b32 s43, s42, 2")
    a("s_lshl_b32 s42, s42, 10")
    a(f"s_add_u32 s42, s42, {WS_O}")
    a(f"s_add_u32 s43, s43, {WS_FO}")
    for r in range(8): a(f"v_mul_f32 v{O+r}, v{O+r}, v3")
    pack8(a, KF, O)
    a(f"buffer_store_dwordx4 {vr(KF,4)}, v2, {R(SWS)}, s42 offen sc1")
    for f in range(NPRE): wtr(a, f)

def fallback(a):
    a("L_fallback:")
    a(f"s_lshl_b32 s42, s{sHEAD}, 17")
    a(f"s_add_u32 s42, s42, {WS_KV}")
    a("s_mov_b32 s43, s42")
    a("v_mov_b32 v3, 0xff800000")
    a("s_mov_b32 s44, 64")
    a("L_fb_max:")
    a(f"buffer_load_dwordx4 {vr(KF,4)}, v2, {R(SWS)}, s43 offen sc1")
    a("s_add_u32 s43, s43, 2048")
    mfma(a, SA, KF, Q, "0")
    for r in range(0, 16, 2): a(f"v_max3_f32 v3, v3, v{SA+r}, v{SA+r+1}")
    a("s_sub_u32 s44, s44, 1")
    a("s_cmp_lg_u32 s44, 0")
    a("s_cbranch_scc1 L_fb_max")
    a(f"v_mov_b32 v{SB}, v3")
    a(f"v_permlane32_swap_b32 v{SB}, v3")
    a(f"v_max_f32 v3, v3, v{SB}")
    for r in range(16):
        a(f"v_sub_f32 v{SB+r}, 0, v3")
        a(f"v_mov_b32 v{O+r}, 0")
    a("s_mov_b32 s44, 64")
    a("L_fb_pv:")
    a(f"buffer_load_dwordx4 {vr(KF,4)}, v2, {R(SWS)}, s42 offen sc1")
    a("s_mov_b64 exec, s[48:49]")
    for jj in range(2): a(f"buffer_load_dwordx4 {vr(VF+4*jj,4)}, v{VV}, {R(SWS)}, s42 offen offset:{512*jj} sc1")
    exec_all(a)
    a("s_add_u32 s42, s42, 2048")
    mfma(a, SA, KF, Q, vr(SB, 16))
    for r in range(16): a(f"v_exp_f32 v{SA+r}, v{SA+r}")
    for jj in range(2): a(f"v_smfmac_f32_32x32x32_bf16 {vr(O,16)}, {vr(VF+4*jj,4)}, {vr(SA+8*jj,8)}, v{IDX}")
    a("s_nop 15\ns_nop 3")
    a("s_sub_u32 s44, s44, 1")
    a("s_cmp_lg_u32 s44, 0")
    a("s_cbranch_scc1 L_fb_pv")
    a("s_branch L_attn_fin")

VA1, VA2 = 254, 255
def phaseC(a):
    tr_addr(a, VA1, 3, row_shift=5, cg_mul=24*KB+128)
    a(f"v_xor_b32 v{VA2}, 128, v{VA1}")
    a("s_lshr_b32 s44, s3, 2")
    a(f"s_mul_i32 s44, s44, {48*KB}")
    a("s_and_b32 s45, s3, 3")
    a("s_lshl_b32 s45, s45, 11")
    a("s_add_u32 s44, s44, s45")
    a(f"v_add_u32 v88, s44, v{VA1}")
    a(f"v_add_u32 v89, s44, v{VA2}")
    for i in range(4): a(f"v_mov_b32 v{84+i}, 0x3f803f80")
    a.waitvm()
    flag_store(a, 43, 3, local=False)
    pm(a, "c0")
    for f in range(NPRE, 16): wtr(a, f)
    a.waitlg()
    pm(a, "c0b")
    a("s_barrier")
    for j in range(3):
        for kk in range(4): tr2(a, 4+16*j+4*kk, 88, j*8*KB + kk*512, 89)
    accs = [52, 68, 4]
    for j in range(3):
        for kk in range(4): mfma(a, accs[j], 84, 4+16*j+4*kk, "0" if kk == 0 else None)
    a("v_and_b32 v90, 31, v1")
    a("v_lshlrev_b32 v90, 2, v90")
    a(f"v_add_u32 v91, {L_CS13}, v90")
    exec_lo32(a)
    for j in range(3): a(f"ds_add_f32 v91, v{accs[j]} offset:{128*j}")
    exec_all(a)
    a("s_lshr_b32 s46, s3, 1")
    a(f"s_lshl_b32 s44, s{sTC}, 5")
    a("s_lshl_b32 s45, s46, 3")
    a("s_add_u32 s44, s44, s45")
    a("s_lshl_b32 s45, s44, 10")
    a(f"s_add_u32 s45, s45, {WS_O}")
    a("s_lshl_b32 s44, s44, 2")
    a(f"s_add_u32 s44, s44, {WS_FO}")
    a("s_mov_b64 exec, 0xff")
    poll(a, lambda: a(f"buffer_load_dword v3, v90, {R(SWS)}, s44 offen sc1"), [3])
    exec_all(a)
    pm(a, "c1")
    for kk in range(8):
        if kk == 4: a("s_add_u32 s45, s45, 4096")
        a(f"buffer_load_dwordx4 {vr(4+4*kk,4)}, v2, {R(SWS)}, s45 offen offset:{(kk&3)*1024} sc1")
    for s in range(1, 4):
        a(f"s_xor_b32 s44, s3, {2*s}")
        a(f"s_mul_i32 s44, s44, {6*KB}")
        a(f"s_add_u32 s44, s44, {L_REDC + (s-1)*2*KB}")
        a(f"v_add_u32 v{84+s}, s44, v2")
    a(f"s_mul_i32 s44, s3, {6*KB}")
    a(f"s_add_u32 s44, s44, {L_REDC}")
    a("v_add_u32 v84, s44, v2")
    for kk in range(8):
        for tj in range(2): mfma(a, 36+16*tj, WO+4*(2*kk+tj), 4+4*kk, "0" if kk == 0 else None)
    for s in (1, 2, 3):
        b = 36 + 8*s
        a(f"ds_write_b128 v{84+s}, {vr(b,4)}")
        a(f"ds_write_b128 v{84+s}, {vr(b+4,4)} offset:1024")
    for j in range(4):
        a(f"v_lshlrev_b32 v{4+2*j}, 16, v{XRES+j}")
        a(f"v_and_b32 v{5+2*j}, 0xffff0000, v{XRES+j}")
    for r in range(8): a(f"v_add_f32 v{36+r}, v{36+r}, v{4+r}")
    a.waitlg()
    a("s_barrier")
    for s in range(3):
        a(f"ds_read_b128 {vr(44+8*s,4)}, v84 offset:{s*2048}")
        a(f"ds_read_b128 {vr(48+8*s,4)}, v84 offset:{s*2048+1024}")
    a(f"s_lshl_b32 s44, s{sTC}, 5")
    a(f"s_lshl_b32 s45, s{sCS}, 2")
    a("s_add_u32 s44, s44, s45")
    a("s_add_u32 s44, s44, s46")
    a("s_lshl_b32 s45, s44, 2")
    a("s_lshl_b32 s44, s44, 10")
    a(f"s_add_u32 s44, s44, {WS_H}")
    a(f"s_add_u32 s45, s45, {WS_FH}")
    for s in range(3):
        for r in range(8): a(f"v_add_f32 v{36+r}, v{36+r}, v{44+8*s+r}")
    pack8(a, HB, 36)
    flavored(a, [f"buffer_store_dwordx4 {vr(HB,4)}, v2, {R(SWS)}, s44 offen"])
    a("v_add_f32 v4, v36, v37\nv_mul_f32 v5, v36, v36\nv_fmac_f32 v5, v37, v37")
    for r in range(2, 8):
        a(f"v_add_f32 v4, v4, v{36+r}")
        a(f"v_fmac_f32 v5, v{36+r}, v{36+r}")
    a("v_mov_b32 v6, v4\nv_mov_b32 v7, v5")
    a("v_permlane32_swap_b32 v6, v4\nv_permlane32_swap_b32 v7, v5")
    a("v_add_f32 v4, v4, v6\nv_add_f32 v5, v5, v7")
    a("s_and_b32 s44, s3, 1")
    a("s_lshl_b32 s44, s44, 8")
    a(f"s_add_u32 s44, s44, {L_ST2}")
    a("v_lshl_add_u32 v6, v90, 1, s44")
    exec_lo32(a)
    a("ds_add_f32 v6, v4\nds_add_f32 v6, v5 offset:4")
    exec_all(a)
    for j in range(3): a(f"v_mov_b32 v{8+j}, 0")
    exec_lo32(a)
    for j in range(3): a(f"ds_read_b32 v{8+j}, v91 offset:{128*j}")
    exec_all(a)
    a.waitvm()
    flag_store(a, 45, 3)
    pm(a, "c2")
    a.waitlg()
    a("s_barrier")
    lab = a.label("nost")
    a("s_cmp_ge_u32 s3, 2")
    a(f"s_cbranch_scc1 {lab}")
    a("ds_read_b64 v[4:5], v6")
    a(f"s_lshl_b32 s44, s{sTC}, 3")
    a(f"s_add_u32 s44, s44, s{sCS}")
    a("s_lshl_b32 s44, s44, 9")
    a(f"s_add_u32 s44, s44, {WS_ST2}")
    a(f"v_mov_b32 v13, s{sT}\nv_mov_b32 v15, s{sT}")
    a("v_lshlrev_b32 v7, 2, v90")
    a("v_mov_b32 v12, v4\nv_mov_b32 v14, v5")
    exec_lo32(a)
    flavored(a, [f"buffer_store_dwordx4 v[12:15], v7, {R(SWS)}, s44 offen"])
    exec_all(a)
    a("s_waitcnt vmcnt(0)")
    a(f"{lab}:")

def bump(a):
    lab2 = a.label("nobump")
    a("s_or_b32 s44, s2, s3")
    a("s_cmp_lg_u32 s44, 0")
    a(f"s_cbranch_scc1 {lab2}")
    a("v_mov_b32 v3, s63")
    a("s_mov_b64 exec, 1")
    a(f"buffer_store_dword v3, off, {R(SWS)}, 0 sc1")
    a("s_waitcnt vmcnt(0)")
    a(f"{lab2}:")

def phaseD(a):
    ACC, WF, HR, CSF, STL, MF, C1, IR = 4, 52, 76, 124, 136, 152, 244, 245
    NR = 12
    a(f"s_cmp_ge_u32 s{sM}, 29")
    a("s_cbranch_scc1 L_dskip")
    for j in range(3): hilo(a, CSF+4*j, 8+j, 246, True)
    a(f"s_lshl_b32 s46, s{sG}, 3")
    a("s_add_u32 s46, s46, s3")
    a("s_lshl_b32 s44, s46, 7")
    a(f"s_add_u32 s44, s44, {WS_FH}")
    a("s_lshl_b32 s45, s46, 15")
    a(f"s_add_u32 s45, s45, {WS_H}")
    a("s_lshl_b32 s47, s46, 12")
    a(f"s_add_u32 s47, s47, {WS_ST2}")
    a("v_lshrrev_b32 v3, 5, v1")
    a("v_lshlrev_b32 v3, 11, v3")
    a("v_lshl_add_u32 v247, v90, 2, v3")
    def rdW(ks, j, b):
        tr2(a, WF+12*b+4*j, VA1, j*8*KB + (ks & 15)*512, VA2)
    for j in range(3): rdW(0, j, 0)
    lab = a.label("dyoung")
    a("s_cmp_ge_u32 s3, 4")
    a(f"s_cbranch_scc1 {lab}")
    a("s_setprio 2")
    a(f"{lab}:")
    exec_lo32(a)
    poll(a, lambda: a(f"buffer_load_dword v3, v90, {R(SWS)}, s44 offen sc1"), [3])
    exec_all(a)
    pm(a, "d0")
    def ldH(ks):
        if ks and ks % 4 == 0: a("s_add_u32 s45, s45, 4096")
        a(f"buffer_load_dwordx4 {vr(HR+4*(ks%NR),4)}, v2, {R(SWS)}, s45 offen offset:{(ks&3)*1024} sc1")
    def ldst():
        for p in range(4): a(f"buffer_load_dwordx4 {vr(STL+4*p,4)}, v247, {R(SWS)}, s47 offen offset:{p*512} sc1")
    def stats():
        poll(a, ldst, [STL+1, STL+3, STL+5, STL+7, STL+9, STL+11, STL+13, STL+15], first_issued=True)
        for p in range(1, 4):
            a(f"v_add_f32 v{STL}, v{STL}, v{STL+4*p}")
            a(f"v_add_f32 v{STL+2}, v{STL+2}, v{STL+4*p+2}")
        a(f"v_mov_b32 v{STL+1}, v{STL}\nv_mov_b32 v{STL+3}, v{STL+2}")
        a(f"v_permlane32_swap_b32 v{STL+1}, v{STL}\nv_permlane32_swap_b32 v{STL+3}, v{STL+2}")
        a(f"v_add_f32 v{STL}, v{STL}, v{STL+1}\nv_add_f32 v{STL+2}, v{STL+2}, v{STL+3}")
        a(f"v_mul_f32 v{STL}, {fh(-1/512)}, v{STL}")
        a(f"v_mul_f32 v{STL+1}, v{STL}, v{STL}")
        a(f"v_mov_b32 v{STL+3}, {fh(1/512)}")
        a(f"v_fma_f32 v{IR}, v{STL+2}, v{STL+3}, -v{STL+1}")
        a(f"v_max_f32 v{IR}, 0, v{IR}")
        a(f"v_add_f32 v{IR}, {fh(1e-5)}, v{IR}")
        a(f"v_rsq_f32 v{C1}, v{IR}")
        hilo(a, MF, STL, STL+4, False)
        a(f"v_mul_f32 v{C1}, {fh(-LOG2E)}, v{C1}")
        a(f"s_mul_i32 s44, s46, 86")
        a(f"s_mul_i32 s45, s{sM}, 3")
        a("s_add_u32 s44, s44, s45")
        a("s_lshl_b32 s44, s44, 10")
        a(f"s_add_u32 s44, s44, {WS_ACT}")
    seq = [(j, ks) for j in range(3) for ks in range(24, 32)]
    def rdT(n):
        j, ks = seq[n]
        tr2(a, WF+4*(n%6), VA1, j*8*KB + (ks & 15)*512, VA2)
    for ks in range(NR): ldH(ks)
    for ks in range(24):
        b = ks & 1
        if ks == 15:
            a(f"v_add_u32 v{VA1}, {48*KB}, v{VA1}\nv_add_u32 v{VA2}, {48*KB}, v{VA2}")
        if ks == 22: stats()
        for j in range(3):
            if ks < 23: rdW(ks+1, j, b ^ 1)
            else: rdT(j)
            mfma(a, ACC+16*j, WF+12*b+4*j, HR+4*(ks%NR), "0" if ks == 0 else None)
        if ks + NR < 32: ldH(ks+NR)
        if 1 <= ks < 23: wtr(a, 15+ks)
        if ks == 8: ldst()
        pm(a, f"dk{ks}")
    def epi(j):
        c = ACC + 16*j; T = STL + 8*(j & 1)
        L = []
        for r in range(8): L.append(f"v_mul_f32 v{T+r}, v{C1}, v{c+r}")
        for r in range(8): L.append(f"v_exp_f32 v{T+r}, v{T+r}")
        for r in range(8): L.append(f"v_mul_f32 v{c+r}, v{c+r}, v{c+8+r}")
        for r in range(8): L.append(f"v_fma_f32 v{T+r}, v{T+r}, v{IR}, v{IR}")
        for r in range(8): L.append(f"v_rcp_f32 v{T+r}, v{T+r}")
        for r in range(8): L.append(f"v_mul_f32 v{c+r}, v{c+r}, v{T+r}")
        for q in range(4): L.append(f"v_cvt_pk_bf16_f32 v{c+8+q}, v{c+2*q}, v{c+2*q+1}")
        return L
    def st(j):
        l = f"buffer_store_dwordx4 {vr(ACC+16*j+8,4)}, v2, {R(SWS)}, s44 offen offset:{j*1024}"
        if j == 2:
            lab = a.label("no86")
            a.waitvm()
            a(f"s_cmp_eq_u32 s{sM}, 28")
            a(f"s_cbranch_scc1 {lab}")
            flavored(a, [l])
            a.waitvm()
            a(f"{lab}:")
        else: flavored(a, [l])
    pend = []
    for n, (j, ks) in enumerate(seq):
        if n + 3 < len(seq): rdT(n+3)
        mfma(a, ACC+16*j, WF+4*(n%6), HR+4*(ks%NR))
        if ks == 31:
            pm(a, f"dg{j}")
            mfma(a, ACC+16*j, CSF+4*j, MF)
            if pend:
                for l in pend: a(l)
                st(j-1)
            pend = epi(j)
        elif pend and ks >= 26:
            for l in pend[:10]: a(l)
            pend = pend[10:]
    for l in pend: a(l)
    st(2)
    a("s_lshl_b32 s44, s46, 5")
    a(f"s_add_u32 s44, s44, s{sM}")
    a("s_lshl_b32 s44, s44, 2")
    a(f"s_add_u32 s44, s44, {WS_FA}")
    flag_store(a, 44, 3)
    a("s_setprio 0")
    a("s_waitcnt vmcnt(1) lgkmcnt(0)")
    a("s_branch L_djoin")
    a("L_dskip:")
    for f in range(16, 38): wtr(a, f)
    a("s_waitcnt lgkmcnt(0)")
    a("L_djoin:")
    pm(a, "d9")
    a("s_barrier")

def phaseE(a):
    AF, ACC = 4, 92
    a("s_mul_i32 s46, s3, 11")
    a("s_mul_i32 s44, s46, 43691\ns_lshr_b32 s44, s44, 17")
    a("s_add_u32 s45, s46, 10\ns_mul_i32 s45, s45, 43691\ns_lshr_b32 s45, s45, 17\ns_min_u32 s45, s45, 28")
    a("s_sub_u32 s45, s45, s44\ns_add_u32 s45, s45, 1")
    a("s_bfm_b32 s50, s45, s44")
    a(f"s_and_b32 s44, s{sTC}, 0xfffffffe")
    a("s_lshl_b32 s44, s44, 7")
    a(f"s_add_u32 s44, s44, {WS_FA}")
    a("v_lshlrev_b32 v3, 2, v1")
    for ti in range(2):
        a(f"s_xor_b32 s{52+ti}, s{sTC}, {ti}")
        a(f"s_mul_i32 s{52+ti}, s{52+ti}, 86")
        a(f"s_add_u32 s{54+ti}, s{52+ti}, 85")
        a(f"s_add_u32 s{52+ti}, s{52+ti}, s46")
        a(f"s_lshl_b32 s{52+ti}, s{52+ti}, 10\ns_lshl_b32 s{54+ti}, s{54+ti}, 10")
        a(f"s_add_u32 s{52+ti}, s{52+ti}, {WS_ACT}\ns_add_u32 s{54+ti}, s{54+ti}, {WS_ACT}")
    a("s_mov_b32 exec_lo, s50\ns_mov_b32 exec_hi, s50")
    poll(a, lambda: a(f"buffer_load_dword v244, v3, {R(SWS)}, s44 offen sc1"), [244])
    exec_all(a)
    pm(a, "e0")
    for ti in (1, 0):
        for kk in range(11):
            d = vr(AF + 44*ti + 4*kk, 4)
            if kk < 9:
                if kk in (4, 8): a(f"s_add_u32 s{52+ti}, s{52+ti}, 4096")
                a(f"buffer_load_dwordx4 {d}, v2, {R(SWS)}, s{52+ti} offen offset:{(kk&3)*1024} sc1")
            else:
                a(f"s_add_u32 s50, s{52+ti}, {(kk-8)*1024}")
                a(f"s_min_u32 s50, s50, s{54+ti}")
                a(f"buffer_load_dwordx4 {d}, v2, {R(SWS)}, s50 offen sc1")
    pm(a, "e1")
    def wr(s):
        ti, half, tj = s & 1, (s >> 1) & 1, s >> 2
        b = ACC + 32*ti + 16*tj + 8*half
        a(f"s_xor_b32 s44, s3, {s}")
        a(f"s_mul_i32 s44, s44, {14*KB}")
        a(f"s_add_u32 s44, s44, {L_REDE + (s-1)*2*KB}")
        a(f"v_add_u32 v{244+(s&3)}, s44, v2")
        a(f"ds_write_b128 v{244+(s&3)}, {vr(b,4)}")
        a(f"ds_write_b128 v{244+(s&3)}, {vr(b+4,4)} offset:1024")
    for ti in (1, 0):
        for kk in range(11):
            for tj in range(2): mfma(a, ACC+32*ti+16*tj, W2+4*(2*kk+tj), AF+44*ti+4*kk, "0" if kk == 0 else None)
            if ti == 0 and kk in (2, 4, 6, 8): wr({2: 1, 4: 3, 6: 5, 8: 7}[kk])
            pm(a, f"e{ti}k{kk}")
    for j in range(4):
        a(f"v_lshlrev_b32 v{4+2*j}, 16, v{HB+j}")
        a(f"v_and_b32 v{5+2*j}, 0xffff0000, v{HB+j}")
    a(f"s_mul_i32 s45, s3, {14*KB}")
    a(f"v_add_u32 v3, s45, v2")
    for s in (2, 4, 6): wr(s)
    for r in range(8): a(f"v_add_f32 v{ACC+r}, v{ACC+r}, v{4+r}")
    a.waitlg()
    pm(a, "e3")
    a("s_barrier")
    pm(a, "e4")
    for s in range(7):
        a(f"ds_read_b128 {vr(4+8*s,4)}, v3 offset:{L_REDE+s*2048}")
        a(f"ds_read_b128 {vr(8+8*s,4)}, v3 offset:{L_REDE+s*2048+1024}")
    for s in range(7):
        for r in range(8): a(f"v_add_f32 v{ACC+r}, v{ACC+r}, v{4+8*s+r}")
    pack8(a, 4, ACC)
    a(f"buffer_store_dwordx4 v[4:7], v{VRES}, {R(SOUT)}, s{sRES} offen")
    pm(a, "e5")

def build():
    a = Asm()
    name = NAME + "_kernel"
    kernel_begin(a, name)
    prologue(a)
    stop = OPT["stop"]
    a("s_cmp_ge_u32 s3, 4")
    a("s_cbranch_scc1 L_helper")
    phaseA_mfma(a)
    if stop > 1: attn_setup(a)
    phaseA_mfma_pub(a)
    if stop > 1:
        attn_setup2(a)
        attn_loop(a, True)
    else: a("s_waitcnt vmcnt(0) lgkmcnt(0)")
    a("s_branch L_attn_done")
    a("L_helper:")
    phaseA_helper(a)
    if stop > 1:
        attn_setup(a); attn_setup2(a)
        phaseA_helper_load(a)
        attn_loop(a, False)
    else: a("s_waitcnt vmcnt(0) lgkmcnt(0)")
    a("L_attn_done:")
    if stop > 1:
        attn_finish(a)
        if stop > 2:
            phaseC(a)
            if stop > 3:
                phaseD(a)
                if stop > 4: phaseE(a)
            bump(a)
    prof_end(a)
    if stop > 1: fallback(a)
    a("L_exit:")
    a("s_endpgm")
    hdr = open("cdna_kernels/" + NAME + ".s.ref").read().split("; Override launch")[0]
    out = hdr + f"; @launch grid=(256,1,1) block=(512,1,1) lds={LDS_BYTES}\n"
    out += '.amdgcn_target "amdgcn-amd-amdhsa--gfx950"\n.text\n'
    out += a.finalize()
    out += '.section .rodata,"a"\n.p2align 6\n' + kernel_desc(name, 256)
    print("auto:", a.stats, "instrs", len(a.ins), file=sys.stderr)
    return out

if __name__ == "__main__":
    Prof.on = "prof" in sys.argv
    Prof.cyc = "cyc" in sys.argv
    OPT["fast"] = "fast" in sys.argv
    for x in sys.argv[2:]:
        if x.startswith("marks="): MARKS[:] = x[6:].split(",")
        elif "=" in x: OPT[x.split("=")[0]] = int(x.split("=")[1])
    open(sys.argv[1], "w").write(build())
```

```python
import re, copy, struct

def vr(b, n=1): return f"v{b}" if n == 1 else f"v[{b}:{b+n-1}]"
def sr(b, n=1): return f"s{b}" if n == 1 else f"s[{b}:{b+n-1}]"
def f2u(x): return struct.unpack("<I", struct.pack("<f", x))[0]
def fh(x): return hex(f2u(x))

TRANS = ("v_exp_f32", "v_log_f32", "v_rcp_f32", "v_rsq_f32", "v_sqrt_f32", "v_sin_f32", "v_cos_f32")
RE_V = re.compile(r"^-?\|?v(\d+)\|?$|^-?\|?v\[(\d+):(\d+)\]\|?$")
RE_S = re.compile(r"^-?\|?s(\d+)\|?$|^-?\|?s\[(\d+):(\d+)\]\|?$")

def regs(tok):
    tok = tok.strip()
    m = RE_V.match(tok)
    if m:
        if m.group(1) is not None: return {int(m.group(1))}, set()
        return set(range(int(m.group(2)), int(m.group(3)) + 1)), set()
    m = RE_S.match(tok)
    if m:
        if m.group(1) is not None: return set(), {int(m.group(1))}
        return set(), set(range(int(m.group(2)), int(m.group(3)) + 1))
    if tok == "vcc": return set(), {106, 107}
    if tok == "vcc_lo": return set(), {106}
    if tok == "vcc_hi": return set(), {107}
    if tok == "exec": return set(), {126, 127}
    if tok == "exec_lo": return set(), {126}
    if tok == "exec_hi": return set(), {127}
    if tok == "m0": return set(), {124}
    return set(), set()

class Ins:
    __slots__ = ("text", "op", "kind", "dv", "sv", "ds", "ss", "tag", "srcC", "srcAB", "wide", "dpp", "target", "passes", "n")
    def __init__(self, text, tag=None):
        self.text = text; self.tag = tag
        self.dv = set(); self.sv = set(); self.ds = set(); self.ss = set()
        self.srcC = set(); self.srcAB = set(); self.wide = False; self.dpp = False; self.target = None; self.passes = 0; self.n = 0
        t = text.split(";")[0].strip()
        if t.endswith(":"):
            self.kind = "label"; self.op = t[:-1]; return
        if t.startswith("."):
            self.kind = "dir"; self.op = t; return
        if t.startswith("@"):
            self.kind = "pseudo"; self.op = t; return
        if not t:
            self.kind = "dir"; self.op = ""; return
        sp = t.split(None, 1)
        op = self.op = sp[0]
        rest = sp[1] if len(sp) > 1 else ""
        ops = []; cur = ""; depth = 0
        for ch in rest:
            if ch in "[(": depth += 1
            if ch in "])": depth -= 1
            if ch == "," and depth == 0: ops.append(cur.strip()); cur = ""
            else: cur += ch
        if cur.strip(): ops.append(cur.strip())
        mods = ""
        if ops:
            q = ops[-1].split(None, 1)
            ops[-1] = q[0]
            mods = q[1] if len(q) > 1 else ""
        def S(i):
            v, s = regs(ops[i]); self.sv |= v; self.ss |= s; return v
        def D(i):
            v, s = regs(ops[i]); self.dv |= v; self.ds |= s; return v
        if op.startswith("v_mfma"):
            self.kind = "mfma"; D(0); self.srcAB = S(1) | S(2); self.srcC = S(3); self.passes = 8 if "32x32" in op else 4
        elif op.startswith("v_smfmac"):
            self.kind = "mfma"; d = D(0); self.srcAB = S(1) | S(2) | S(3); self.sv |= d; self.srcC = set(d); self.passes = 16 if "32x32" in op else 8
        elif op.startswith("v_"):
            self.kind = "trans" if op.replace("_e32", "").replace("_e64", "") in TRANS else "valu"
            if op.startswith("v_permlane"):
                D(0); D(1); S(0); S(1); self.dpp = True
            elif op.startswith("v_readfirstlane") or op.startswith("v_readlane"):
                D(0); [S(i) for i in range(1, len(ops))]
            elif op.startswith("v_cmp"):
                assert not op.startswith("v_cmpx")
                D(0); [S(i) for i in range(1, len(ops))]
            else:
                D(0); [S(i) for i in range(1, len(ops))]
                if op.startswith(("v_fmac", "v_mac", "v_dot2c", "v_writelane")): S(0)
                if op.startswith("v_cndmask") and len(ops) == 3: self.ss |= {106, 107}
                if "_co_" in op: raise NotImplementedError(op)
            if any(k in mods for k in ("quad_perm", "row_", "wave_")):
                self.dpp = True
                if "bound_ctrl" not in mods or "row_mask" in mods or "bank_mask" in mods: S(0)
        elif op.startswith("buffer_load"):
            if re.search(r"\blds\b", mods):
                self.kind = "dma"; [S(i) for i in range(len(ops))]; self.ss |= {124}
            else:
                self.kind = "vload"; D(0); [S(i) for i in range(1, len(ops))]
        elif op.startswith("buffer_store") or op.startswith("buffer_atomic"):
            self.kind = "vstore"; [S(i) for i in range(len(ops))]
            self.wide = op.endswith("x4") or op.endswith("x3")
            if self.wide: self.srcC = regs(ops[0])[0]
        elif op.startswith("ds_read") or (op.startswith("ds_") and "_rtn_" in op):
            self.kind = "dsr"; D(0); [S(i) for i in range(1, len(ops))]
        elif op.startswith("ds_"):
            self.kind = "dsw"; [S(i) for i in range(len(ops))]
        elif op == "s_waitcnt":
            self.kind = "wait"
        elif op == "s_nop":
            self.kind = "nop"; self.n = int(ops[0], 0) + 1
        elif op.startswith("s_cbranch") or op == "s_branch":
            self.kind = "branch"; self.target = ops[0]
        elif op == "s_barrier": self.kind = "barrier"
        elif op == "s_endpgm": self.kind = "end"
        elif op.startswith(("s_load", "s_memtime", "s_memrealtime", "s_buffer_load")):
            self.kind = "smem"; D(0); [S(i) for i in range(1, len(ops))]
        elif op.startswith("s_"):
            self.kind = "salu"
            if op.startswith(("s_cmp", "s_setprio", "s_sleep", "s_bitcmp", "s_setreg")):
                [S(i) for i in range(len(ops))]
            else:
                D(0); [S(i) for i in range(1, len(ops))]
                if "saveexec" in op: self.ds |= {126, 127}
        else:
            raise ValueError("unknown instr: " + text)

class State:
    def __init__(self):
        self.vm = []
        self.lg = []
        self.slot = 0
        self.valu_w = {}
        self.trans_w = {}
        self.mfma_w = {}
        self.mfma_c = {}
        self.valu_sw = {}
        self.m0_w = -99
        self.store_d = {}
    def rebase(self, slot):
        d = slot - self.slot
        self.slot = slot
        for m in (self.valu_w, self.trans_w, self.valu_sw, self.store_d):
            for k in m: m[k] += d
        for m in (self.mfma_w, self.mfma_c):
            for k in m: m[k] = (m[k][0] + d,) + m[k][1:]
        self.m0_w += d
    def prune(self):
        for m in (self.valu_w, self.trans_w, self.valu_sw, self.store_d):
            for k in [k for k, v in m.items() if self.slot - v > 30]: del m[k]
        for m in (self.mfma_w, self.mfma_c):
            for k in [k for k, v in m.items() if self.slot - v[0] > 30]: del m[k]
    def merge(self, o, where):
        o = copy.deepcopy(o); o.rebase(self.slot)
        for name in ("vm", "lg"):
            a, b = getattr(self, name), getattr(o, name)
            d = {x[2]: list(x) for x in a}
            for x in b:
                if x[2] in d: d[x[2]][3] = min(d[x[2]][3], x[3])
                else: d[x[2]] = list(x)
            setattr(self, name, sorted(d.values(), key=lambda x: -x[3]))
        for m, n in ((self.valu_w, o.valu_w), (self.trans_w, o.trans_w), (self.valu_sw, o.valu_sw), (self.store_d, o.store_d)):
            for k, v in n.items(): m[k] = max(m.get(k, -99), v)
        for m, n in ((self.mfma_w, o.mfma_w), (self.mfma_c, o.mfma_c)):
            for k, v in n.items():
                if k not in m or m[k][0] < v[0]: m[k] = v
        self.m0_w = max(self.m0_w, o.m0_w)

MF_D = {4: 8, 8: 12, 16: 20}
MF_CO = {4: 6, 8: 10, 16: 18}
MF_WAR = {4: 3, 8: 7, 16: 15}

class Asm:
    def __init__(self):
        self.ins = []
        self.uid = 0
        self.stats = {"nop": 0, "wait": 0}
    def __call__(self, s, tag=None):
        for l in s.split("\n"):
            l = l.strip()
            if l: self.ins.append(Ins(l, tag))
    def c(self, s): self.ins.append(Ins("; " + s))
    def label(self, base):
        self.uid += 1
        return f"L_{base}_{self.uid}"
    def waitvm(self, tag=None): self(f"@waitvm {tag if tag is not None else '*'}")
    def waitlg(self, tag=None): self(f"@waitlg {tag if tag is not None else '*'}")

    def finalize(self):
        out = []
        st = State()
        saved = {}
        seen = set()
        live = True
        def emit(t):
            out.append(t if (t.endswith(":") or t.startswith(".")) else "    " + t)
        def do_wait(vm=None, lg=None):
            parts = []
            if vm is not None:
                vm = min(vm, 63); parts.append(f"vmcnt({vm})"); st.vm = [p for p in st.vm if p[3] < vm]
            if lg is not None:
                lg = min(lg, 15); parts.append(f"lgkmcnt({lg})"); st.lg = [p for p in st.lg if p[3] < lg]
            emit("s_waitcnt " + " ".join(parts)); st.slot += 1; self.stats["wait"] += 1
        def push(q, dst, tag, uid):
            for p in q: p[3] += 1
            q.append([frozenset(dst), tag, uid, 0])
        for uid, x in enumerate(self.ins):
            k = x.kind
            if k == "dir":
                emit(x.text)
                if x.text.startswith(".p2align 8"):
                    st = State(); live = True
                continue
            if k == "label":
                seen.add(x.op)
                if x.op in saved:
                    ss = saved.pop(x.op)
                    if not live:
                        base = st.slot
                        st = copy.deepcopy(ss[0]); ss = ss[1:]
                    for o in ss: st.merge(o, x.op)
                elif not live:
                    st = State()
                live = True
                emit(x.text); continue
            if k == "pseudo" and x.op == "@forget":
                continue
            if k == "pseudo":
                cmd, tag = x.op.split()
                q = st.vm if cmd == "@waitvm" else st.lg
                idx = [p[3] for p in q if tag == "*" or p[1] == tag]
                if idx:
                    n = min(idx)
                    if cmd == "@waitvm": do_wait(vm=n)
                    else: do_wait(lg=n)
                continue
            if k == "wait":
                mv = re.search(r"vmcnt\((\d+)\)", x.text); ml = re.search(r"lgkmcnt\((\d+)\)", x.text)
                do_wait(int(mv.group(1)) if mv else None, int(ml.group(1)) if ml else None)
                continue
            touch = x.sv | x.dv
            nv = nl = None
            for i, p in enumerate(st.vm):
                hit = p[0] & (x.sv if k == "vload" else touch)
                if hit: nv = p[3] if nv is None else min(nv, p[3])
            for i, p in enumerate(st.lg):
                hit = p[0] & (x.sv if k == "dsr" else touch)
                if hit: nl = p[3] if nl is None else min(nl, p[3])
            if nv is not None or nl is not None: do_wait(nv, nl)
            need = 0
            def req(slot, n):
                nonlocal need
                need = max(need, n - (st.slot - slot - 1))
            isv = k in ("valu", "trans")
            if k == "mfma":
                for r in x.sv:
                    if r in st.valu_w: req(st.valu_w[r], 2)
                for r in x.srcAB:
                    if r in st.mfma_w: req(st.mfma_w[r][0], MF_D[st.mfma_w[r][1]])
                for r in x.srcC:
                    if r in st.mfma_w:
                        s0, p0, d0 = st.mfma_w[r]
                        if not (d0 == frozenset(x.srcC) and p0 == x.passes): req(s0, MF_CO[p0])
                for r in x.dv - x.srcC:
                    if r in st.mfma_w and st.mfma_w[r][1] != x.passes: req(st.mfma_w[r][0], MF_CO[st.mfma_w[r][1]])
            else:
                for r in touch:
                    if r in st.mfma_w: req(st.mfma_w[r][0], MF_D[st.mfma_w[r][1]])
            if isv:
                for r in x.dv:
                    if r in st.mfma_c: req(st.mfma_c[r][0], MF_WAR[st.mfma_c[r][1]])
                    if r in st.store_d: req(st.store_d[r], 2)
                for r in x.sv:
                    if r in st.trans_w and k != "trans": req(st.trans_w[r], 1)
                    if x.dpp and r in st.valu_w: req(st.valu_w[r], 2)
                    if x.op.startswith(("v_readfirstlane", "v_readlane")) and r in st.valu_w: req(st.valu_w[r], 1)
                for r in x.ss:
                    if r in st.valu_sw: req(st.valu_sw[r], 4 if x.op.startswith(("v_readlane", "v_writelane")) else 2)
            if k in ("vload", "dsr"):
                for r in x.dv:
                    if r in st.store_d: req(st.store_d[r], 1)
            if k in ("vload", "vstore", "dma"):
                for r in x.ss:
                    if r in st.valu_sw: req(st.valu_sw[r], 5)
            if k in ("vload", "vstore", "dma", "dsr", "dsw"):
                for r in x.sv:
                    if r in st.trans_w: req(st.trans_w[r], 1)
            if k == "dma": req(st.m0_w, 1)
            while need > 0:
                n = min(need, 16)
                emit(f"s_nop {n-1}"); st.slot += n; need -= n; self.stats["nop"] += n
            emit(x.text)
            s = st.slot
            if isv:
                for r in x.dv:
                    st.valu_w[r] = s
                    if k == "trans": st.trans_w[r] = s
                    else: st.trans_w.pop(r, None)
                    st.mfma_w.pop(r, None)
                for r in x.ds: st.valu_sw[r] = s
            elif k == "mfma":
                for r in x.dv:
                    st.mfma_w[r] = (s, x.passes, frozenset(x.dv)); st.valu_w.pop(r, None); st.trans_w.pop(r, None)
                for r in x.srcC: st.mfma_c[r] = (s, x.passes)
            elif k == "salu" or k == "smem":
                if 124 in x.ds: st.m0_w = s
                for r in x.ds: st.valu_sw.pop(r, None)
            elif k == "vload": push(st.vm, x.dv, x.tag, uid)
            elif k in ("vstore", "dma"):
                push(st.vm, (), x.tag, uid)
                if x.wide:
                    for r in x.srcC: st.store_d[r] = s
            elif k == "dsr": push(st.lg, x.dv, x.tag, uid)
            elif k == "dsw": push(st.lg, (), x.tag, uid)
            assert not st.vm or max(p[3] for p in st.vm) <= 62, f"vmcnt overflow at {x.text}"
            if len(st.lg) > 15: st.lg = st.lg[-15:] if False else st.lg
            st.slot += x.n if k == "nop" else 1
            if k == "branch":
                st.prune()
                if x.target not in seen:
                    saved.setdefault(x.target, []).append(copy.deepcopy(st))
                if x.op == "s_branch": live = False
            if k == "end": live = False
            if s % 64 == 0: st.prune()
        assert not saved, f"unresolved labels {list(saved)}"
        return "\n".join(out) + "\n"

def kernel_begin(a, name):
    a(f".globl {name}\n.p2align 8\n.type {name},@function\n{name}:")

def kernel_desc(name, vgpr, sgpr=102, acc=None):
    if acc is None: acc = (vgpr + 3) // 4 * 4
    return f""".amdhsa_kernel {name}
  .amdhsa_next_free_vgpr {vgpr}
  .amdhsa_next_free_sgpr {sgpr}
  .amdhsa_accum_offset {acc}
  .amdhsa_group_segment_fixed_size 0
  .amdhsa_kernarg_size 80
  .amdhsa_user_sgpr_count 2
  .amdhsa_user_sgpr_kernarg_segment_ptr 1
  .amdhsa_system_sgpr_workgroup_id_x 1
.end_amdhsa_kernel
"""

def srd(a, d, base, nbytes):
    a(f"s_mov_b32 s{d}, s{base}")
    a(f"s_mov_b32 s{d+1}, s{base+1}")
    a(f"s_mov_b32 s{d+2}, {hex(nbytes)}")
    a(f"s_mov_b32 s{d+3}, 0x00020000")

PROF_OFF = 200 << 20
class Prof:
    on = False
    cyc = False
    NM = 12
def prof_begin(a):
    if Prof.on:
        a("s_memrealtime s[92:93]")
        a("s_memtime s[90:91]")
        for k in range(Prof.NM): a(f"s_mov_b32 s{64+2*k}, 0")
def prof_mark(a, k):
    if Prof.on: a(f"{'s_memtime' if Prof.cyc else 's_memrealtime'} s[{64+2*k}:{65+2*k}]")
def prof_end(a):
    if Prof.on:
        a("s_waitcnt vmcnt(0) lgkmcnt(0)")
        a("s_memrealtime s[94:95]")
        a("s_memtime s[88:89]")
        a("s_load_dwordx2 s[96:97], s[0:1], 72")
        a("s_getreg_b32 s91, hwreg(HW_REG_HW_ID)")
        a("s_getreg_b32 s93, hwreg(HW_REG_XCC_ID)")
        a("s_waitcnt lgkmcnt(0)")
        a("s_lshl_b32 s93, s93, 28")
        a("s_and_b32 s91, s91, 0xfffffff")
        a("s_or_b32 s91, s91, s93")
        a("s_sub_u32 s90, s88, s90")
        a(f"s_add_u32 s96, s96, {hex(PROF_OFF)}")
        a("s_addc_u32 s97, s97, 0")
        a(f"s_mov_b32 s98, {1 << 18}")
        a("s_mov_b32 s99, 0x00020000")
        a("s_mov_b64 exec, 1")
        a("s_lshl_b32 s88, s2, 10")
        a("s_lshl_b32 s89, s3, 6")
        a("s_add_u32 s88, s88, s89")
        a("v_mov_b32 v0, 0")
        a("v_mov_b32 v4, s92\nv_mov_b32 v5, s94\nv_mov_b32 v6, s90\nv_mov_b32 v7, s91")
        a("buffer_store_dwordx4 v[4:7], v0, s[96:99], s88 offen")
        for h in range(3):
            for k in range(4): a(f"v_mov_b32 v{8+4*h+k}, s{64+8*h+2*k}")
            a(f"buffer_store_dwordx4 v[{8+4*h}:{11+4*h}], v0, s[96:99], s88 offen offset:{16+16*h}")
    a("s_endpgm")
```

```python
import sys
from asm2 import *

NAME = "sequential_preLN__softmax_full_mha__glu_gated_swiglu__prompt"
KB = 1024; MB = 1 << 20
WS_EPOCH = 0
WS_IDS  = 4 * KB
WS_FQKV = 8 * KB
WS_FW   = 16 * KB
WS_CLR  = 20 * KB
WS_CSP  = 3 * MB
WS_ST2  = 128 * KB
WS_Q    = 1 * MB
WS_KV   = 4 * MB
WS_O    = 8 * MB
WS_H    = 10 * MB
WS_ACT  = 12 * MB
WS_WTO  = 18 * MB
WS_WT2  = 19 * MB
WS_WT13 = 21 * MB
WS_END  = 24 * MB
LOG2E = 1.4426950408889634
L_X    = 96 * KB
L_MISC = 156 * KB
L_CS13 = L_MISC + 768
L_ST2  = L_MISC + 1280
L_MFW  = L_MISC + 3584
L_RS   = L_MISC + 3840
L_CNT  = L_MISC + 1800
L_CN2  = L_MISC + 1804
L_PR1  = 112 * KB
L_PR2  = 152 * KB
L_STG  = 128 * KB
L_REDC = 96 * KB
L_REDE = (96 * KB, 0)
LDS_BYTES = 160 * KB
SX, SWQ, SWS, SWO, SW1, SW3, SW2, SOUT = 4, 8, 12, 16, 20, 24, 28, 32
sT, sG, sM, sFAST, sID, sCNT = 36, 37, 38, 39, 40, 41
sP, sTB, sHEAD, sTT, sTC, sCS, sRES = 56, 57, 58, 59, 60, 61, 62
POLL_LIMIT = 1 << 17
OPT = dict(stop=99, fast=False, lax=4, sj=7, tw=14, pc=6, tc=14, tc1=44, we=48, wl=5, da=47, db=60, ps=-1, nid=22, nck=28, xa=0, xo=1, sm=1, tf=4, oe=0, dn0=6, dpl=32, epl=11, cpr=0, dsp=0, dpr=2, cj=1, esp=0, en0=11, epr=4, ew0=0, pl=17, rb=16)

MARKS = "a0,a1,a2,a3,b0,b9,c0,c1,c2,d0,d9,e0".split(",")
def pm(a, name):
    if name in MARKS: prof_mark(a, MARKS.index(name))
def R(d, n=4): return sr(d, n)

def tr_addr(a, d, t, row_shift=6, cg_mul=32):
    a(f"v_lshrrev_b32 v{d}, 5, v1")
    a(f"v_lshlrev_b32 v{d}, {row_shift+3}, v{d}")
    a(f"v_bfe_u32 v{t}, v1, 2, 2")
    a(f"v_lshl_add_u32 v{d}, v{t}, {row_shift}, v{d}")
    a(f"v_bfe_u32 v{t}, v1, 4, 1")
    a(f"v_mul_u32_u24 v{t}, {cg_mul}, v{t}")
    a(f"v_add_u32 v{d}, v{d}, v{t}")
    a(f"v_and_b32 v{t}, 1, v1")
    a(f"v_lshl_add_u32 v{d}, v{t}, 4, v{d}")
    a(f"v_bfe_u32 v{t}, v1, 1, 1")
    a(f"v_lshl_add_u32 v{d}, v{t}, 3, v{d}")

def pi_lane(a, d, t):
    a(f"v_and_b32 v{d}, 0x33, v1")
    a(f"v_bfe_u32 v{t}, v1, 2, 1")
    a(f"v_lshl_add_u32 v{d}, v{t}, 3, v{d}")
    a(f"v_bfe_u32 v{t}, v1, 3, 1")
    a(f"v_lshl_add_u32 v{d}, v{t}, 2, v{d}")

def pack8(a, d, s):
    for j in range(4): a(f"v_cvt_pk_bf16_f32 v{d+j}, v{s+2*j}, v{s+2*j+1}")

def mfma(a, d, A, B, c=None):
    a(f"v_mfma_f32_32x32x16_bf16 {vr(d,16)}, {vr(A,4)}, {vr(B,4)}, {vr(d,16) if c is None else c}")

def tr2(a, d, addr, off, addr2=None, tag=None):
    a(f"ds_read_b64_tr_b16 {vr(d,2)}, v{addr} offset:{off}", tag)
    if addr2 is None: a(f"ds_read_b64_tr_b16 {vr(d+2,2)}, v{addr} offset:{off+256}", tag)
    else: a(f"ds_read_b64_tr_b16 {vr(d+2,2)}, v{addr2} offset:{off}", tag)

def exec_lo32(a): a("s_mov_b64 exec, 0xffffffff")
def exec_all(a): a("s_mov_b64 exec, -1")

def flavored(a, lines, tag=None):
    if not OPT["fast"]:
        for l in lines: a(l + " sc1", tag)
        return
    lf, ld = a.label("fast"), a.label("fdone")
    a(f"s_cmp_lg_u32 s{sFAST}, 0")
    a(f"s_cbranch_scc1 {lf}")
    for l in lines: a(l + " sc1", tag)
    a(f"s_branch {ld}")
    a(f"{lf}:")
    for l in lines: a(l, tag)
    a(f"{ld}:")

def flag_store(a, soff, vt, local=True):
    a(f"v_mov_b32 v{vt}, s{sT}")
    a("s_mov_b64 exec, 1")
    l = f"buffer_store_dword v{vt}, off, {R(SWS)}, s{soff}"
    if local: flavored(a, [l])
    else: a(l + " sc1")
    exec_all(a)

def poll(a, load, checks, first_issued=False):
    lp, dn, ck = a.label("poll"), a.label("pdone"), a.label("pchk")
    a(f"s_mov_b32 s{sCNT}, {1 << OPT['pl']}")
    if first_issued: a(f"s_branch {ck}")
    a(f"{lp}:")
    load()
    a("s_waitcnt vmcnt(0)")
    if first_issued: a(f"{ck}:")
    a(f"v_cmp_ne_u32 vcc, s{sT}, v{checks[0]}")
    for c in checks[1:]:
        a(f"v_cmp_ne_u32 s[42:43], s{sT}, v{c}")
        a("s_or_b64 vcc, vcc, s[42:43]")
    a(f"s_cbranch_vccz {dn}")
    a(f"s_sub_u32 s{sCNT}, s{sCNT}, 1")
    a(f"s_cbranch_scc0 {lp}")
    a(f"{dn}:")

def hilo(a, d, src, t, dup):
    a(f"v_and_b32 v{t}, 0xffff0000, v{src}")
    a(f"v_sub_f32 v{t+1}, v{src}, v{t}")
    if dup:
        a(f"v_cvt_pk_bf16_f32 v{d}, v{t}, v{t}")
        a(f"v_cvt_pk_bf16_f32 v{d+1}, v{t+1}, v{t+1}")
    else:
        a(f"v_cvt_pk_bf16_f32 v{d}, v{t}, v{t+1}")
        a(f"v_cvt_pk_bf16_f32 v{d+1}, v{t}, v{t+1}")
    a(f"v_mov_b32 v{d+2}, 0")
    a(f"v_mov_b32 v{d+3}, 0")

def allreduce32(a, v, t):
    for m in ("quad_perm:[1,0,3,2]", "quad_perm:[2,3,0,1]", "row_half_mirror", "row_mirror"):
        a(f"v_add_f32 v{v}, v{v}, v{v} {m} row_mask:0xf bank_mask:0xf")
    a(f"v_mov_b32 v{t}, v{v}")
    a(f"v_permlane16_swap_b32 v{t}, v{v}")
    a(f"v_add_f32 v{v}, v{v}, v{t}")

def ids_check(a, v):
    a(f"v_cmp_ne_u32 vcc, s{sID}, v{v}")
    a("s_cmp_eq_u64 vcc, 0")
    a(f"s_cselect_b32 s{sFAST}, 1, 0")

def prologue(a):
    a("s_cmp_ge_u32 s2, 256")
    a("s_cbranch_scc1 L_exit")
    a("s_load_dwordx16 s[40:55], s[0:1], 0")
    a("s_load_dwordx2 s[62:63], s[0:1], 72")
    prof_begin(a)
    a("v_and_b32 v1, 63, v0")
    a("v_lshrrev_b32 v2, 6, v0")
    a("v_readfirstlane_b32 s3, v2")
    a("v_lshlrev_b32 v2, 4, v1")
    a(f"s_and_b32 s{sG}, s2, 7")
    a(f"s_lshr_b32 s{sM}, s2, 3")
    a(f"s_lshr_b32 s{sP}, s{sM}, 4")
    a(f"s_lshl_b32 s{sTB}, s{sG}, 1")
    a(f"s_add_u32 s{sP}, s{sP}, s{sTB}")
    a(f"s_and_b32 s{sTB}, s{sM}, 15")
    a(f"s_bfe_u32 s{sHEAD}, s{sM}, 0x10003")
    a(f"s_lshl_b32 s{sTT}, s{sP}, 1")
    a(f"s_add_u32 s{sHEAD}, s{sHEAD}, s{sTT}")
    a(f"s_and_b32 s{sCS}, s{sM}, 7")
    a(f"s_mov_b32 s{sFAST}, 0")

def prologue2(a, part=3):
    if part & 1:
        a("s_waitcnt lgkmcnt(0)")
        a("s_load_dword s36, s[62:63], 0")
        srd(a, SX, 40, 2048*1024)
        srd(a, SWQ, 42, 512*3072)
    if not part & 2: return
    srd(a, SWS, 62, WS_END)
    srd(a, SWO, 44, 512*1024)
    srd(a, SW1, 48, 512*2752)
    srd(a, SW3, 50, 512*2752)
    srd(a, SW2, 52, 1376*1024)
    srd(a, SOUT, 54, 2048*1024)

def tag_ready(a):
    a("s_waitcnt lgkmcnt(0)")
    a(f"s_add_u32 s63, s{sT}, 1")
    a(f"s_mul_i32 s{sT}, s63, 0x9E3779B1")
    a(f"s_getreg_b32 s{sID}, hwreg(HW_REG_XCC_ID)")
    a(f"s_lshl_b32 s{sID}, s{sID}, 28")
    a(f"s_and_b32 s42, s{sT}, 0x0fffffff")
    a(f"s_or_b32 s{sID}, s{sID}, s42")

def wq_addr(a, d, t, sp):
    a(f"v_lshrrev_b32 v{d}, 5, v1")
    a(f"v_mul_u32_u24 v{d}, 3072, v{d}")
    a(f"v_bfe_u32 v{t}, v1, 2, 2")
    a(f"v_lshl_add_u32 v{d}, v{t}, 7, v{d}")
    a(f"v_bfe_u32 v{t}, v1, 3, 1")
    if sp is not None: a(f"v_xor_b32 v{t}, s{sp}, v{t}")
    a(f"v_lshl_add_u32 v{d}, v{t}, 6, v{d}")
    a(f"v_bfe_u32 v{t}, v1, 4, 1")
    a(f"v_lshl_add_u32 v{d}, v{t}, 5, v{d}")
    a(f"v_and_b32 v{t}, 1, v1")
    a(f"v_lshl_add_u32 v{d}, v{t}, 4, v{d}")
    a(f"v_bfe_u32 v{t}, v1, 1, 1")
    a(f"v_lshl_add_u32 v{d}, v{t}, 3, v{d}")

def trw(a, d, addr, off):
    a(f"ds_read_b64_tr_b16 {vr(d,2)}, v{addr} offset:{off}")
    a(f"ds_read_b64_tr_b16 {vr(d+2,2)}, v{addr} offset:{off+512}")

def mfs(a, d, A, B, c=None):
    a(f"v_mfma_f32_16x16x32_bf16 {vr(d,4)}, {vr(A,4)}, {vr(B,4)}, {vr(d,4) if c is None else c}")

def phaseA_mfma(a):
    AQ, AK, AV, XF, WF, VXA, VWA, VWB, G, TM = 16, 32, 48, 144, 156, 4, 8, 3, 96, 104
    CSF, MF, RSB, SEL, CSD, PL, VS, VG, OWN, PUB = 112, 124, 128, 192, 196, 212, 236, 239, 208, 220
    a("s_and_b32 s96, s3, 1")
    a("s_lshr_b32 s97, s3, 1")
    a("v_and_b32 v9, 31, v1")
    a("v_lshrrev_b32 v10, 5, v1")
    a("v_bfe_u32 v11, v1, 1, 3")
    a("v_xor_b32 v11, v11, v10")
    a("v_lshlrev_b32 v11, 4, v11")
    a("v_lshl_add_u32 v11, v9, 7, v11")
    a(f"s_lshl_b32 s98, s96, 12")
    a(f"s_add_u32 s98, s98, {L_X}")
    a("v_add_u32 v11, s98, v11")
    for k in range(4): a(f"v_xor_b32 v{VXA+k}, {32*k}, v11")
    wq_addr(a, VWA, 11, 97)
    a(f"v_add_u32 v{VWB}, {48*KB}, v{VWA}")
    a("v_mov_b32 v16, 0\nv_mov_b32 v17, 0")
    a("s_lshl_b32 s98, s3, 9")
    a(f"s_add_u32 s98, s98, {L_MISC}")
    a("v_lshl_add_u32 v11, v1, 3, s98")
    a("ds_write_b64 v11, v[16:17]")
    prologue2(a)
    a("v_lshrrev_b32 v11, 2, v1")
    a("v_xor_b32 v11, v11, v1")
    a("v_bfe_u32 v11, v11, 2, 1")
    a("v_add_u32 v11, -1, v11")
    for q in range(4): a(f"v_and_b32 v{SEL+q}, 0x3f803f80, v11")
    a("v_lshlrev_b32 v13, 2, v9")
    a("v_lshlrev_b32 v12, 3, v9")
    a(f"v_lshl_add_u32 v{VG}, v10, 10, v12")
    a(f"s_add_u32 s98, s{sM}, 6\ns_add_u32 s99, s{sM}, 3")
    a("s_and_b32 s98, s98, 7\ns_and_b32 s99, s99, 7")
    a("s_lshl_b32 s98, s98, 12\ns_lshl_b32 s99, s99, 12")
    a("s_add_u32 s98, s98, 1024")
    a("s_sub_u32 s99, s99, s98")
    a("v_mul_lo_u32 v11, v10, s99")
    a("v_add3_u32 v12, v12, v11, s98")
    for p in range(3): a(f"v_mov_b32 v{OWN+p}, 0")
    a("s_lshl_b32 s98, s96, 7")
    a(f"s_add_u32 s98, s98, {L_MFW}")
    a("v_add_u32 v14, s98, v13")
    a("v_lshl_add_u32 v15, v10, 4, s98")
    a(f"v_mov_b32 v{MF+2}, 0\nv_mov_b32 v{MF+3}, 0")
    a(f"s_lshl_b32 s44, s{sM}, 1")
    a("s_add_u32 s44, s44, s96")
    a(f"s_lshl_b32 s47, s{sG}, 1")
    a("s_add_u32 s47, s47, s97")
    a(f"s_lshl_b32 s46, s{sG}, 7")
    a(f"s_add_u32 s46, s46, {WS_IDS}")
    a(f"s_lshl_b32 s45, s{sM}, 2")
    a("s_add_u32 s45, s45, s46")
    a(f"s_lshl_b32 s98, s{sG}, 5")
    a(f"s_add_u32 s98, s98, s{sM}")
    a("s_and_b32 s99, s98, 0xfffffff8")
    a("s_lshl_b32 s98, s98, 1\ns_lshl_b32 s99, s99, 1")
    a("s_add_u32 s98, s98, s97\ns_add_u32 s99, s99, s97")
    a("s_lshl_b32 s98, s98, 11\ns_lshl_b32 s99, s99, 11")
    a(f"s_add_u32 s98, s98, {WS_CSP}\ns_add_u32 s99, s99, {WS_CSP}")
    tag_ready(a)
    a(f"v_mov_b32 v{G+5}, s{sID}")
    for p in range(3): a(f"v_mov_b32 v{PUB+2*p+1}, s{sT}")
    def reads(n, part):
        c, k, b = n >> 2, n & 3, n % 3
        if OPT["xa"] & 4 and n > 2: return
        if part == 0: a(f"ds_read_b128 {vr(XF+4*b,4)}, v{VXA+k} offset:{(c%6)*8*KB}")
        trw(a, WF+12*b+4*part, VWB if c & 2 else VWA, (c&1)*24*KB + k*6*KB + part*KB)
    def ldp():
        for p in range(3): a(f"buffer_load_dwordx2 {vr(PL+2*p,2)}, v12, {R(SWS)}, s99 offen offset:{p*256} sc1")
    def csum(p):
        a(f"v_add_f32 v{PL+2*p}, v{PL+2*p}, v{OWN+p}")
        a(f"v_and_b32 v{TM}, 0xffff0000, v{PL+2*p}")
        a(f"v_sub_f32 v{TM+1}, v{PL+2*p}, v{TM}")
        a(f"v_cvt_pk_bf16_f32 v{CSF+4*p}, v{TM}, v{TM}")
        a(f"v_cvt_pk_bf16_f32 v{CSF+4*p+1}, v{TM+1}, v{TM+1}")
    for p in range(3): a(f"v_mov_b32 v{CSF+4*p+2}, 0\nv_mov_b32 v{CSF+4*p+3}, 0")
    pi_lane(a, VS, VS+1)
    a(f"v_lshlrev_b32 v{VS}, 4, v{VS}")
    a(f"v_and_b32 v{VS+1}, 15, v1\nv_lshlrev_b32 v{VS+1}, 4, v{VS+1}")
    a(f"v_lshl_add_u32 v{VS+1}, v10, 8, v{VS+1}")
    a(f"v_bfe_u32 v{VS+2}, v1, 4, 1")
    a(f"v_lshl_add_u32 v{VS+1}, v{VS+2}, 17, v{VS+1}")
    a("s_lshl_b32 s50, s47, 7")
    a("s_add_u32 s50, s50, s44")
    a("s_lshl_b32 s51, s50, 11")
    a("s_lshl_b32 s50, s50, 10")
    a(f"s_add_u32 s50, s50, {WS_Q}")
    a(f"s_add_u32 s51, s51, {WS_KV}")
    a(f"s_add_u32 s52, s50, {64*KB}")
    a(f"s_add_u32 s53, s51, {128*KB}")
    a("s_lshl_b32 s101, s47, 8")
    a("s_lshl_b32 s44, s44, 2")
    a("s_add_u32 s101, s101, s44")
    a(f"s_add_u32 s101, s101, {WS_FQKV}")
    a("s_cmp_eq_u32 s3, 0")
    a("s_cselect_b64 s[54:55], 1, 0")
    a("s_cmp_eq_u32 s96, 1")
    a("s_cselect_b64 s[48:49], -1, 0")
    F = {}
    def at(n, p, f): F.setdefault((n, p), []).append(f)
    def f_ids():
        a("s_mov_b64 exec, s[54:55]")
        a(f"buffer_store_dword v{G+5}, off, {R(SWS)}, s45 sc1")
        exec_all(a)
    at(5, 0, f_ids)
    def f_s3(p):
        exec_lo32(a)
        a(f"v_mov_b32 v{PUB+2*p}, v{CSD+4*p}\nv_mov_b32 v{OWN+p}, v{CSD+4*p}")
        a("s_mov_b64 exec, s[48:49]")
        a(f"buffer_store_dwordx2 {vr(PUB+2*p,2)}, v{VG}, {R(SWS)}, s98 offen offset:{p*256} sc1")
        exec_all(a)
    NI, NC = OPT["nid"], OPT["nck"]
    for p in range(3):
        at(12, p, lambda p=p: f_s3(p))
        at(NI, p, lambda p=p: a(f"buffer_load_dwordx2 {vr(PL+2*p,2)}, v12, {R(SWS)}, s99 offen offset:{p*256} sc1"))
        at(NC+1, p, lambda p=p: csum(p))
        at(NC+2, p, lambda p=p: mfma(a, AQ+16*p, CSF+4*p, MF) if p < 2 else mfma(a, AV, MF, CSF+8))
    at(NI-1, 2, lambda: a(f"buffer_load_dword v{G+4}, v13, {R(SWS)}, s46 offen sc1"))
    at(NC, 1, lambda: ids_check(a, G+4))
    at(NC, 2, lambda: poll(a, ldp, [PL+1, PL+3, PL+5], first_issued=True))
    at(26, 1, lambda: a(f"ds_read_b32 v{MF}, v14\nds_read_b32 v{MF+1}, v14"))
    at(26, 2, lambda: a(f"ds_read_b32 v{G+2}, v14 offset:{L_RS-L_MFW}"))
    for q in range(4): at(30 + q//3, q%3, lambda q=q: a(f"ds_read_b128 {vr(RSB+4*q,4)}, v15 offset:{L_RS-L_MFW+32*q}"))
    pm(a, "a0")
    a("s_barrier")
    pm(a, "a1")
    for p in range(3): reads(0, p)
    for p in range(3): reads(1, p)
    for n in range(32):
        b = n % 3
        pm(a, f"an{n}")
        if (n & 3) == 2 and n < 30: a("s_barrier")
        for pi_, p in enumerate(range(3) if n < 31 else (1, 2, 0)):
            if n < 30: reads(n+2, p)
            c0 = "0" if n == 0 else None
            if p < 2: mfma(a, AQ+16*p, WF+12*b+4*p, XF+4*b, c0)
            else: mfma(a, AV, XF+4*b, WF+12*b+8, c0)
            if n == 8: a(f"v_mov_b32 v{PUB+2*p}, v{CSD+4*p}")
            if n < 12: mfs(a, CSD+4*p, SEL, WF+12*b+4*p, c0)
            for f in F.get((n, pi_), []): f()
    a("s_barrier")
    pm(a, "a2")
    a(f"v_mul_f32 v{G}, {fh(0.25*LOG2E)}, v{G+2}")
    def scal(A, S, bc):
        for r in range(0, 16, 2):
            if bc: a(f"v_pk_mul_f32 {vr(A+r,2)}, {vr(A+r,2)}, {vr(S,2)} op_sel_hi:[1,0]")
            else: a(f"v_pk_mul_f32 {vr(A+r,2)}, {vr(A+r,2)}, {vr(S+r,2)}")
    scal(AK, G+2, True)
    pack8(a, 72, AK); pack8(a, 76, AK+8)
    flavored(a, [f"buffer_store_dwordx4 v[72:75], v{VS}, {R(SWS)}, s51 offen",
                 f"buffer_store_dwordx4 v[76:79], v{VS}, {R(SWS)}, s53 offen"])
    scal(AV, RSB, False)
    pack8(a, 80, AV); pack8(a, 84, AV+8)
    flavored(a, [f"buffer_store_dwordx4 v[80:83], v{VS+1}, {R(SWS)}, s51 offen offset:1024",
                 f"buffer_store_dwordx4 v[84:87], v{VS+1}, {R(SWS)}, s51 offen offset:1536"])
    scal(AQ, G, True)
    pack8(a, 64, AQ); pack8(a, 68, AQ+8)
    flavored(a, [f"buffer_store_dwordx4 v[64:67], v2, {R(SWS)}, s50 offen",
                 f"buffer_store_dwordx4 v[68:71], v2, {R(SWS)}, s52 offen"])

def phaseA_mfma_pub(a):
    pm(a, "a2s")
    a.waitvm()
    flag_store(a, 101, 3)
    pm(a, "a3")

def phaseA_helper(a):
    VXE, VXO, VW, VSX, ONES, XD, SUM, GR, U = 4, 5, 6, 7, 12, 48, 32, 36, 40
    a("s_sub_u32 s100, s3, 4")
    a("v_lshrrev_b32 v9, 3, v1")
    a("v_lshrrev_b32 v10, 4, v1")
    a("v_and_b32 v11, 7, v1")
    a("v_xor_b32 v12, v11, v10")
    a("v_lshlrev_b32 v12, 4, v12")
    a(f"v_lshl_add_u32 v{VXE}, v9, 10, v12")
    a(f"v_xor_b32 v{VXO}, 64, v{VXE}")
    a("v_and_b32 v10, 1, v10")
    a("v_lshlrev_b32 v10, 2, v10")
    a("v_xor_b32 v11, v11, v10")
    a(f"v_mul_u32_u24 v{VW}, 3072, v9")
    a(f"v_lshl_add_u32 v{VW}, v11, 4, v{VW}")
    a(f"s_lshl_b32 s96, s{sM}, 2")
    a("s_add_u32 s96, s96, s100")
    a("s_lshl_b32 s96, s96, 14")
    a(f"s_mul_i32 s97, s100, {16*3072}")
    a(f"s_lshl_b32 s98, s{sG}, 7")
    a("s_add_u32 s97, s97, s98")
    a("s_lshl_b32 s98, s100, 11")
    a(f"s_add_u32 s98, s98, {L_X}")
    a(f"s_mul_i32 s99, s100, {6*KB}")
    prologue2(a, 1)
    LAX = OPT["lax"]
    def dmx(c):
        a(f"s_add_u32 s43, s{sM}, {c}")
        a("s_and_b32 s43, s43, 7")
        a("s_lshl_b32 s43, s43, 7")
        a("s_add_u32 s43, s43, s96")
        a(f"s_add_u32 m0, s98, {(c%6)*8*KB}")
        a(f"s_add_u32 s42, s43, 8192")
        a(f"buffer_load_dwordx4 v{VXE}, {R(SX)}, s43 offen lds", f"x{c}")
        a(f"s_add_u32 m0, s98, {(c%6)*8*KB + KB}")
        a(f"buffer_load_dwordx4 v{VXO}, {R(SX)}, s42 offen lds", f"x{c}")
    def dmw(c):
        a(f"s_add_u32 s43, s{sM}, {c}")
        a("s_and_b32 s43, s43, 7")
        a(f"s_mul_i32 s43, s43, {64*3072}")
        a(f"s_add_u32 m0, s99, {(c%4)*24*KB}")
        a(f"s_add_u32 s43, s43, s97")
        a(f"s_add_u32 s42, s43, {8*3072}")
        for pn in range(3): a(f"buffer_load_dwordx4 v{VW}, {R(SWQ)}, s43 offen offset:{pn*1024} lds", f"w{c}")
        a(f"s_add_u32 m0, s99, {(c%4)*24*KB + 3*KB}")
        for pn in range(3): a(f"buffer_load_dwordx4 v{VW}, {R(SWQ)}, s42 offen offset:{pn*1024} lds", f"w{c}")
    XO = OPT["xo"]
    if XO: dmx(0); dmw(0); dmx(1); dmw(1); dmx(2)
    else: dmx(0); dmw(0); dmx(1); dmx(2); dmw(1)
    for c in range(3, LAX): dmx(c)
    pm(a, "ai")
    prologue2(a, 2)
    a("v_and_b32 v9, 15, v1")
    a("v_bfe_u32 v10, v1, 1, 3")
    a("v_lshrrev_b32 v11, 4, v1")
    a("v_xor_b32 v10, v10, v11")
    a("v_lshlrev_b32 v10, 4, v10")
    a("v_lshl_add_u32 v10, v9, 7, v10")
    a(f"v_add_u32 v{VSX}, s98, v10")
    a(f"v_xor_b32 v{VSX+1}, 64, v{VSX}")
    for i in range(4): a(f"v_mov_b32 v{ONES+i}, 0x3f803f80")
    a("s_lshl_b32 s44, s100, 6")
    a(f"s_add_u32 s44, s44, {L_MFW}")
    a("v_lshl_add_u32 v3, v9, 2, s44")
    tag_ready(a)
    SCH = {0: [0], 1: [1, 2], 2: [3, 4], 3: [5], 4: [6], 5: [7]}
    if XO: SCH = {0: [0], 1: [1], 2: [2, 3], 3: [4], 4: [5], 5: [6, 7]}
    SMF = [{0: [0], 1: [1], 2: [2, 3], 3: [4], 4: [5], 5: [6, 7]}, {3: [0, 1, 2], 4: [3, 4, 5], 5: [6, 7]}, {0: [0], 3: [1, 2], 4: [3, 4], 5: [5, 6], 6: [7]}][OPT["sm"]]
    if OPT['xa'] & 2: SCH = {}
    for c in range(8):
        a.waitvm(f"w{c}")
        if c == 0: pm(a, "a0")
        else: pm(a, f"ac{c}")
        a("s_barrier")
        if c == 0: pm(a, "a1")
        def srd_(q, cc):
            a.waitvm(f"x{cc}")
            for j in range(2): a(f"ds_read_b128 {vr(XD+8*cc+4*j,4)}, v{VSX+j} offset:{(cc%6)*8*KB}")
        for q, cc in enumerate(SCH.get(c, [])):
            if cc <= c + 1 or not XO: srd_(q, cc)
        if c + LAX <= 7 and not OPT['xa'] & 8 and not XO: dmx(c+LAX)
        if c + 2 <= 7 and not OPT['xa'] & 8: dmw(c+2)
        if c + LAX <= 7 and not OPT['xa'] & 8 and XO: dmx(c+LAX)
        if c == OPT["pc"] and OPT["stop"] > 1: prep_src(a)
        for q, cc in enumerate(SCH.get(c, [])):
            if cc > c + 1 and XO: srd_(q, cc)
        pm(a, f"h{c}a")
        for cc in SMF.get(c, []):
            for j in range(2):
                c0 = "0" if cc == 0 and j == 0 else None
                mfs(a, SUM, ONES, XD+8*cc+4*j, c0)
                mfs(a, GR, XD+8*cc+4*j, XD+8*cc+4*j, c0)
        if c == 6:
            for q in range(1, 4):
                a(f"s_mov_b32 exec_lo, {hex(0x00100001 << q)}\ns_mov_b32 exec_hi, {hex(0x10000100 << q)}")
                a(f"v_mov_b32 v{GR}, v{GR+q}")
            a("s_mov_b32 exec_lo, 0x00f0000f\ns_mov_b32 exec_hi, 0xf0000f00")
            a(f"v_mov_b32 v{U+6}, {fh(1/512)}")
            a(f"v_mul_f32 v{SUM}, {fh(-1/512)}, v{SUM}")
            a(f"v_mul_f32 v{U}, v{SUM}, v{SUM}")
            a(f"v_fma_f32 v{U}, v{GR}, v{U+6}, -v{U}")
            a(f"v_max_f32 v{U}, 0, v{U}")
            a(f"v_add_f32 v{U}, {fh(1e-5)}, v{U}")
            a(f"v_rsq_f32 v{U}, v{U}")
            a(f"v_and_b32 v{U+2}, 0xffff0000, v{SUM}")
            a(f"v_sub_f32 v{U+4}, v{SUM}, v{U+2}")
            a(f"v_cvt_pk_bf16_f32 v{U+2}, v{U+2}, v{U+4}")
            a(f"ds_write_b32 v3, v{U+2}")
            a(f"ds_write_b32 v3, v{U} offset:{L_RS-L_MFW}")
            exec_all(a)
            a.waitlg()
        pm(a, f"h{c}c")
    a(f"s_lshl_b32 s44, s{sP}, 8")
    a(f"s_add_u32 s44, s44, {WS_FQKV}")
    a("v_lshlrev_b32 v9, 2, v1")
    pm(a, "aq")
    a("s_barrier")
    pm(a, "a2")

def phaseA_helper_load(a):
    poll(a, lambda: a(f"buffer_load_dword v11, v9, {R(SWS)}, s44 offen sc1"), [11])
    pm(a, "a3")
    a(f"s_lshl_b32 s42, s{sHEAD}, 6")
    a(f"s_lshl_b32 s43, s{sCS}, 3")
    a("s_add_u32 s42, s42, s43")
    a("s_lshl_b32 s43, s100, 1")
    a("s_add_u32 s42, s42, s43")
    a("s_lshl_b32 s42, s42, 10")
    a(f"s_add_u32 s42, s42, {WS_Q}")
    a("s_lshl_b32 s43, s100, 11")
    a(f"s_add_u32 m0, s43, {L_STG}")
    a("s_lshl_b32 s43, s100, 12")
    for o in (0, 1024): a(f"buffer_load_dwordx4 v2, {R(SWS)}, s42 offen offset:{o} sc1 lds", "kv0")
    a(f"s_lshl_b32 s42, s{sHEAD}, 17")
    a("s_add_u32 s42, s42, s43")
    a(f"s_add_u32 s42, s42, {WS_KV}")
    a("s_mov_b32 m0, s43")
    for o in range(4): a(f"buffer_load_dwordx4 v2, {R(SWS)}, s42 offen offset:{o*1024} sc1 lds", "kv0")

Q, SA, SB, O, KF, VF = 4, 8, 24, 40, 56, 64
IDX, VK, VV, VK2, VV2, VWR0, VWR1 = range(80, 87)
VST = 253
VCL = 91
OOB = 0x40000000
VP0, VP2, PA, PB, PCN, PF, FL, SENT = 156, 157, 158, 162, 166, 168, 192, 240
WO, W2, XRES, HB, VRES = 92, 156, 244, 248, 252

def attn_setup(a):
    a(f"s_lshl_b32 s{sTT}, s{sCS}, 3")
    a(f"s_add_u32 s{sTT}, s{sTT}, s3")
    a(f"s_lshr_b32 s{sTC}, s{sM}, 3")
    a(f"s_lshl_b32 s{sTC}, s{sTC}, 1")
    a(f"s_lshl_b32 s50, s{sG}, 3")
    a(f"s_add_u32 s{sTC}, s{sTC}, s50")
    a("s_and_b32 s50, s3, 1")
    a(f"s_add_u32 s{sTC}, s{sTC}, s50")
    a(f"v_mov_b32 v{IDX}, 0xdddddddd")
    a(f"v_mov_b32 v{VK}, v2")
    a(f"v_add_u32 v{VK2}, 0x10000, v2")
    a(f"v_and_b32 v{VV}, 15, v1")
    a(f"v_lshlrev_b32 v{VV}, 4, v{VV}")
    a(f"v_lshrrev_b32 v{VV2}, 5, v1")
    a(f"v_lshl_add_u32 v{VV}, v{VV2}, 8, v{VV}")
    a(f"v_add_u32 v{VV}, 1024, v{VV}")
    a(f"v_and_b32 v{VRES}, 31, v1")
    a(f"v_lshlrev_b32 v90, 2, v{VRES}")
    a(f"v_lshlrev_b32 v{VRES}, 10, v{VRES}")
    a(f"v_lshl_add_u32 v{VRES}, v{VV2}, 4, v{VRES}")
    a(f"v_add_u32 v{VV2}, 0x10000, v{VV}")
    a(f"s_lshl_b32 s{sRES}, s{sTC}, 15")
    a(f"s_lshl_b32 s50, s{sCS}, 7")
    a(f"s_add_u32 s{sRES}, s{sRES}, s50")
    a("s_lshr_b32 s50, s3, 1")
    a("s_lshl_b32 s50, s50, 5")
    a(f"s_add_u32 s{sRES}, s{sRES}, s50")
    a("s_bfe_u32 s50, s3, 0x10001")
    a("s_lshl_b32 s50, s50, 8")
    a("s_lshr_b32 s51, s3, 2")
    a("s_lshl_b32 s51, s51, 10")
    a("s_or_b32 s50, s50, s51")
    a(f"v_xor_b32 v{VWR0}, s50, v2")
    a(f"v_xor_b32 v{VWR1}, 1024, v{VWR0}")
    a("s_lshl_b32 s50, s3, 10")
    a(f"s_add_u32 s50, s50, {L_STG}")
    a(f"v_add_u32 v{VST}, s50, v2")
    a("s_lshr_b32 s51, s3, 1")
    a("s_lshl_b32 s51, s51, 14")
    a(f"s_lshl_b32 s50, s{sCS}, 16")
    a("s_add_u32 s51, s51, s50")
    a(f"s_add_u32 s51, s51, {WS_WTO}")
    a(f"s_mul_i32 s52, s3, {22*KB}")
    a(f"s_mul_i32 s50, s{sCS}, {176*KB}")
    a("s_add_u32 s52, s52, s50")
    a(f"s_add_u32 s52, s52, {WS_WT2}")
    a(f"s_mul_i32 s54, s3, {6*KB}")
    a(f"s_mul_i32 s53, s{sM}, {96*KB}")
    a("s_add_u32 s53, s53, s54")
    a(f"s_add_u32 s53, s53, {WS_WT13}")
    a(f"s_cmp_ge_u32 s{sM}, 29")
    a(f"s_cselect_b32 s53, {OOB}, s53")
    a("s_mov_b32 s48, 0x0000ffff\ns_mov_b32 s49, 0x0000ffff")
    a(f"s_lshl_b32 s50, s{sG}, 7")
    a(f"s_add_u32 s50, s50, {WS_CLR}")
    a(f"v_add_u32 v{VCL}, s50, v90")
    a("v_and_b32 v87, 7, v1")
    a("v_lshlrev_b32 v87, 7, v87")
    a("v_bfe_u32 v88, v1, 3, 2")
    a("v_lshl_add_u32 v87, v88, 5, v87")
    a(f"s_lshl_b32 s50, s{sG}, 2")
    a(f"s_add_u32 s50, s50, {WS_CLR}")
    a("s_mov_b32 exec_lo, 0")
    a(f"v_add_u32 v{VCL}, s50, v87")
    exec_all(a)
    a(f"s_lshl_b32 s55, s{sHEAD}, 17")
    a(f"s_add_u32 s55, s55, {WS_KV}")
    a(f"s_mul_i32 s47, s3, {6*KB}")
    a(f"s_add_u32 s47, s47, {16*KB}")
    a("s_lshl_b32 s46, s3, 13")
    a(f"s_add_u32 s46, s46, {64*KB}")

def w2lane(a, vp, t):
    a(f"v_lshrrev_b32 v{vp}, 3, v1")
    a(f"v_and_b32 v{t}, 7, v1")
    a(f"v_lshlrev_b32 v{t}, 4, v{t}")
    a(f"v_lshl_add_u32 v{vp}, v{vp}, 10, v{t}")
def w2rd(a, pa, stage):
    tr_addr(a, pa, pa+1, row_shift=7, cg_mul=32)
    a(f"v_add_u32 v{pa}, s{stage}, v{pa}")
    a(f"v_add_u32 v{pa+1}, 512, v{pa}")
    a(f"v_add_u32 v{pa+2}, 64, v{pa}")
    a(f"v_add_u32 v{pa+3}, {512+64}, v{pa}")

def prep_src(a):
    l2, ld, l3 = a.label("pw2"), a.label("pdn"), a.label("nor2")
    a("s_lshl_b32 s45, s100, 12")
    a(f"s_add_u32 s45, s45, {L_PR1}")
    a("s_cmp_ge_u32 s2, 176")
    a(f"s_cbranch_scc1 {l2}")
    a(f"v_lshrrev_b32 v{VP0}, 1, v1")
    a(f"v_mul_u32_u24 v{VP0}, 2752, v{VP0}")
    a(f"v_and_b32 v{PA}, 1, v1")
    a(f"v_lshl_add_u32 v{VP0}, v{PA}, 4, v{VP0}")
    a("s_lshr_b32 s43, s2, 4")
    a("s_lshl_b32 s43, s43, 2")
    a("s_add_u32 s43, s43, s100")
    a("s_lshl_b32 s43, s43, 1")
    a("s_and_b32 s42, s2, 15")
    a(f"s_mul_i32 s46, s42, {32*2752}")
    a("s_lshl_b32 s47, s43, 5")
    a("s_add_u32 s46, s46, s47")
    a("s_mov_b32 s47, s46")
    a("s_add_u32 s48, s46, 32\ns_add_u32 s49, s46, 32")
    tr_addr(a, PA, PA+1, row_shift=5, cg_mul=1024)
    a(f"v_add_u32 v{PA}, s45, v{PA}")
    a(f"v_add_u32 v{PA+1}, 128, v{PA}")
    a(f"v_add_u32 v{PA+2}, 512, v{PA}")
    a(f"v_add_u32 v{PA+3}, {512+128}, v{PA}")
    a(f"s_mul_i32 s42, s42, {6*KB}")
    a(f"s_add_u32 s42, s42, {WS_WT13}")
    for u in range(2):
        d = 8 + 2*u
        a(f"s_mul_i32 s{d}, s43, 43691\ns_lshr_b32 s{d}, s{d}, 17")
        a(f"s_mul_i32 s{d}, s{d}, {93*KB}")
        a(f"s_lshl_b32 s{d+1}, s43, 10")
        a(f"s_add_u32 s{d}, s{d}, s{d+1}\ns_add_u32 s{d}, s{d}, s42")
        a(f"s_add_u32 s{d+1}, s{d}, {3*KB}")
        if u == 0: a("s_add_u32 s43, s43, 1")
    a(f"s_branch {ld}")
    a(f"{l2}:")
    w2lane(a, VP0, PA)
    for q in range(3): a(f"s_mov_b32 s{SW1+q}, s{SW2+q}\ns_mov_b32 s{SW3+q}, s{SW2+q}")
    a("s_sub_u32 s43, s2, 176")
    a("s_lshl_b32 s46, s43, 14")
    a("s_lshl_b32 s47, s100, 8")
    a("s_add_u32 s46, s46, s47")
    a("s_add_u32 s47, s46, 8192")
    a("s_add_u32 s48, s46, 128\ns_add_u32 s49, s47, 128")
    w2rd(a, PA, 45)
    a("s_lshl_b32 s8, s43, 11")
    a(f"s_mul_i32 s9, s100, {352*KB}")
    a("s_add_u32 s8, s8, s9")
    a(f"s_add_u32 s8, s8, {WS_WT2}")
    a(f"s_add_u32 s9, s8, {KB}")
    a(f"s_add_u32 s10, s8, {176*KB}\ns_add_u32 s11, s9, {176*KB}")
    a(f"{ld}:")
    for q in range(4):
        a(f"s_add_u32 m0, s45, {q*KB}")
        a(f"buffer_load_dwordx4 v{VP0}, {R(SW3 if q & 1 else SW1)}, s{46+q} offen lds", "prep")
    a("s_and_b32 s45, s100, 1")
    a("s_lshl_b32 s45, s45, 11")
    a(f"s_add_u32 s45, s45, {L_PR2}")
    w2lane(a, VP2, PB)
    a("s_cmp_eq_u32 s100, 0")
    for q in range(3): a(f"s_cselect_b32 s{SWO+q}, s{SWO+q}, s{SW2+q}")
    a("s_cselect_b32 s96, 0, 80")
    a(f"s_mov_b32 s97, {176*KB}\ns_mov_b32 s98, {WS_WT2}")
    a(f"s_cselect_b32 s97, {64*KB}, s97")
    a(f"s_cselect_b32 s98, {WS_WTO}, s98")
    a(f"s_add_u32 s96, s96, s{sM}")
    a(f"s_mul_i32 s97, s97, s{sG}")
    a("s_add_u32 s98, s98, s97")
    a("s_lshl_b32 s97, s96, 11")
    a("s_add_u32 s98, s98, s97")
    a("s_lshl_b32 s96, s96, 14")
    a(f"s_lshl_b32 s97, s{sG}, 7")
    a("s_add_u32 s96, s96, s97")
    a("s_lshl_b32 s97, s100, 8")
    a("s_add_u32 s97, s97, s2")
    a("s_cmp_ge_u32 s97, 320")
    a(f"s_cselect_b32 s98, {OOB}, s98")
    a(f"s_cbranch_scc1 {l3}")
    a("s_add_u32 s97, s96, 8192")
    a("s_mov_b32 m0, s45")
    a(f"buffer_load_dwordx4 v{VP2}, {R(SWO)}, s96 offen lds", "prep")
    a(f"s_add_u32 m0, s45, {KB}")
    a(f"buffer_load_dwordx4 v{VP2}, {R(SWO)}, s97 offen lds", "prep")
    a(f"{l3}:")
    w2rd(a, PB, 45)
    a(f"v_mov_b32 v{PCN}, {L_CNT}\nv_mov_b32 v{PCN+1}, 1")

def prep_rd(a):
    a.waitvm("prep")
    for u in range(2):
        for q in range(4): a(f"ds_read_b64_tr_b16 {vr(PF+8*u+2*q,2)}, v{PA+q} offset:{2*KB*u}")
    for q in range(4): a(f"ds_read_b64_tr_b16 {vr(PF+16+2*q,2)}, v{PB+q}")

def prep_st(a):
    for e in range(4): a(f"buffer_store_dwordx4 {vr(PF+4*e,4)}, v2, {R(SWS)}, s{8+e} offen sc1", "pst")
    for e in range(2): a(f"buffer_store_dwordx4 {vr(PF+16+4*e,4)}, v2, {R(SWS)}, s98 offen offset:{e*KB} sc1", "pst")

def slot_O(a, d):
    a(f"s_lshl_b32 s{d}, s{sTT}, 5")
    a(f"s_add_u32 s{d}, s{d}, s{sHEAD}")
    a(f"s_lshl_b32 s{d}, s{d}, 10")
    a(f"s_add_u32 s{d}, s{d}, {WS_O}")
def slot_H(a, d, t):
    a(f"s_lshl_b32 s{d}, s{sTC}, 3")
    a(f"s_add_u32 s{d}, s{d}, s{sCS}")
    a(f"s_lshl_b32 s{d}, s{d}, 2")
    a(f"s_lshr_b32 s{t}, s3, 1")
    a(f"s_add_u32 s{d}, s{d}, s{t}")
    a(f"s_lshl_b32 s{d}, s{d}, 10")
    a(f"s_add_u32 s{d}, s{d}, {WS_H}")
def d_tile(a, d, t):
    a(f"s_lshl_b32 s{d}, s{sG}, 2")
    a(f"s_and_b32 s{t}, s3, 3")
    a(f"s_add_u32 s{d}, s{d}, s{t}")
    a(f"s_lshl_b32 s{d}, s{d}, 1")
    a(f"s_lshr_b32 s{t}, s3, 2")
    a(f"s_add_u32 s{d}, s{d}, s{t}")
def slot_A(a, d, t):
    d_tile(a, d, t)
    a(f"s_mul_i32 s{d}, s{d}, 86")
    a(f"s_mul_i32 s{t}, s{sM}, 3")
    a(f"s_add_u32 s{d}, s{d}, s{t}")
    a(f"s_lshl_b32 s{d}, s{d}, 10")
    a(f"s_add_u32 s{d}, s{d}, {WS_ACT}")
    a(f"s_cmp_ge_u32 s{sM}, 29")
    a(f"s_cselect_b32 s{d}, {OOB}, s{d}")
    a(f"s_cmp_ge_u32 s{sM}, 28")
    a(f"s_cselect_b32 s{t}, {OOB}, s{d}")
def nosent(a, d):
    for q in range(4): a(f"v_min_u32 v{d+q}, -2, v{d+q}")
def maxacc(a, m, d, first=False):
    if first:
        a(f"v_max3_u32 v{m}, v{d}, v{d+1}, v{d+2}")
        a(f"v_max_u32 v{m}, v{m}, v{d+3}")
    else:
        a(f"v_max3_u32 v{m}, v{m}, v{d}, v{d+1}")
        a(f"v_max3_u32 v{m}, v{m}, v{d+2}, v{d+3}")

def attn_setup2(a):
    for i in range(16): a(f"v_mov_b32 v{VF+i}, 0")
    for i in range(16): a(f"v_mov_b32 v{O+i}, 0")
    for q in range(4): a(f"v_mov_b32 v{SENT+q}, -1")
    a("s_mov_b32 exec_lo, 0x00110000\ns_mov_b32 exec_hi, 0x00110000")
    for i in range(16): a(f"v_mov_b32 v{VF+i}, 0x3f803f80")
    exec_all(a)

def wreg(f): return WO + 4*f

def attn_loop(a, older):
    NT = 64
    TW = OPT["tw"]
    JOBS = {}
    def put(h, job):
        while h in JOBS: h += 1
        JOBS[h] = job
        return h
    def spread(jobs, t0, t1):
        n = len(jobs)
        return [put(2*t0 + (i*2*(t1-t0))//n, j) for i, j in enumerate(jobs)]
    TC, TC1, WE = OPT["tc"], OPT["tc1"], OPT["we"]
    spread([("d", 0, u) for u in range(6)], 24, OPT["da"])
    spread([("d", 1, u) for u in range(6)], 48, OPT["db"])
    hc = spread([("c", j) for j in range(5)], TC, TC1)
    nl = OPT["wl"]
    hw = spread([("w", f) for f in range(38-nl)], TW, WE) + spread([("w", f) for f in range(38-nl, 38)], 48, 60)
    assert hw == sorted(hw) and hw[16] > 2*max(TW, OPT["tf"]+1) + 1 and hw[37] > hc[-1] and hw[37] < 124 and hc[-1] < 92
    def rdK(t): a(f"ds_read_b128 {vr(KF+4*(t&1),4)}, v{VK if t < 32 else VK2} offset:{(t%32)*2048}")
    def rdV(t):
        a("s_mov_b64 exec, s[48:49]")
        for jj in range(2): a(f"ds_read_b128 {vr(VF+8*(t&1)+4*jj,4)}, v{VV if t < 32 else VV2} offset:{(t%32)*2048+512*jj}")
        exec_all(a)
    def qk(t): mfma(a, SB if t & 1 else SA, KF+4*(t&1), Q, "0")
    def pv(t, jj):
        S = SB if t & 1 else SA
        a(f"v_smfmac_f32_32x32x32_bf16 {vr(O,16)}, {vr(VF+8*(t&1)+4*jj,4)}, {vr(S+8*jj,8)}, v{IDX}")
    def wload(f):
        sn = 51 if f < 16 else 52
        a(f"buffer_load_dwordx4 {vr(wreg(f),4)}, v{VWR1 if f & 1 else VWR0}, {R(SWS)}, s{sn} offen offset:{(f&2)*1024}")
        if f & 3 == 3: a(f"s_add_u32 s{sn}, s{sn}, 4096")
    def kvp(stage, u):
        if u % 4 == 0:
            a(f"s_add_u32 m0, s{47 if stage == 1 else 46}, {u*KB}")
            a(f"s_add_u32 s45, s55, m0")
        else: a("s_sub_u32 m0, s45, s55")
        a(f"buffer_load_dwordx4 v2, {R(SWS)}, s45 offen offset:{(u%4)*KB} sc1 lds", f"kv{stage}")
    def w13(hf, u):
        if u % 4 == 0:
            a(f"s_add_u32 m0, s54, {hf*48*KB + u*KB}")
            a(f"s_add_u32 s50, s53, {hf*48*KB + u*KB}")
        a(f"buffer_load_dwordx4 v2, {R(SWS)}, s50 offen offset:{(u%4)*KB} lds")
    def clr(j):
        sv = vr(SENT, 4)
        if j == 0:
            slot_O(a, 42)
            a(f"buffer_store_dwordx4 {sv}, v2, {R(SWS)}, s42 offen sc1", "clr")
        elif j == 1:
            slot_H(a, 43, 44)
            flavored(a, [f"buffer_store_dwordx4 {sv}, v2, {R(SWS)}, s43 offen"], "clr")
        else:
            slot_A(a, 42, 43)
            flavored(a, [f"buffer_store_dwordx4 {sv}, v2, {R(SWS)}, s{43 if j == 4 else 42} offen offset:{(j-2)*KB}"], "clr")
    def job(h):
        if h not in JOBS: return
        j = JOBS[h]; sj = OPT["sj"]
        if j[0] == "w" and sj & 1: wload(j[1])
        if j[0] == "d" and sj & 2: w13(j[1], j[2])
        if j[0] == "c" and sj & 4: clr(j[1])
    def side(t):
        sv = vr(SENT, 4)
        if t == OPT['ps'] and not older: prep_st(a)
        if t == TC - 3:
            a(f"s_lshl_b32 s44, s{sG}, 7")
            a(f"s_add_u32 s44, s44, {WS_IDS}")
            a(f"buffer_load_dword v89, v90, {R(SWS)}, s44 offen sc1")
        if t == TC: ids_check(a, 89)
        if t == 48 and older:
            a(f"v_mov_b32 v89, s{sID}")
            a(f"s_lshl_b32 s43, s{sG}, 5")
            a(f"s_add_u32 s43, s43, s{sM}")
            a("s_lshl_b32 s43, s43, 2")
            a(f"s_add_u32 s43, s43, {WS_CLR}")
            a("s_cmp_eq_u32 s3, 0")
            a(f"s_cselect_b32 s43, s43, {OOB}")
            a("s_mov_b64 exec, 1")
            a(f"buffer_store_dword v89, off, {R(SWS)}, s43 sc1")
            exec_all(a)
        if t == TF and not older:
            a.waitvm("pst")
            a("s_mov_b64 exec, 1")
            a(f"ds_add_rtn_u32 v{PCN+1}, v{PCN}, v{PCN+1}")
            exec_all(a)
        if t == TF + 1 and not older:
            a(f"v_readfirstlane_b32 s42, v{PCN+1}")
            a(f"v_mov_b32 v{PCN}, s{sT}")
            a(f"s_lshl_b32 s43, s{sG}, 5")
            a(f"s_add_u32 s43, s43, s{sM}")
            a("s_lshl_b32 s43, s43, 2")
            a(f"s_add_u32 s43, s43, {WS_FW}")
            a("s_cmp_eq_u32 s42, 3")
            a(f"s_cselect_b32 s43, s43, {OOB}")
            a("s_mov_b64 exec, 1")
            a(f"buffer_store_dword v{PCN}, off, {R(SWS)}, s43 sc1")
            exec_all(a)
        if t == TW - 3 and not older:
            a("s_cmp_eq_u32 s3, 7")
            a(f"s_cselect_b32 s101, {WS_FW}, {OOB}")
            ldfl()
    def ldfl(): a(f"buffer_load_dwordx4 {vr(FL,4)}, v2, {R(SWS)}, s101 offen sc1")
    def chkfl():
        lab = a.label("nofl")
        a.waitvm()
        a("s_cmp_lg_u32 s3, 7")
        a(f"s_cbranch_scc1 {lab}")
        poll(a, ldfl, [FL, FL+1, FL+2, FL+3], first_issued=True)
        a(f"{lab}:")
    TF = OPT["tf"]
    def ldclr(): a(f"buffer_load_dword v89, v{VCL}, {R(SWS)}, 0 offen sc1")
    if not older: a.waitvm("kv0")
    a("s_barrier")
    pm(a, "b0")
    a(f"ds_read_b128 {vr(Q,4)}, v{VST}")
    rdK(0); rdK(1); rdV(0)
    qk(0)
    if not older: a("s_setprio 1")
    for t in range(NT):
        S = SB if t & 1 else SA
        def ex(lo, hi):
            for r in range(lo, hi): a(f"v_exp_f32 v{S+r}, v{S+r}")
        if older:
            if t % 4 == 0: a("s_setprio 2")
            if t % 4 == 3: a("s_setprio 0")
        pm(a, f"bt{t}")
        if t == 6: a.waitvm("kv1")
        if t == 24: a.waitvm("kv2")
        if t == 48: a.waitvm("clr")
        if t == TW and not older: chkfl()
        if t in (6, 24, 48, TW): a("s_barrier")
        pm(a, f"bu{t}")
        ex(0, 2)
        if t > 0: pv(t-1, 1)
        sj = OPT["sj"]
        if t < 3: kvp(1, 2*t); kvp(1, 2*t+1)
        if 3 <= t < 11: kvp(2, t-3)
        side(t)
        job(2*t)
        if t == 56: a(f"buffer_load_dwordx4 {vr(XRES,4)}, v{VRES}, {R(SX)}, s{sRES} offen")
        if t == 58: ldclr()
        ex(2, 7)
        if t + 1 < NT: qk(t+1)
        if t + 2 < NT: rdK(t+2)
        ex(7, 12)
        pv(t, 0)
        if t + 1 < NT: rdV(t+1)
        job(2*t+1)
        ex(12, 16)
    pv(NT-1, 1)
    a("s_setprio 0")
    a("s_waitcnt vmcnt(0) lgkmcnt(0)")
    lp, dn, ck = a.label("cpoll"), a.label("cdone"), a.label("cchk")
    a(f"s_mov_b32 s{sCNT}, {1 << OPT['pl']}")
    a(f"s_branch {ck}")
    a(f"{lp}:")
    ldclr()
    a("s_waitcnt vmcnt(0)")
    a(f"{ck}:")
    a(f"v_xor_b32 v88, s{sID}, v89")
    a("v_lshlrev_b32 v87, 4, v88")
    a("v_cmp_ne_u32 vcc, 0, v87")
    a(f"s_cbranch_vccz {dn}")
    a(f"s_sub_u32 s{sCNT}, s{sCNT}, 1")
    a(f"s_cbranch_scc0 {lp}")
    a(f"{dn}:")
    a("v_cmp_ne_u32 vcc, 0, v88")
    a("s_cmp_eq_u32 vcc_lo, 0")
    a(f"s_cselect_b32 s{sFAST}, 1, 0")
    a("s_nop 15\ns_nop 3")

def attn_finish(a):
    pm(a, "b9")
    a("v_mov_b32 v3, 0")
    for r in range(8): a(f"v_fma_f32 v3, v{O+r}, 0, v3")
    a("v_cmp_u_f32 vcc, v3, v3")
    a(f"v_mov_b32 v3, {fh(2.0**-64)}")
    a(f"v_cmp_nle_f32 s[42:43], v3, v{O+8}")
    a(f"v_mov_b32 v3, {fh(2.0**64)}")
    a(f"v_cmp_nge_f32 s[44:45], v3, v{O+8}")
    a("s_or_b64 vcc, vcc, s[42:43]")
    a("s_or_b64 vcc, vcc, s[44:45]")
    a("s_cbranch_scc1 L_fallback")
    a("L_attn_fin:")
    a(f"v_rcp_f32 v3, v{O+8}")
    slot_O(a, 42)
    for r in range(8): a(f"v_mul_f32 v{O+r}, v{O+r}, v3")
    pack8(a, KF, O)
    nosent(a, KF)
    a(f"buffer_store_dwordx4 {vr(KF,4)}, v2, {R(SWS)}, s42 offen sc1")

def fallback(a):
    a("L_fallback:")
    a(f"s_lshl_b32 s42, s{sHEAD}, 17")
    a(f"s_add_u32 s42, s42, {WS_KV}")
    a("s_mov_b32 s43, s42")
    a("v_mov_b32 v3, 0xff800000")
    a("s_mov_b32 s44, 64")
    a("L_fb_max:")
    a(f"buffer_load_dwordx4 {vr(KF,4)}, v2, {R(SWS)}, s43 offen sc1")
    a("s_add_u32 s43, s43, 2048")
    mfma(a, SA, KF, Q, "0")
    for r in range(0, 16, 2): a(f"v_max3_f32 v3, v3, v{SA+r}, v{SA+r+1}")
    a("s_sub_u32 s44, s44, 1")
    a("s_cmp_lg_u32 s44, 0")
    a("s_cbranch_scc1 L_fb_max")
    a(f"v_mov_b32 v{SB}, v3")
    a(f"v_permlane32_swap_b32 v{SB}, v3")
    a(f"v_max_f32 v3, v3, v{SB}")
    for r in range(16):
        a(f"v_sub_f32 v{SB+r}, 0, v3")
        a(f"v_mov_b32 v{O+r}, 0")
    a("s_mov_b32 s44, 64")
    a("L_fb_pv:")
    a(f"buffer_load_dwordx4 {vr(KF,4)}, v2, {R(SWS)}, s42 offen sc1")
    a("s_mov_b64 exec, s[48:49]")
    for jj in range(2): a(f"buffer_load_dwordx4 {vr(VF+4*jj,4)}, v{VV}, {R(SWS)}, s42 offen offset:{512*jj} sc1")
    exec_all(a)
    a("s_add_u32 s42, s42, 2048")
    mfma(a, SA, KF, Q, vr(SB, 16))
    for r in range(16): a(f"v_exp_f32 v{SA+r}, v{SA+r}")
    for jj in range(2): a(f"v_smfmac_f32_32x32x32_bf16 {vr(O,16)}, {vr(VF+4*jj,4)}, {vr(SA+8*jj,8)}, v{IDX}")
    a("s_nop 15\ns_nop 3")
    a("s_sub_u32 s44, s44, 1")
    a("s_cmp_lg_u32 s44, 0")
    a("s_cbranch_scc1 L_fb_pv")
    a("s_branch L_attn_fin")

VA2 = 254
def spoll(a, load, regs, m, first_issued=False):
    lp, dn, ck = a.label("spoll"), a.label("sdone"), a.label("schk")
    a(f"s_mov_b32 s{sCNT}, {1 << OPT['pl']}")
    if first_issued: a(f"s_branch {ck}")
    a(f"{lp}:")
    load()
    a("s_waitcnt vmcnt(0)")
    if first_issued: a(f"{ck}:")
    if m is None: m = regs[0]
    else:
        for q, d in enumerate(regs): maxacc(a, m, d, q == 0)
    a(f"v_cmp_eq_u32 vcc, -1, v{m}")
    a(f"s_cbranch_vccz {dn}")
    a(f"s_sub_u32 s{sCNT}, s{sCNT}, 1")
    a(f"s_cbranch_scc0 {lp}")
    a(f"{dn}:")

def phaseC(a):
    a("s_lshr_b32 s46, s3, 1")
    a(f"s_lshl_b32 s45, s{sTC}, 5")
    a("s_lshl_b32 s44, s46, 3")
    a("s_add_u32 s45, s45, s44")
    a("s_lshl_b32 s45, s45, 10")
    a(f"s_add_u32 s45, s45, {WS_O}")
    a("s_add_u32 s47, s45, 4096")
    def ldO():
        for kk in range(8): a(f"buffer_load_dwordx4 {vr(4+4*kk,4)}, v2, {R(SWS)}, s{45 if kk < 4 else 47} offen offset:{(kk&3)*1024} sc1")
    pm(a, "c0")
    if OPT["oe"]: ldO()
    a(f"v_add_u32 v{VA2}, {48*KB}, v2")
    a(f"s_mul_i32 s44, s3, {12*KB}")
    a(f"v_add_u32 v88, s44, v2")
    a("v_lshrrev_b32 v3, 2, v1")
    a("v_xor_b32 v3, v3, v1")
    a("v_bfe_u32 v3, v3, 2, 1")
    a("v_add_u32 v3, -1, v3")
    for q in range(4): a(f"v_and_b32 v{84+q}, 0x3f803f80, v3")
    a(f"v_add_u32 v91, {L_CS13}, v90")
    a("s_barrier")
    pm(a, "c0b")
    for hf in range(2):
        for q in range(6): a(f"ds_read_b128 {vr(36+4*q,4)}, v88 offset:{(6*hf+q)*KB}")
        for q in range(6): mfs(a, 60+4*(q%3), 84, 36+4*q, "0" if hf == 0 and q < 3 else None)
    exec_lo32(a)
    for j in range(3): a(f"ds_add_f32 v91, v{60+4*j} offset:{128*j}")
    exec_all(a)
    if OPT["cpr"]:
        a("v_lshlrev_b32 v89, 10, v1\nv_mov_b32 v3, 0")
        def prO():
            a("s_mov_b64 exec, 0xff")
            a(f"buffer_load_dword v3, v89, {R(SWS)}, s45 offen offset:1020 sc1")
            exec_all(a)
        spoll(a, prO, [3], None)
    spoll(a, ldO, [4+4*kk for kk in range(8)], 3, first_issued=OPT["oe"])
    pm(a, "c1")
    for s in range(1, 4):
        a(f"s_xor_b32 s44, s3, {2*s}")
        a(f"s_mul_i32 s44, s44, {6*KB}")
        a(f"s_add_u32 s44, s44, {L_REDC + (s-1)*2*KB}")
        a(f"v_add_u32 v{84+s}, s44, v2")
    a(f"s_mul_i32 s44, s3, {6*KB}")
    a(f"s_add_u32 s44, s44, {L_REDC}")
    a("v_add_u32 v84, s44, v2")
    def wrc(s, e): a(f"ds_write_b128 v{84+s}, {vr(36+8*s+4*e,4)} offset:{1024*e}")
    if OPT["cj"]:
        for tj in (1, 0):
            for kk in range(8):
                mfma(a, 36+16*tj, WO+4*(2*kk+tj), 4+4*kk, "0" if kk == 0 else None)
                if tj == 0 and 2 <= kk < 6: wrc(2 + ((kk-2) >> 1), kk & 1)
        wrc(1, 0); wrc(1, 1)
    else:
        for kk in range(8):
            for tj in range(2): mfma(a, 36+16*tj, WO+4*(2*kk+tj), 4+4*kk, "0" if kk == 0 else None)
        for s in (1, 2, 3): wrc(s, 0); wrc(s, 1)
    for j in range(4):
        a(f"v_lshlrev_b32 v{4+2*j}, 16, v{XRES+j}")
        a(f"v_and_b32 v{5+2*j}, 0xffff0000, v{XRES+j}")
    for r in range(8): a(f"v_add_f32 v{36+r}, v{36+r}, v{4+r}")
    a.waitlg()
    a("s_barrier")
    for s in range(3):
        a(f"ds_read_b128 {vr(44+8*s,4)}, v84 offset:{s*2048}")
        a(f"ds_read_b128 {vr(48+8*s,4)}, v84 offset:{s*2048+1024}")
    slot_H(a, 44, 45)
    for s in range(3):
        for r in range(8): a(f"v_add_f32 v{36+r}, v{36+r}, v{44+8*s+r}")
    pack8(a, HB, 36)
    nosent(a, HB)
    flavored(a, [f"buffer_store_dwordx4 {vr(HB,4)}, v2, {R(SWS)}, s44 offen"])
    a("v_add_f32 v4, v36, v37\nv_mul_f32 v5, v36, v36\nv_fmac_f32 v5, v37, v37")
    for r in range(2, 8):
        a(f"v_add_f32 v4, v4, v{36+r}")
        a(f"v_fmac_f32 v5, v{36+r}, v{36+r}")
    a("v_mov_b32 v6, v4\nv_mov_b32 v7, v5")
    a("v_permlane32_swap_b32 v6, v4\nv_permlane32_swap_b32 v7, v5")
    a("v_add_f32 v4, v4, v6\nv_add_f32 v5, v5, v7")
    a("s_and_b32 s44, s3, 1")
    a("s_lshl_b32 s44, s44, 8")
    a(f"s_add_u32 s44, s44, {L_ST2}")
    a("v_lshl_add_u32 v6, v90, 1, s44")
    exec_lo32(a)
    a("ds_add_f32 v6, v4\nds_add_f32 v6, v5 offset:4")
    exec_all(a)
    a(f"v_mov_b32 v{VST}, v91")
    pm(a, "c2")
    a.waitlg()
    a("s_barrier")
    lab = a.label("nost")
    a("s_cmp_ge_u32 s3, 2")
    a(f"s_cbranch_scc1 {lab}")
    a("ds_read_b64 v[4:5], v6")
    a(f"s_lshl_b32 s44, s{sTC}, 3")
    a(f"s_add_u32 s44, s44, s{sCS}")
    a("s_lshl_b32 s44, s44, 9")
    a(f"s_add_u32 s44, s44, {WS_ST2}")
    a(f"v_mov_b32 v13, s{sT}\nv_mov_b32 v15, s{sT}")
    a("v_lshlrev_b32 v7, 2, v90")
    a("v_mov_b32 v12, v4\nv_mov_b32 v14, v5")
    exec_lo32(a)
    flavored(a, [f"buffer_store_dwordx4 v[12:15], v7, {R(SWS)}, s44 offen"])
    exec_all(a)
    a(f"{lab}:")
    a("@forget")

def bump(a):
    lab2 = a.label("nobump")
    a("s_or_b32 s44, s2, s3")
    a("s_cmp_lg_u32 s44, 0")
    a(f"s_cbranch_scc1 {lab2}")
    a("v_mov_b32 v3, s63")
    a("s_mov_b64 exec, 1")
    a(f"buffer_store_dword v3, off, {R(SWS)}, 0 sc1")
    a("s_waitcnt vmcnt(0)")
    a(f"{lab2}:")

def phaseD(a):
    ACC, WF, HR, CSF, STL, MF, C1, IR, MX = 4, 52, 76, 124, 136, 152, 244, 245, 246
    NR = 12
    WB = [WF, WF+12, CSF]
    def passed():
        a(f"v_mov_b32 v3, {L_CN2}\nv_mov_b32 v{MX}, 1")
        a("s_mov_b64 exec, 1")
        a(f"ds_add_u32 v3, v{MX}")
        exec_all(a)
    lab = a.label("dgo")
    a(f"s_cmp_lt_u32 s{sM}, 29")
    a(f"s_cbranch_scc1 {lab}")
    passed()
    a("s_branch L_djoin")
    a(f"{lab}:")
    d_tile(a, 46, 44)
    a("s_lshl_b32 s44, s46, 15")
    a(f"s_add_u32 s44, s44, {WS_H}")
    a("s_lshl_b32 s47, s46, 12")
    a(f"s_add_u32 s47, s47, {WS_ST2}")
    a("v_lshrrev_b32 v3, 5, v1")
    a("v_lshlrev_b32 v247, 11, v3")
    a("v_lshl_add_u32 v247, v90, 2, v247")
    PL = OPT["dpl"]
    sh = {64: 9, 32: 10, 16: 11, 8: 12}[PL]
    a(f"v_lshlrev_b32 v255, {sh}, v1")
    a(f"v_add_u32 v255, {(1 << sh) - 4}, v255")
    a(f"s_mov_b32 s101, {OPT['rb']}")
    def rdW(ks, j, d):
        a(f"ds_read_b128 {vr(d,4)}, v{VA2 if ks >= 16 else 2} offset:{(ks&15)*3*KB + j*KB}")
    lab = a.label("dyoung")
    a("s_cmp_ge_u32 s3, 4")
    a(f"s_cbranch_scc1 {lab}")
    a(f"s_setprio {OPT['dpr']}")
    a(f"{lab}:")
    a("L_dredo:")
    a("v_mov_b32 v3, 0")
    for ks in range(2):
        for j in range(3): rdW(ks, j, WB[ks]+4*j)
    SP = OPT["dsp"]
    def probe():
        a("s_mov_b32 s45, s44")
        if PL < 64: a(f"s_mov_b64 exec, {hex((1 << PL) - 1)}")
        a(f"buffer_load_dword v3, v255, {R(SWS)}, s44 offen sc1")
        if PL < 64: exec_all(a)
        for ks in range(SP): ldH(ks)
    def ldH(ks):
        if ks and ks % 4 == 0: a("s_add_u32 s45, s45, 4096")
        a(f"buffer_load_dwordx4 {vr(HR+4*(ks%NR),4)}, v2, {R(SWS)}, s45 offen offset:{(ks&3)*1024} sc1")
    def ldst():
        for p in range(4): a(f"buffer_load_dwordx4 {vr(STL+4*p,4)}, v247, {R(SWS)}, s47 offen offset:{p*512} sc1")
    def stats():
        poll(a, ldst, [STL+1, STL+3, STL+5, STL+7, STL+9, STL+11, STL+13, STL+15], first_issued=True)
        for p in range(1, 4):
            a(f"v_add_f32 v{STL}, v{STL}, v{STL+4*p}")
            a(f"v_add_f32 v{STL+2}, v{STL+2}, v{STL+4*p+2}")
        a(f"v_mov_b32 v{STL+1}, v{STL}\nv_mov_b32 v{STL+3}, v{STL+2}")
        a(f"v_permlane32_swap_b32 v{STL+1}, v{STL}\nv_permlane32_swap_b32 v{STL+3}, v{STL+2}")
        a(f"v_add_f32 v{STL}, v{STL}, v{STL+1}\nv_add_f32 v{STL+2}, v{STL+2}, v{STL+3}")
        a(f"v_mul_f32 v{STL}, {fh(-1/512)}, v{STL}")
        a(f"v_mul_f32 v{STL+1}, v{STL}, v{STL}")
        a(f"v_mov_b32 v{STL+3}, {fh(1/512)}")
        a(f"v_fma_f32 v{IR}, v{STL+2}, v{STL+3}, -v{STL+1}")
        a(f"v_max_f32 v{IR}, 0, v{IR}")
        a(f"v_add_f32 v{IR}, {fh(1e-5)}, v{IR}")
        a(f"v_rsq_f32 v{C1}, v{IR}")
        hilo(a, MF, STL, STL+4, False)
        a(f"v_mul_f32 v{C1}, {fh(-LOG2E)}, v{C1}")
        slot_A(a, 50, 51)
    spoll(a, probe, [3], None)
    pm(a, "d0")
    seq = [(j, ks) for j in range(3) for ks in range(24, 32)]
    def rdT(n):
        j, ks = seq[n]
        rdW(ks, j, WF+4*(n%6))
    N0 = max(OPT["dn0"], SP)
    nl = N0
    for ks in range(SP, N0): ldH(ks)
    for ks in range(24):
        if ks == 22: stats()
        for j in range(3):
            if ks < 22: rdW(ks+2, j, WB[(ks+2)%3]+4*j)
            elif ks == 22: rdT(j)
            elif j < 2: rdT(3+j)
            mfma(a, ACC+16*j, WB[ks%3]+4*j, HR+4*(ks%NR), "0" if ks == 0 else None)
            if j == 0: maxacc(a, MX, HR+4*(ks%NR), ks == 0)
            if j == 1 and nl < 32 and nl < ks + NR: ldH(nl); nl += 1
        if nl < 32 and nl <= ks + NR: ldH(nl); nl += 1
        if ks == 8: ldst()
        pm(a, f"dk{ks}")
    assert nl == 32
    for ks in range(24, 32): maxacc(a, MX, HR+4*(ks%NR))
    a(f"v_cmp_eq_u32 vcc, -1, v{MX}")
    a("s_cbranch_vccnz L_dfix")
    a("L_dok:")
    passed()
    CS = STL + 8
    for j in range(3): a(f"v_mov_b32 v{CS+j}, 0")
    exec_lo32(a)
    for j in range(3): a(f"ds_read_b32 v{CS+j}, v{VST} offset:{128*j}")
    exec_all(a)
    def epi(j):
        c = ACC + 16*j; T = STL + 8*(j & 1)
        L = []
        for r in range(8): L.append(f"v_mul_f32 v{T+r}, v{C1}, v{c+r}")
        for r in range(8): L.append(f"v_exp_f32 v{T+r}, v{T+r}")
        for r in range(8): L.append(f"v_mul_f32 v{c+r}, v{c+r}, v{c+8+r}")
        for r in range(8): L.append(f"v_fma_f32 v{T+r}, v{T+r}, v{IR}, v{IR}")
        for r in range(8): L.append(f"v_rcp_f32 v{T+r}, v{T+r}")
        for r in range(8): L.append(f"v_mul_f32 v{c+r}, v{c+r}, v{T+r}")
        for q in range(4): L.append(f"v_cvt_pk_bf16_f32 v{c+8+q}, v{c+2*q}, v{c+2*q+1}")
        for q in range(4): L.append(f"v_min_u32 v{c+8+q}, -2, v{c+8+q}")
        return L
    def st(j):
        flavored(a, [f"buffer_store_dwordx4 {vr(ACC+16*j+8,4)}, v2, {R(SWS)}, s{51 if j == 2 else 50} offen offset:{j*1024}"])
    pend = []
    for n, (j, ks) in enumerate(seq):
        if n + 5 < len(seq): rdT(n+5)
        mfma(a, ACC+16*j, WF+4*(n%6), HR+4*(ks%NR))
        if 2 <= n < 5: hilo(a, CSF+4*(n-2), CS+n-2, CS+4, True)
        if ks == 31:
            pm(a, f"dg{j}")
            mfma(a, ACC+16*j, CSF+4*j, MF)
            if pend:
                for l in pend: a(l)
                st(j-1)
            pend = epi(j)
        elif pend and ks >= 26:
            for l in pend[:11]: a(l)
            pend = pend[11:]
    for l in pend: a(l)
    st(2)
    a("s_setprio 0")
    a("L_djoin:")
    a("@forget")
    pm(a, "d9")

def dfix(a):
    a("L_dfix:")
    a("s_waitcnt vmcnt(0) lgkmcnt(0)")
    a("s_nop 15\ns_nop 3")
    a("s_sub_u32 s101, s101, 1")
    a("s_cbranch_scc0 L_dredo")
    a("s_branch L_dok")

def e_ld(a, n):
    T, kk = n // 11, n % 11
    d = vr(4 + 44*T + 4*kk, 4)
    if kk < 9:
        a(f"buffer_load_dwordx4 {d}, v2, {R(SWS)}, s{50+4*T+(kk>>2)} offen offset:{(kk&3)*1024} sc1")
    else:
        a(f"buffer_load_dwordx4 {d}, v2, {R(SWS)}, s{96+2*T+kk-9} offen sc1")

def phaseE(a):
    AF, ACC, MX, PV, PR = 4, 92, 255, 254, 253
    a("s_mul_i32 s46, s3, 11")
    for T in range(2):
        b = 50 + 4*T
        a(f"s_and_b32 s{b}, s{sTC}, 0xfffffffe")
        if T: a(f"s_add_u32 s{b}, s{b}, 1")
        a(f"s_mul_i32 s{b}, s{b}, 86")
        a(f"s_add_u32 s{b+3}, s{b}, 85")
        a(f"s_add_u32 s{b}, s{b}, s46")
        a(f"s_lshl_b32 s{b}, s{b}, 10\ns_lshl_b32 s{b+3}, s{b+3}, 10")
        a(f"s_add_u32 s{b}, s{b}, {WS_ACT}\ns_add_u32 s{b+3}, s{b+3}, {WS_ACT}")
        a(f"s_add_u32 s{b+1}, s{b}, 4096\ns_add_u32 s{b+2}, s{b}, 8192")
        for q in range(2):
            a(f"s_add_u32 s{96+2*T+q}, s{b}, {(9+q)*KB}")
            a(f"s_min_u32 s{96+2*T+q}, s{96+2*T+q}, s{b+3}")
    EH = OPT["epl"] == 22
    a("s_sub_u32 s44, s97, s50")
    if EH: a("s_add_u32 s44, s44, 512")
    a(f"v_lshlrev_b32 v{PV}, {9 if EH else 10}, v1")
    a(f"v_min_u32 v{PV}, s44, v{PV}")
    a(f"s_mov_b32 s101, {OPT['rb']}")
    a("s_lshr_b32 s46, s3, 1")
    a("s_and_b32 s47, s3, 1")
    def ldpr(T):
        a(f"s_mov_b64 exec, {hex((1 << OPT['epl']) - 1)}")
        a(f"buffer_load_dword v{PR}, v{PV}, {R(SWS)}, s{50+4*T} offen offset:{508 if EH else 1020} sc1")
        exec_all(a)
    a(f"v_mov_b32 v{PR}, 0")
    SP = OPT["esp"]
    def wr(T, q):
        b = ACC + 32*T + 16*(q >> 1) + 8*(q & 1)
        lab = a.label("own")
        a(f"s_xor_b32 s45, s47, {T}")
        if q == 0:
            a("s_cmp_eq_u32 s45, 0")
            a(f"s_cbranch_scc1 {lab}")
        a(f"s_xor_b32 s44, s46, {q}")
        a(f"s_mul_i32 s44, s44, 7")
        a("s_add_u32 s44, s44, s45")
        a("s_lshl_b32 s44, s44, 11")
        a(f"s_add_u32 s44, s44, {(L_REDE[T] + (2*q-1)*2*KB) & 0xffffffff}")
        a(f"v_add_u32 v{244+q}, s44, v2")
        a(f"ds_write_b128 v{244+q}, {vr(b,4)}")
        a(f"ds_write_b128 v{244+q}, {vr(b+4,4)} offset:1024")
        if q == 0: a(f"{lab}:")
    for T in range(2):
        def probe():
            ldpr(T)
            for n in range(SP): e_ld(a, 11*T+n)
        pre = T == 1 and OPT["epr"] >= 0
        if pre:
            lp, go = a.label("eslow"), a.label("ego")
            a(f"v_cmp_eq_u32 vcc, -1, v{PR}")
            a(f"s_cbranch_vccz {go}")
            spoll(a, lambda: ldpr(T), [PR], None)
            a(f"{go}:")
            nl = 0
        else:
            spoll(a, probe, [PR], None)
            nl = SP
        pm(a, f"e{T}s")
        N0 = OPT["en0"]
        while nl < N0: e_ld(a, 11*T+nl); nl += 1
        if T == 1:
            for q in range(OPT["ew0"]): wr(0, q)
        a(f"L_eredo{T}:")
        for kk in range(11):
            for tj in range(2):
                mfma(a, ACC+32*T+16*tj, W2+4*(2*kk+tj), AF+44*T+4*kk, "0" if kk == 0 else None)
                if tj == 0: maxacc(a, MX, AF+44*T+4*kk, kk == 0)
                if nl < 11: e_ld(a, 11*T+nl); nl += 1
            if T == 1 and kk in (1, 3, 5, 7) and (kk >> 1) >= OPT["ew0"]: wr(0, kk >> 1)
            if T == 0 and kk == OPT["epr"]: ldpr(1)
            pm(a, f"e{T}k{kk}")
        a(f"v_cmp_eq_u32 vcc, -1, v{MX}")
        a(f"s_cbranch_vccnz L_efix{T}")
        a(f"L_eok{T}:")
    lp, dn = a.label("cn2"), a.label("cn2d")
    a(f"v_mov_b32 v3, {L_CN2}")
    a(f"s_mov_b32 s{sCNT}, {1 << 20}")
    a(f"{lp}:")
    a(f"ds_read_b32 v{PR}, v3")
    a("s_waitcnt lgkmcnt(0)")
    a(f"v_cmp_ne_u32 vcc, 8, v{PR}")
    a(f"s_cbranch_vccz {dn}")
    a(f"s_sub_u32 s{sCNT}, s{sCNT}, 1")
    a(f"s_cbranch_scc0 {lp}")
    a(f"{dn}:")
    for j in range(4):
        a(f"v_lshlrev_b32 v{4+2*j}, 16, v{HB+j}")
        a(f"v_and_b32 v{5+2*j}, 0xffff0000, v{HB+j}")
    a(f"s_mul_i32 s45, s46, {14*KB}")
    a("s_cmp_eq_u32 s47, 0")
    a(f"s_cselect_b32 s44, {L_REDE[0]}, {L_REDE[1]}")
    a("s_add_u32 s45, s45, s44")
    a(f"v_add_u32 v3, s45, v2")
    for q in (3, 2, 1, 0): wr(1, q)
    lab, lb2 = a.label("odd"), a.label("sum")
    a("s_cmp_lg_u32 s47, 0")
    a(f"s_cbranch_scc1 {lab}")
    for r in range(8): a(f"v_add_f32 v{ACC+r}, v{ACC+r}, v{4+r}")
    a(f"s_branch {lb2}")
    a(f"{lab}:")
    for r in range(8): a(f"v_add_f32 v{ACC+r}, v{ACC+32+r}, v{4+r}")
    a(f"{lb2}:")
    a.waitlg()
    pm(a, "e3")
    a("s_barrier")
    pm(a, "e4")
    for s in range(7):
        a(f"ds_read_b128 {vr(4+8*s,4)}, v3 offset:{s*2048}")
        a(f"ds_read_b128 {vr(8+8*s,4)}, v3 offset:{s*2048+1024}")
    for s in range(7):
        for r in range(8): a(f"v_add_f32 v{ACC+r}, v{ACC+r}, v{4+8*s+r}")
    pack8(a, 4, ACC)
    a(f"buffer_store_dwordx4 v[4:7], v{VRES}, {R(SOUT)}, s{sRES} offen")
    pm(a, "e5")

def efix(a):
    for T in range(2):
        a(f"L_efix{T}:")
        a("s_waitcnt vmcnt(0) lgkmcnt(0)")
        a("s_nop 15\ns_nop 3")
        a("s_sub_u32 s101, s101, 1")
        a(f"s_cbranch_scc1 L_eok{T}")
        for kk in range(11): e_ld(a, 11*T + kk)
        a("s_waitcnt vmcnt(0)")
        a(f"s_branch L_eredo{T}")

def build():
    a = Asm()
    name = NAME + "_kernel"
    kernel_begin(a, name)
    prologue(a)
    stop = OPT["stop"]
    a("s_cmp_ge_u32 s3, 4")
    a("s_cbranch_scc1 L_helper")
    phaseA_mfma(a)
    if stop > 1: attn_setup(a)
    phaseA_mfma_pub(a)
    if stop > 1:
        attn_setup2(a)
        attn_loop(a, True)
    else: a("s_waitcnt vmcnt(0) lgkmcnt(0)")
    a("s_branch L_attn_done")
    a("L_helper:")
    phaseA_helper(a)
    if stop > 1:
        attn_setup(a); attn_setup2(a); prep_rd(a)
        phaseA_helper_load(a)
        if OPT["ps"] < 0: prep_st(a)
        attn_loop(a, False)
    else: a("s_waitcnt vmcnt(0) lgkmcnt(0)")
    a("L_attn_done:")
    if stop > 1:
        attn_finish(a)
        if stop > 2:
            phaseC(a)
            if stop > 3:
                phaseD(a)
                if stop > 4: phaseE(a)
            bump(a)
    prof_end(a)
    if stop > 1: fallback(a)
    if stop > 3: dfix(a)
    if stop > 4: efix(a)
    a("L_exit:")
    a("s_endpgm")
    hdr = open("cdna_kernels/" + NAME + ".s.ref").read().split("; Override launch")[0]
    out = hdr + f"; @launch grid=(256,1,1) block=(512,1,1) lds={LDS_BYTES}\n"
    out += '.amdgcn_target "amdgcn-amd-amdhsa--gfx950"\n.text\n'
    out += a.finalize()
    out += '.section .rodata,"a"\n.p2align 6\n' + kernel_desc(name, 256)
    print("auto:", a.stats, "instrs", len(a.ins), file=sys.stderr)
    return out

if __name__ == "__main__":
    Prof.on = "prof" in sys.argv
    Prof.cyc = "cyc" in sys.argv
    OPT["fast"] = "fast" in sys.argv
    for x in sys.argv[2:]:
        if x.startswith("marks="): MARKS[:] = x[6:].split(",")
        elif "=" in x: OPT[x.split("=")[0]] = int(x.split("=")[1])
    open(sys.argv[1], "w").write(build())
```

```python
import sys
from asm2 import *

NAME = "sequential_preLN__softmax_full_mha__glu_gated_swiglu__prompt"
KB = 1024; MB = 1 << 20
WS_EPOCH = 0
WS_IDS  = 4 * KB
WS_FQKV = 8 * KB
WS_FW   = 16 * KB
WS_CLR  = 20 * KB
WS_CSP  = 3 * MB
WS_ST2  = 128 * KB
WS_Q    = 1 * MB
WS_KV   = 4 * MB
WS_O    = 8 * MB
WS_H    = 10 * MB
WS_ACT  = 12 * MB
WS_WTO  = 18 * MB
WS_WT2  = 19 * MB
WS_WT13 = 21 * MB
WS_END  = 24 * MB
NX = 5
LOG2E = 1.4426950408889634
L_X    = 96 * KB
L_MISC = 156 * KB
L_CS13 = L_MISC + 768
L_ST2  = L_MISC + 1280
L_MFW  = L_MISC + 3584
L_RS   = L_MISC + 3840
L_CNT  = L_MISC + 1800
L_CN2  = L_MISC + 1804
L_PR1  = 136 * KB
L_PR2  = 152 * KB
L_STG  = 128 * KB
L_REDC = 96 * KB
L_REDE = (96 * KB, 0)
LDS_BYTES = 160 * KB
SX, SWQ, SWS, SWO, SW1, SW3, SW2, SOUT = 4, 8, 12, 16, 20, 24, 28, 32
sT, sG, sM, sFAST, sID, sCNT = 36, 37, 38, 39, 40, 41
sP, sTB, sHEAD, sTT, sTC, sCS, sRES = 56, 57, 58, 59, 60, 61, 62
POLL_LIMIT = 1 << 17
OPT = dict(stop=99, fast=False, lax=3, pc=5, sj=7, tw=14, tc=14, tc1=44, we=48, wl=5, da=47, db=60, tp=-1, tss=1, nid=22, nck=28, xa=0, xo=1, sm=1, tf=4, oe=0, dn0=6, dpl=8, epl=11, cpr=0, dsp=3, dpr=2, cj=1, esp=3, en0=11, epr=4, ew0=0, pl=17, rb=16)

MARKS = "a0,a1,a2,a3,b0,b9,c0,c1,c2,d0,d9,e0".split(",")
def pm(a, name):
    if name in MARKS: prof_mark(a, MARKS.index(name))
def R(d, n=4): return sr(d, n)

def tr_addr(a, d, t, row_shift=6, cg_mul=32):
    a(f"v_lshrrev_b32 v{d}, 5, v1")
    a(f"v_lshlrev_b32 v{d}, {row_shift+3}, v{d}")
    a(f"v_bfe_u32 v{t}, v1, 2, 2")
    a(f"v_lshl_add_u32 v{d}, v{t}, {row_shift}, v{d}")
    a(f"v_bfe_u32 v{t}, v1, 4, 1")
    a(f"v_mul_u32_u24 v{t}, {cg_mul}, v{t}")
    a(f"v_add_u32 v{d}, v{d}, v{t}")
    a(f"v_and_b32 v{t}, 1, v1")
    a(f"v_lshl_add_u32 v{d}, v{t}, 4, v{d}")
    a(f"v_bfe_u32 v{t}, v1, 1, 1")
    a(f"v_lshl_add_u32 v{d}, v{t}, 3, v{d}")

def pi_lane(a, d, t):
    a(f"v_and_b32 v{d}, 0x33, v1")
    a(f"v_bfe_u32 v{t}, v1, 2, 1")
    a(f"v_lshl_add_u32 v{d}, v{t}, 3, v{d}")
    a(f"v_bfe_u32 v{t}, v1, 3, 1")
    a(f"v_lshl_add_u32 v{d}, v{t}, 2, v{d}")

def pack8(a, d, s):
    for j in range(4): a(f"v_cvt_pk_bf16_f32 v{d+j}, v{s+2*j}, v{s+2*j+1}")

def mfma(a, d, A, B, c=None):
    a(f"v_mfma_f32_32x32x16_bf16 {vr(d,16)}, {vr(A,4)}, {vr(B,4)}, {vr(d,16) if c is None else c}")

def tr2(a, d, addr, off, addr2=None, tag=None):
    a(f"ds_read_b64_tr_b16 {vr(d,2)}, v{addr} offset:{off}", tag)
    if addr2 is None: a(f"ds_read_b64_tr_b16 {vr(d+2,2)}, v{addr} offset:{off+256}", tag)
    else: a(f"ds_read_b64_tr_b16 {vr(d+2,2)}, v{addr2} offset:{off}", tag)

def exec_lo32(a): a("s_mov_b64 exec, 0xffffffff")
def exec_all(a): a("s_mov_b64 exec, -1")

def flavored(a, lines, tag=None):
    if not OPT["fast"]:
        for l in lines: a(l + " sc1", tag)
        return
    lf, ld = a.label("fast"), a.label("fdone")
    a(f"s_cmp_lg_u32 s{sFAST}, 0")
    a(f"s_cbranch_scc1 {lf}")
    for l in lines: a(l + " sc1", tag)
    a(f"s_branch {ld}")
    a(f"{lf}:")
    for l in lines: a(l, tag)
    a(f"{ld}:")

def flag_store(a, soff, vt, local=True):
    a(f"v_mov_b32 v{vt}, s{sT}")
    a("s_mov_b64 exec, 1")
    l = f"buffer_store_dword v{vt}, off, {R(SWS)}, s{soff}"
    if local: flavored(a, [l])
    else: a(l + " sc1")
    exec_all(a)

def poll(a, load, checks, first_issued=False):
    lp, dn, ck = a.label("poll"), a.label("pdone"), a.label("pchk")
    a(f"s_mov_b32 s{sCNT}, {1 << OPT['pl']}")
    if first_issued: a(f"s_branch {ck}")
    a(f"{lp}:")
    load()
    a("s_waitcnt vmcnt(0)")
    if first_issued: a(f"{ck}:")
    a(f"v_cmp_ne_u32 vcc, s{sT}, v{checks[0]}")
    for c in checks[1:]:
        a(f"v_cmp_ne_u32 s[42:43], s{sT}, v{c}")
        a("s_or_b64 vcc, vcc, s[42:43]")
    a(f"s_cbranch_vccz {dn}")
    a(f"s_sub_u32 s{sCNT}, s{sCNT}, 1")
    a(f"s_cbranch_scc0 {lp}")
    a(f"{dn}:")

def hilo(a, d, src, t, dup):
    a(f"v_and_b32 v{t}, 0xffff0000, v{src}")
    a(f"v_sub_f32 v{t+1}, v{src}, v{t}")
    if dup:
        a(f"v_cvt_pk_bf16_f32 v{d}, v{t}, v{t}")
        a(f"v_cvt_pk_bf16_f32 v{d+1}, v{t+1}, v{t+1}")
    else:
        a(f"v_cvt_pk_bf16_f32 v{d}, v{t}, v{t+1}")
        a(f"v_cvt_pk_bf16_f32 v{d+1}, v{t}, v{t+1}")
    a(f"v_mov_b32 v{d+2}, 0")
    a(f"v_mov_b32 v{d+3}, 0")

def allreduce32(a, v, t):
    for m in ("quad_perm:[1,0,3,2]", "quad_perm:[2,3,0,1]", "row_half_mirror", "row_mirror"):
        a(f"v_add_f32 v{v}, v{v}, v{v} {m} row_mask:0xf bank_mask:0xf")
    a(f"v_mov_b32 v{t}, v{v}")
    a(f"v_permlane16_swap_b32 v{t}, v{v}")
    a(f"v_add_f32 v{v}, v{v}, v{t}")

def ids_check(a, v):
    a(f"v_cmp_ne_u32 vcc, s{sID}, v{v}")
    a("s_cmp_eq_u64 vcc, 0")
    a(f"s_cselect_b32 s{sFAST}, 1, 0")

def prologue(a):
    a("s_cmp_ge_u32 s2, 256")
    a("s_cbranch_scc1 L_exit")
    a("s_load_dwordx16 s[40:55], s[0:1], 0")
    a("s_load_dwordx2 s[62:63], s[0:1], 72")
    prof_begin(a)
    a("v_and_b32 v1, 63, v0")
    a("v_lshrrev_b32 v2, 6, v0")
    a("v_readfirstlane_b32 s3, v2")
    a("v_lshlrev_b32 v2, 4, v1")
    a(f"s_and_b32 s{sG}, s2, 7")
    a(f"s_lshr_b32 s{sM}, s2, 3")
    a(f"s_lshr_b32 s{sP}, s{sM}, 4")
    a(f"s_lshl_b32 s{sTB}, s{sG}, 1")
    a(f"s_add_u32 s{sP}, s{sP}, s{sTB}")
    a(f"s_and_b32 s{sTB}, s{sM}, 15")
    a(f"s_bfe_u32 s{sHEAD}, s{sM}, 0x10003")
    a(f"s_lshl_b32 s{sTT}, s{sP}, 1")
    a(f"s_add_u32 s{sHEAD}, s{sHEAD}, s{sTT}")
    a(f"s_and_b32 s{sCS}, s{sM}, 7")
    a(f"s_mov_b32 s{sFAST}, 0")

def prologue2(a, part=3):
    if part & 1:
        a("s_waitcnt lgkmcnt(0)")
        a("s_load_dword s36, s[62:63], 0")
        srd(a, SX, 40, 2048*1024)
        srd(a, SWQ, 42, 512*3072)
    if not part & 2: return
    srd(a, SWS, 62, WS_END)
    srd(a, SWO, 44, 512*1024)
    srd(a, SW1, 48, 512*2752)
    srd(a, SW3, 50, 512*2752)
    srd(a, SW2, 52, 1376*1024)
    srd(a, SOUT, 54, 2048*1024)

def tag_ready(a):
    a("s_waitcnt lgkmcnt(0)")
    a(f"s_add_u32 s63, s{sT}, 1")
    a(f"s_mul_i32 s{sT}, s63, 0x9E3779B1")
    a(f"s_getreg_b32 s{sID}, hwreg(HW_REG_XCC_ID)")
    a(f"s_lshl_b32 s{sID}, s{sID}, 28")
    a(f"s_and_b32 s42, s{sT}, 0x0fffffff")
    a(f"s_or_b32 s{sID}, s{sID}, s42")

def wq_addr(a, d, t, sp):
    a(f"v_lshrrev_b32 v{d}, 5, v1")
    a(f"v_mul_u32_u24 v{d}, 3072, v{d}")
    a(f"v_bfe_u32 v{t}, v1, 2, 2")
    a(f"v_lshl_add_u32 v{d}, v{t}, 7, v{d}")
    a(f"v_bfe_u32 v{t}, v1, 3, 1")
    if sp is not None: a(f"v_xor_b32 v{t}, s{sp}, v{t}")
    a(f"v_lshl_add_u32 v{d}, v{t}, 6, v{d}")
    a(f"v_bfe_u32 v{t}, v1, 4, 1")
    a(f"v_lshl_add_u32 v{d}, v{t}, 5, v{d}")
    a(f"v_and_b32 v{t}, 1, v1")
    a(f"v_lshl_add_u32 v{d}, v{t}, 4, v{d}")
    a(f"v_bfe_u32 v{t}, v1, 1, 1")
    a(f"v_lshl_add_u32 v{d}, v{t}, 3, v{d}")

def trw(a, d, addr, off):
    a(f"ds_read_b64_tr_b16 {vr(d,2)}, v{addr} offset:{off}")
    a(f"ds_read_b64_tr_b16 {vr(d+2,2)}, v{addr} offset:{off+512}")

def mfs(a, d, A, B, c=None):
    a(f"v_mfma_f32_16x16x32_bf16 {vr(d,4)}, {vr(A,4)}, {vr(B,4)}, {vr(d,4) if c is None else c}")

def phaseA_mfma(a):
    AQ, AK, AV, XF, WF, VXA, VWA, VWB, G, TM = 16, 32, 48, 144, 156, 4, 8, 3, 96, 104
    CSF, MF, RSB, SEL, CSD, PL, VS, VG, OWN, PUB = 112, 124, 128, 192, 196, 212, 236, 239, 208, 220
    a("s_and_b32 s96, s3, 1")
    a("s_lshr_b32 s97, s3, 1")
    a("v_and_b32 v9, 31, v1")
    a("v_lshrrev_b32 v10, 5, v1")
    a("v_bfe_u32 v11, v1, 1, 3")
    a("v_xor_b32 v11, v11, v10")
    a("v_lshlrev_b32 v11, 4, v11")
    a("v_lshl_add_u32 v11, v9, 7, v11")
    a(f"s_lshl_b32 s98, s96, 12")
    a(f"s_add_u32 s98, s98, {L_X}")
    a("v_add_u32 v11, s98, v11")
    for k in range(4): a(f"v_xor_b32 v{VXA+k}, {32*k}, v11")
    wq_addr(a, VWA, 11, 97)
    a(f"v_add_u32 v{VWB}, {48*KB}, v{VWA}")
    a("v_mov_b32 v16, 0\nv_mov_b32 v17, 0")
    a("s_lshl_b32 s98, s3, 9")
    a(f"s_add_u32 s98, s98, {L_MISC}")
    a("v_lshl_add_u32 v11, v1, 3, s98")
    a("ds_write_b64 v11, v[16:17]")
    prologue2(a)
    a("v_lshrrev_b32 v11, 2, v1")
    a("v_xor_b32 v11, v11, v1")
    a("v_bfe_u32 v11, v11, 2, 1")
    a("v_add_u32 v11, -1, v11")
    for q in range(4): a(f"v_and_b32 v{SEL+q}, 0x3f803f80, v11")
    a("v_lshlrev_b32 v13, 2, v9")
    a("v_lshlrev_b32 v12, 3, v9")
    a(f"v_lshl_add_u32 v{VG}, v10, 10, v12")
    a(f"s_add_u32 s98, s{sM}, 6\ns_add_u32 s99, s{sM}, 3")
    a("s_and_b32 s98, s98, 7\ns_and_b32 s99, s99, 7")
    a("s_lshl_b32 s98, s98, 12\ns_lshl_b32 s99, s99, 12")
    a("s_add_u32 s98, s98, 1024")
    a("s_sub_u32 s99, s99, s98")
    a("v_mul_lo_u32 v11, v10, s99")
    a("v_add3_u32 v12, v12, v11, s98")
    for p in range(3): a(f"v_mov_b32 v{OWN+p}, 0")
    a("s_lshl_b32 s98, s96, 7")
    a(f"s_add_u32 s98, s98, {L_MFW}")
    a("v_add_u32 v14, s98, v13")
    a("v_lshl_add_u32 v15, v10, 4, s98")
    a(f"v_mov_b32 v{MF+2}, 0\nv_mov_b32 v{MF+3}, 0")
    a(f"s_lshl_b32 s44, s{sM}, 1")
    a("s_add_u32 s44, s44, s96")
    a(f"s_lshl_b32 s47, s{sG}, 1")
    a("s_add_u32 s47, s47, s97")
    a(f"s_lshl_b32 s46, s{sG}, 7")
    a(f"s_add_u32 s46, s46, {WS_IDS}")
    a(f"s_lshl_b32 s45, s{sM}, 2")
    a("s_add_u32 s45, s45, s46")
    a(f"s_lshl_b32 s98, s{sG}, 5")
    a(f"s_add_u32 s98, s98, s{sM}")
    a("s_and_b32 s99, s98, 0xfffffff8")
    a("s_lshl_b32 s98, s98, 1\ns_lshl_b32 s99, s99, 1")
    a("s_add_u32 s98, s98, s97\ns_add_u32 s99, s99, s97")
    a("s_lshl_b32 s98, s98, 11\ns_lshl_b32 s99, s99, 11")
    a(f"s_add_u32 s98, s98, {WS_CSP}\ns_add_u32 s99, s99, {WS_CSP}")
    tag_ready(a)
    a(f"v_mov_b32 v{G+5}, s{sID}")
    for p in range(3): a(f"v_mov_b32 v{PUB+2*p+1}, s{sT}")
    def reads(n, part):
        c, k, b = n >> 2, n & 3, n % 3
        if OPT["xa"] & 4 and n > 2: return
        if part == 0: a(f"ds_read_b128 {vr(XF+4*b,4)}, v{VXA+k} offset:{(c%NX)*8*KB}")
        trw(a, WF+12*b+4*part, VWB if c & 2 else VWA, (c&1)*24*KB + k*6*KB + part*KB)
    def ldp():
        for p in range(3): a(f"buffer_load_dwordx2 {vr(PL+2*p,2)}, v12, {R(SWS)}, s99 offen offset:{p*256} sc1")
    def csum(p):
        a(f"v_add_f32 v{PL+2*p}, v{PL+2*p}, v{OWN+p}")
        a(f"v_and_b32 v{TM}, 0xffff0000, v{PL+2*p}")
        a(f"v_sub_f32 v{TM+1}, v{PL+2*p}, v{TM}")
        a(f"v_cvt_pk_bf16_f32 v{CSF+4*p}, v{TM}, v{TM}")
        a(f"v_cvt_pk_bf16_f32 v{CSF+4*p+1}, v{TM+1}, v{TM+1}")
    for p in range(3): a(f"v_mov_b32 v{CSF+4*p+2}, 0\nv_mov_b32 v{CSF+4*p+3}, 0")
    pi_lane(a, VS, VS+1)
    a(f"v_lshlrev_b32 v{VS}, 4, v{VS}")
    a(f"v_and_b32 v{VS+1}, 15, v1\nv_lshlrev_b32 v{VS+1}, 4, v{VS+1}")
    a(f"v_lshl_add_u32 v{VS+1}, v10, 8, v{VS+1}")
    a(f"v_bfe_u32 v{VS+2}, v1, 4, 1")
    a(f"v_lshl_add_u32 v{VS+1}, v{VS+2}, 17, v{VS+1}")
    a("s_lshl_b32 s50, s47, 7")
    a("s_add_u32 s50, s50, s44")
    a("s_lshl_b32 s51, s50, 11")
    a("s_lshl_b32 s50, s50, 10")
    a(f"s_add_u32 s50, s50, {WS_Q}")
    a(f"s_add_u32 s51, s51, {WS_KV}")
    a(f"s_add_u32 s52, s50, {64*KB}")
    a(f"s_add_u32 s53, s51, {128*KB}")
    a("s_lshl_b32 s101, s47, 8")
    a("s_lshl_b32 s44, s44, 2")
    a("s_add_u32 s101, s101, s44")
    a(f"s_add_u32 s101, s101, {WS_FQKV}")
    a("s_cmp_eq_u32 s3, 0")
    a("s_cselect_b64 s[54:55], 1, 0")
    a("s_cmp_eq_u32 s96, 1")
    a("s_cselect_b64 s[48:49], -1, 0")
    F = {}
    def at(n, p, f): F.setdefault((n, p), []).append(f)
    def f_ids():
        a("s_mov_b64 exec, s[54:55]")
        a(f"buffer_store_dword v{G+5}, off, {R(SWS)}, s45 sc1")
        exec_all(a)
    at(5, 0, f_ids)
    def f_s3(p):
        exec_lo32(a)
        a(f"v_mov_b32 v{PUB+2*p}, v{CSD+4*p}\nv_mov_b32 v{OWN+p}, v{CSD+4*p}")
        a("s_mov_b64 exec, s[48:49]")
        a(f"buffer_store_dwordx2 {vr(PUB+2*p,2)}, v{VG}, {R(SWS)}, s98 offen offset:{p*256} sc1")
        exec_all(a)
    NI, NC = OPT["nid"], OPT["nck"]
    for p in range(3):
        at(12, p, lambda p=p: f_s3(p))
        at(NI, p, lambda p=p: a(f"buffer_load_dwordx2 {vr(PL+2*p,2)}, v12, {R(SWS)}, s99 offen offset:{p*256} sc1"))
        at(NC+1, p, lambda p=p: csum(p))
        at(NC+2, p, lambda p=p: mfma(a, AQ+16*p, CSF+4*p, MF) if p < 2 else mfma(a, AV, MF, CSF+8))
    at(NI-1, 2, lambda: a(f"buffer_load_dword v{G+4}, v13, {R(SWS)}, s46 offen sc1"))
    at(NC, 1, lambda: ids_check(a, G+4))
    at(NC, 2, lambda: poll(a, ldp, [PL+1, PL+3, PL+5], first_issued=True))
    at(26, 1, lambda: a(f"ds_read_b32 v{MF}, v14\nds_read_b32 v{MF+1}, v14"))
    at(26, 2, lambda: a(f"ds_read_b32 v{G+2}, v14 offset:{L_RS-L_MFW}"))
    for q in range(4): at(30 + q//3, q%3, lambda q=q: a(f"ds_read_b128 {vr(RSB+4*q,4)}, v15 offset:{L_RS-L_MFW+32*q}"))
    pm(a, "a0")
    a("s_barrier")
    pm(a, "a1")
    for p in range(3): reads(0, p)
    for p in range(3): reads(1, p)
    for n in range(32):
        b = n % 3
        pm(a, f"an{n}")
        if (n & 3) == 2 and n < 30: a("s_barrier")
        for pi_, p in enumerate(range(3) if n < 31 else (1, 2, 0)):
            if n < 30: reads(n+2, p)
            c0 = "0" if n == 0 else None
            if p < 2: mfma(a, AQ+16*p, WF+12*b+4*p, XF+4*b, c0)
            else: mfma(a, AV, XF+4*b, WF+12*b+8, c0)
            if n == 8: a(f"v_mov_b32 v{PUB+2*p}, v{CSD+4*p}")
            if n < 12: mfs(a, CSD+4*p, SEL, WF+12*b+4*p, c0)
            for f in F.get((n, pi_), []): f()
    a("s_barrier")
    pm(a, "a2")
    a(f"v_mul_f32 v{G}, {fh(0.25*LOG2E)}, v{G+2}")
    def scal(A, S, bc):
        for r in range(0, 16, 2):
            if bc: a(f"v_pk_mul_f32 {vr(A+r,2)}, {vr(A+r,2)}, {vr(S,2)} op_sel_hi:[1,0]")
            else: a(f"v_pk_mul_f32 {vr(A+r,2)}, {vr(A+r,2)}, {vr(S+r,2)}")
    scal(AK, G+2, True)
    pack8(a, 72, AK); pack8(a, 76, AK+8)
    flavored(a, [f"buffer_store_dwordx4 v[72:75], v{VS}, {R(SWS)}, s51 offen",
                 f"buffer_store_dwordx4 v[76:79], v{VS}, {R(SWS)}, s53 offen"])
    scal(AV, RSB, False)
    pack8(a, 80, AV); pack8(a, 84, AV+8)
    flavored(a, [f"buffer_store_dwordx4 v[80:83], v{VS+1}, {R(SWS)}, s51 offen offset:1024",
                 f"buffer_store_dwordx4 v[84:87], v{VS+1}, {R(SWS)}, s51 offen offset:1536"])
    scal(AQ, G, True)
    pack8(a, 64, AQ); pack8(a, 68, AQ+8)
    flavored(a, [f"buffer_store_dwordx4 v[64:67], v2, {R(SWS)}, s50 offen",
                 f"buffer_store_dwordx4 v[68:71], v2, {R(SWS)}, s52 offen"])

def phaseA_mfma_pub(a):
    pm(a, "a2s")
    a.waitvm()
    flag_store(a, 101, 3)
    pm(a, "a3")

def phaseA_helper(a):
    VXE, VXO, VW, VSX, ONES, XD, SUM, GR, U = 4, 5, 6, 7, 12, 48, 32, 36, 40
    a("s_sub_u32 s100, s3, 4")
    a("v_lshrrev_b32 v9, 3, v1")
    a("v_lshrrev_b32 v10, 4, v1")
    a("v_and_b32 v11, 7, v1")
    a("v_xor_b32 v12, v11, v10")
    a("v_lshlrev_b32 v12, 4, v12")
    a(f"v_lshl_add_u32 v{VXE}, v9, 10, v12")
    a(f"v_xor_b32 v{VXO}, 64, v{VXE}")
    a("v_and_b32 v10, 1, v10")
    a("v_lshlrev_b32 v10, 2, v10")
    a("v_xor_b32 v11, v11, v10")
    a(f"v_mul_u32_u24 v{VW}, 3072, v9")
    a(f"v_lshl_add_u32 v{VW}, v11, 4, v{VW}")
    a(f"s_lshl_b32 s96, s{sM}, 2")
    a("s_add_u32 s96, s96, s100")
    a("s_lshl_b32 s96, s96, 14")
    a(f"s_mul_i32 s97, s100, {16*3072}")
    a(f"s_lshl_b32 s98, s{sG}, 7")
    a("s_add_u32 s97, s97, s98")
    a("s_lshl_b32 s98, s100, 11")
    a(f"s_add_u32 s98, s98, {L_X}")
    a(f"s_mul_i32 s99, s100, {6*KB}")
    prologue2(a, 1)
    LAX = OPT["lax"]
    def dmx(c):
        a(f"s_add_u32 s43, s{sM}, {c}")
        a("s_and_b32 s43, s43, 7")
        a("s_lshl_b32 s43, s43, 7")
        a("s_add_u32 s43, s43, s96")
        a(f"s_add_u32 m0, s98, {(c%NX)*8*KB}")
        a(f"s_add_u32 s42, s43, 8192")
        a(f"buffer_load_dwordx4 v{VXE}, {R(SX)}, s43 offen lds", f"x{c}")
        a(f"s_add_u32 m0, s98, {(c%NX)*8*KB + KB}")
        a(f"buffer_load_dwordx4 v{VXO}, {R(SX)}, s42 offen lds", f"x{c}")
    def dmw(c):
        a(f"s_add_u32 s43, s{sM}, {c}")
        a("s_and_b32 s43, s43, 7")
        a(f"s_mul_i32 s43, s43, {64*3072}")
        a(f"s_add_u32 m0, s99, {(c%4)*24*KB}")
        a(f"s_add_u32 s43, s43, s97")
        a(f"s_add_u32 s42, s43, {8*3072}")
        for pn in range(3): a(f"buffer_load_dwordx4 v{VW}, {R(SWQ)}, s43 offen offset:{pn*1024} lds", f"w{c}")
        a(f"s_add_u32 m0, s99, {(c%4)*24*KB + 3*KB}")
        for pn in range(3): a(f"buffer_load_dwordx4 v{VW}, {R(SWQ)}, s42 offen offset:{pn*1024} lds", f"w{c}")
    XO = OPT["xo"]
    if XO: dmx(0); dmw(0); dmx(1); dmw(1); dmx(2)
    else: dmx(0); dmw(0); dmx(1); dmx(2); dmw(1)
    for c in range(3, LAX): dmx(c)
    pm(a, "ai")
    prologue2(a, 2)
    a("v_and_b32 v9, 15, v1")
    a("v_bfe_u32 v10, v1, 1, 3")
    a("v_lshrrev_b32 v11, 4, v1")
    a("v_xor_b32 v10, v10, v11")
    a("v_lshlrev_b32 v10, 4, v10")
    a("v_lshl_add_u32 v10, v9, 7, v10")
    a(f"v_add_u32 v{VSX}, s98, v10")
    a(f"v_xor_b32 v{VSX+1}, 64, v{VSX}")
    for i in range(4): a(f"v_mov_b32 v{ONES+i}, 0x3f803f80")
    a("s_lshl_b32 s44, s100, 6")
    a(f"s_add_u32 s44, s44, {L_MFW}")
    a("v_lshl_add_u32 v3, v9, 2, s44")
    tag_ready(a)
    SCH = {0: [0], 1: [1, 2], 2: [3, 4], 3: [5], 4: [6], 5: [7]}
    if XO: SCH = {0: [0], 1: [1], 2: [2], 3: [3, 4], 4: [5], 5: [6], 6: [7]}
    SMF = [{0: [0], 1: [1], 2: [2, 3], 3: [4], 4: [5], 5: [6, 7]}, {3: [0, 1, 2], 4: [3, 4], 5: [5], 6: [6, 7]}, {0: [0], 3: [1, 2], 4: [3, 4], 5: [5, 6], 6: [7]}][OPT["sm"]]
    if OPT['xa'] & 2: SCH = {}
    for c in range(8):
        a.waitvm(f"w{c}")
        if c == 0: pm(a, "a0")
        else: pm(a, f"ac{c}")
        a("s_barrier")
        if c == 0: pm(a, "a1")
        def srd_(q, cc):
            a.waitvm(f"x{cc}")
            for j in range(2): a(f"ds_read_b128 {vr(XD+8*cc+4*j,4)}, v{VSX+j} offset:{(cc%NX)*8*KB}", f"sx{cc}")
        for q, cc in enumerate(SCH.get(c, [])):
            if cc <= c + 1 or not XO: srd_(q, cc)
        if c + LAX <= 7 and not OPT['xa'] & 8 and not XO: dmx(c+LAX)
        if c + 2 <= 7 and not OPT['xa'] & 8: dmw(c+2)
        if c + LAX <= 7 and not OPT['xa'] & 8 and XO:
            if c + LAX >= NX: a.waitlg(f"sx{c+LAX-NX}")
            dmx(c+LAX)
        if c == OPT["pc"] and OPT["stop"] > 1: prep_issue(a)
        for q, cc in enumerate(SCH.get(c, [])):
            if cc > c + 1 and XO: srd_(q, cc)
        pm(a, f"h{c}a")
        for cc in SMF.get(c, []):
            for j in range(2):
                c0 = "0" if cc == 0 and j == 0 else None
                mfs(a, SUM, ONES, XD+8*cc+4*j, c0)
                mfs(a, GR, XD+8*cc+4*j, XD+8*cc+4*j, c0)
        if c == 6:
            for q in range(1, 4):
                a(f"s_mov_b32 exec_lo, {hex(0x00100001 << q)}\ns_mov_b32 exec_hi, {hex(0x10000100 << q)}")
                a(f"v_mov_b32 v{GR}, v{GR+q}")
            a("s_mov_b32 exec_lo, 0x00f0000f\ns_mov_b32 exec_hi, 0xf0000f00")
            a(f"v_mov_b32 v{U+6}, {fh(1/512)}")
            a(f"v_mul_f32 v{SUM}, {fh(-1/512)}, v{SUM}")
            a(f"v_mul_f32 v{U}, v{SUM}, v{SUM}")
            a(f"v_fma_f32 v{U}, v{GR}, v{U+6}, -v{U}")
            a(f"v_max_f32 v{U}, 0, v{U}")
            a(f"v_add_f32 v{U}, {fh(1e-5)}, v{U}")
            a(f"v_rsq_f32 v{U}, v{U}")
            a(f"v_and_b32 v{U+2}, 0xffff0000, v{SUM}")
            a(f"v_sub_f32 v{U+4}, v{SUM}, v{U+2}")
            a(f"v_cvt_pk_bf16_f32 v{U+2}, v{U+2}, v{U+4}")
            a(f"ds_write_b32 v3, v{U+2}")
            a(f"ds_write_b32 v3, v{U} offset:{L_RS-L_MFW}")
            exec_all(a)
            a.waitlg()
        pm(a, f"h{c}c")
    pm(a, "aq")
    a("s_barrier")
    pm(a, "a2")

def first_tiles(a):
    a(f"s_lshl_b32 s44, s{sP}, 8")
    a(f"s_add_u32 s44, s44, {WS_FQKV}")
    a("v_lshlrev_b32 v9, 2, v1")
    poll(a, lambda: a(f"buffer_load_dword v11, v9, {R(SWS)}, s44 offen sc1"), [11])
    pm(a, "a4")
    a(f"s_lshl_b32 s42, s{sHEAD}, 6")
    a(f"s_lshl_b32 s43, s{sCS}, 3")
    a("s_add_u32 s42, s42, s43")
    a("s_lshl_b32 s43, s3, 1")
    a("s_add_u32 s42, s42, s43")
    a("s_lshl_b32 s42, s42, 10")
    a(f"s_add_u32 s42, s42, {WS_Q}")
    a("s_lshl_b32 s43, s3, 11")
    a(f"s_add_u32 m0, s43, {L_STG}")
    a("s_lshl_b32 s43, s3, 12")
    for o in (0, 1024): a(f"buffer_load_dwordx4 v2, {R(SWS)}, s42 offen offset:{o} sc1 lds", "kv0")
    a(f"s_lshl_b32 s42, s{sHEAD}, 17")
    a("s_add_u32 s42, s42, s43")
    a(f"s_add_u32 s42, s42, {WS_KV}")
    a("s_mov_b32 m0, s43")
    for o in range(4): a(f"buffer_load_dwordx4 v2, {R(SWS)}, s42 offen offset:{o*1024} sc1 lds", "kv0")

Q, SA, SB, O, KF, VF = 4, 8, 24, 40, 56, 64
IDX, VK, VV, VK2, VV2, VWR0, VWR1 = range(80, 87)
VST = 253
VCL = 91
OOB = 0x40000000
VP0, VP2, PA, PB, PCN, PF, FL, SENT = 156, 157, 158, 162, 166, 168, 192, 240
WO, W2, XRES, HB, VRES = 92, 156, 244, 248, 252

def attn_setup(a):
    a(f"s_lshl_b32 s{sTT}, s{sCS}, 3")
    a(f"s_add_u32 s{sTT}, s{sTT}, s3")
    a(f"s_lshr_b32 s{sTC}, s{sM}, 3")
    a(f"s_lshl_b32 s{sTC}, s{sTC}, 1")
    a(f"s_lshl_b32 s50, s{sG}, 3")
    a(f"s_add_u32 s{sTC}, s{sTC}, s50")
    a("s_and_b32 s50, s3, 1")
    a(f"s_add_u32 s{sTC}, s{sTC}, s50")
    a(f"v_mov_b32 v{IDX}, 0xdddddddd")
    a(f"v_mov_b32 v{VK}, v2")
    a(f"v_add_u32 v{VK2}, 0x10000, v2")
    a(f"v_and_b32 v{VV}, 15, v1")
    a(f"v_lshlrev_b32 v{VV}, 4, v{VV}")
    a(f"v_lshrrev_b32 v{VV2}, 5, v1")
    a(f"v_lshl_add_u32 v{VV}, v{VV2}, 8, v{VV}")
    a(f"v_add_u32 v{VV}, 1024, v{VV}")
    a(f"v_and_b32 v{VRES}, 31, v1")
    a(f"v_lshlrev_b32 v90, 2, v{VRES}")
    a(f"v_lshlrev_b32 v{VRES}, 10, v{VRES}")
    a(f"v_lshl_add_u32 v{VRES}, v{VV2}, 4, v{VRES}")
    a(f"v_add_u32 v{VV2}, 0x10000, v{VV}")
    a(f"s_lshl_b32 s{sRES}, s{sTC}, 15")
    a(f"s_lshl_b32 s50, s{sCS}, 7")
    a(f"s_add_u32 s{sRES}, s{sRES}, s50")
    a("s_lshr_b32 s50, s3, 1")
    a("s_lshl_b32 s50, s50, 5")
    a(f"s_add_u32 s{sRES}, s{sRES}, s50")
    a("s_bfe_u32 s50, s3, 0x10001")
    a("s_lshl_b32 s50, s50, 8")
    a("s_lshr_b32 s51, s3, 2")
    a("s_lshl_b32 s51, s51, 10")
    a("s_or_b32 s50, s50, s51")
    a(f"v_xor_b32 v{VWR0}, s50, v2")
    a(f"v_xor_b32 v{VWR1}, 1024, v{VWR0}")
    a("s_lshl_b32 s50, s3, 10")
    a(f"s_add_u32 s50, s50, {L_STG}")
    a(f"v_add_u32 v{VST}, s50, v2")
    a("s_lshr_b32 s51, s3, 1")
    a("s_lshl_b32 s51, s51, 14")
    a(f"s_lshl_b32 s50, s{sCS}, 16")
    a("s_add_u32 s51, s51, s50")
    a(f"s_add_u32 s51, s51, {WS_WTO}")
    a(f"s_mul_i32 s52, s3, {22*KB}")
    a(f"s_mul_i32 s50, s{sCS}, {176*KB}")
    a("s_add_u32 s52, s52, s50")
    a(f"s_add_u32 s52, s52, {WS_WT2}")
    a(f"s_mul_i32 s54, s3, {6*KB}")
    a(f"s_mul_i32 s53, s{sM}, {96*KB}")
    a("s_add_u32 s53, s53, s54")
    a(f"s_add_u32 s53, s53, {WS_WT13}")
    a(f"s_cmp_ge_u32 s{sM}, 29")
    a(f"s_cselect_b32 s53, {OOB}, s53")
    a("s_mov_b32 s48, 0x0000ffff\ns_mov_b32 s49, 0x0000ffff")
    a(f"s_lshl_b32 s50, s{sG}, 7")
    a(f"s_add_u32 s50, s50, {WS_CLR}")
    a(f"v_add_u32 v{VCL}, s50, v90")
    a("v_and_b32 v87, 7, v1")
    a("v_lshlrev_b32 v87, 7, v87")
    a("v_bfe_u32 v88, v1, 3, 2")
    a("v_lshl_add_u32 v87, v88, 5, v87")
    a(f"s_lshl_b32 s50, s{sG}, 2")
    a(f"s_add_u32 s50, s50, {WS_CLR}")
    a("s_mov_b32 exec_lo, 0")
    a(f"v_add_u32 v{VCL}, s50, v87")
    exec_all(a)
    a(f"s_lshl_b32 s55, s{sHEAD}, 17")
    a(f"s_add_u32 s55, s55, {WS_KV}")
    a(f"s_mul_i32 s47, s3, {6*KB}")
    a(f"s_add_u32 s47, s47, {16*KB}")
    a("s_lshl_b32 s46, s3, 13")
    a(f"s_add_u32 s46, s46, {64*KB}")

def w2lane(a, vp, t):
    a(f"v_lshrrev_b32 v{vp}, 3, v1")
    a(f"v_and_b32 v{t}, 7, v1")
    a(f"v_lshlrev_b32 v{t}, 4, v{t}")
    a(f"v_lshl_add_u32 v{vp}, v{vp}, 10, v{t}")
def w2rd(a, pa, stage):
    tr_addr(a, pa, pa+1, row_shift=7, cg_mul=32)
    a(f"v_add_u32 v{pa}, s{stage}, v{pa}")
    a(f"v_add_u32 v{pa+1}, 512, v{pa}")
    a(f"v_add_u32 v{pa+2}, 64, v{pa}")
    a(f"v_add_u32 v{pa+3}, {512+64}, v{pa}")

def prep_issue(a):
    l2, ld, l3 = a.label("pw2"), a.label("pdn"), a.label("nor2")
    V0, V2, VT = 156, 157, 158
    a("s_lshl_b32 s45, s100, 12")
    a(f"s_add_u32 s45, s45, {L_PR1}")
    a("s_cmp_ge_u32 s2, 176")
    a(f"s_cbranch_scc1 {l2}")
    a(f"v_lshrrev_b32 v{V0}, 2, v1")
    a(f"v_mul_u32_u24 v{V0}, 2752, v{V0}")
    a(f"v_and_b32 v{VT}, 3, v1")
    a(f"v_lshl_add_u32 v{V0}, v{VT}, 4, v{V0}")
    a("s_lshr_b32 s43, s2, 4")
    a("s_lshl_b32 s43, s43, 2")
    a("s_add_u32 s43, s43, s100")
    a("s_and_b32 s42, s2, 15")
    a(f"s_mul_i32 s46, s42, {32*2752}")
    a("s_lshl_b32 s47, s43, 6")
    a("s_add_u32 s46, s46, s47")
    a("s_mov_b32 s47, s46")
    a(f"s_add_u32 s48, s46, {16*2752}\ns_add_u32 s49, s46, {16*2752}")
    a(f"s_branch {ld}")
    a(f"{l2}:")
    w2lane(a, V0, VT)
    for q in range(3): a(f"s_mov_b32 s{SW1+q}, s{SW2+q}\ns_mov_b32 s{SW3+q}, s{SW2+q}")
    a("s_sub_u32 s43, s2, 176")
    a("s_lshl_b32 s46, s43, 14")
    a("s_lshl_b32 s47, s100, 8")
    a("s_add_u32 s46, s46, s47")
    a("s_add_u32 s47, s46, 8192")
    a("s_add_u32 s48, s46, 128\ns_add_u32 s49, s47, 128")
    a(f"{ld}:")
    for q in range(4):
        a(f"s_add_u32 m0, s45, {q*KB}")
        a(f"buffer_load_dwordx4 v{V0}, {R(SW3 if q & 1 else SW1)}, s{46+q} offen lds", "prep")
    a("s_lshl_b32 s47, s100, 8")
    a("s_add_u32 s47, s47, s2")
    a("s_cmp_ge_u32 s47, 320")
    a(f"s_cbranch_scc1 {l3}")
    w2lane(a, V2, VT)
    a("s_cmp_eq_u32 s100, 0")
    for q in range(3): a(f"s_cselect_b32 s{SWO+q}, s{SWO+q}, s{SW2+q}")
    a("s_cselect_b32 s46, 0, 80")
    a(f"s_add_u32 s46, s46, s{sM}")
    a("s_lshl_b32 s46, s46, 14")
    a(f"s_lshl_b32 s47, s{sG}, 7")
    a("s_add_u32 s46, s46, s47")
    a("s_add_u32 s47, s46, 8192")
    a("s_lshl_b32 s45, s100, 11")
    a(f"s_add_u32 m0, s45, {L_PR2}")
    a(f"buffer_load_dwordx4 v{V2}, {R(SWO)}, s46 offen lds", "prep")
    a(f"s_add_u32 m0, s45, {L_PR2+KB}")
    a(f"buffer_load_dwordx4 v{V2}, {R(SWO)}, s47 offen lds", "prep")
    a(f"{l3}:")

def prep_addr(a):
    l2, ld = a.label("pa2"), a.label("pad")
    a("s_and_b32 s42, s100, 1")
    a("s_lshl_b32 s42, s42, 11")
    a(f"s_add_u32 s42, s42, {L_PR2}")
    w2rd(a, PB, 42)
    a("s_cmp_eq_u32 s100, 0")
    a("s_cselect_b32 s42, 0, 80")
    a(f"s_mov_b32 s43, {176*KB}\ns_mov_b32 s31, {WS_WT2}")
    a(f"s_cselect_b32 s43, {64*KB}, s43")
    a(f"s_cselect_b32 s31, {WS_WTO}, s31")
    a(f"s_add_u32 s42, s42, s{sM}")
    a(f"s_mul_i32 s43, s43, s{sG}")
    a("s_add_u32 s31, s31, s43")
    a("s_lshl_b32 s43, s42, 11")
    a("s_add_u32 s31, s31, s43")
    a("s_lshl_b32 s43, s100, 8")
    a("s_add_u32 s43, s43, s2")
    a("s_cmp_ge_u32 s43, 320")
    a(f"s_cselect_b32 s31, {OOB}, s31")
    a(f"v_mov_b32 v{PCN}, {L_CNT}\nv_mov_b32 v{PCN+1}, 1")
    a("s_lshl_b32 s45, s100, 12")
    a(f"s_add_u32 s45, s45, {L_PR1}")
    a("s_cmp_ge_u32 s2, 176")
    a(f"s_cbranch_scc1 {l2}")
    tr_addr(a, PA, PA+1, row_shift=6, cg_mul=1024)
    a(f"v_add_u32 v{PA}, s45, v{PA}")
    a(f"v_add_u32 v{PA+1}, 256, v{PA}")
    a(f"v_add_u32 v{PA+2}, 2048, v{PA}")
    a(f"v_add_u32 v{PA+3}, {2048+256}, v{PA}")
    a("s_mov_b32 s30, 32")
    a("s_lshr_b32 s43, s2, 4")
    a("s_lshl_b32 s43, s43, 2")
    a("s_add_u32 s43, s43, s100")
    a("s_lshl_b32 s43, s43, 1")
    a("s_and_b32 s42, s2, 15")
    a(f"s_mul_i32 s42, s42, {6*KB}")
    a(f"s_add_u32 s42, s42, {WS_WT13}")
    for u in range(2):
        d = 8 + 2*u
        a(f"s_mul_i32 s{d}, s43, 43691\ns_lshr_b32 s{d}, s{d}, 17")
        a(f"s_mul_i32 s{d}, s{d}, {93*KB}")
        a(f"s_lshl_b32 s{d+1}, s43, 10")
        a(f"s_add_u32 s{d}, s{d}, s{d+1}\ns_add_u32 s{d}, s{d}, s42")
        a(f"s_add_u32 s{d+1}, s{d}, {3*KB}")
        if u == 0: a("s_add_u32 s43, s43, 1")
    a(f"s_branch {ld}")
    a(f"{l2}:")
    w2rd(a, PA, 45)
    a(f"s_mov_b32 s30, {2*KB}")
    a("s_sub_u32 s43, s2, 176")
    a("s_lshl_b32 s8, s43, 11")
    a(f"s_mul_i32 s9, s100, {352*KB}")
    a("s_add_u32 s8, s8, s9")
    a(f"s_add_u32 s8, s8, {WS_WT2}")
    a(f"s_add_u32 s9, s8, {KB}")
    a(f"s_add_u32 s10, s8, {176*KB}\ns_add_u32 s11, s9, {176*KB}")
    a(f"{ld}:")

def prep_rd(a):
    a.waitvm("prep")
    for u in range(2):
        for q in range(4):
            if u: a(f"v_add_u32 v{PA+q}, s30, v{PA+q}")
            a(f"ds_read_b64_tr_b16 {vr(PF+8*u+2*q,2)}, v{PA+q}")
    for q in range(4): a(f"ds_read_b64_tr_b16 {vr(PF+16+2*q,2)}, v{PB+q}")

def prep_st(a, e):
    if e < 4: a(f"buffer_store_dwordx4 {vr(PF+4*e,4)}, v2, {R(SWS)}, s{8+e} offen sc1", "pst")
    else: a(f"buffer_store_dwordx4 {vr(PF+4*e,4)}, v2, {R(SWS)}, s31 offen offset:{(e-4)*KB} sc1", "pst")

def slot_O(a, d):
    a(f"s_lshl_b32 s{d}, s{sTT}, 5")
    a(f"s_add_u32 s{d}, s{d}, s{sHEAD}")
    a(f"s_lshl_b32 s{d}, s{d}, 10")
    a(f"s_add_u32 s{d}, s{d}, {WS_O}")
def slot_H(a, d, t):
    a(f"s_lshl_b32 s{d}, s{sTC}, 3")
    a(f"s_add_u32 s{d}, s{d}, s{sCS}")
    a(f"s_lshl_b32 s{d}, s{d}, 2")
    a(f"s_lshr_b32 s{t}, s3, 1")
    a(f"s_add_u32 s{d}, s{d}, s{t}")
    a(f"s_lshl_b32 s{d}, s{d}, 10")
    a(f"s_add_u32 s{d}, s{d}, {WS_H}")
def d_tile(a, d, t):
    a(f"s_lshl_b32 s{d}, s{sG}, 2")
    a(f"s_and_b32 s{t}, s3, 3")
    a(f"s_add_u32 s{d}, s{d}, s{t}")
    a(f"s_lshl_b32 s{d}, s{d}, 1")
    a(f"s_lshr_b32 s{t}, s3, 2")
    a(f"s_add_u32 s{d}, s{d}, s{t}")
def slot_A(a, d, t):
    d_tile(a, d, t)
    a(f"s_mul_i32 s{d}, s{d}, 86")
    a(f"s_mul_i32 s{t}, s{sM}, 3")
    a(f"s_add_u32 s{d}, s{d}, s{t}")
    a(f"s_lshl_b32 s{d}, s{d}, 10")
    a(f"s_add_u32 s{d}, s{d}, {WS_ACT}")
    a(f"s_cmp_ge_u32 s{sM}, 29")
    a(f"s_cselect_b32 s{d}, {OOB}, s{d}")
    a(f"s_cmp_ge_u32 s{sM}, 28")
    a(f"s_cselect_b32 s{t}, {OOB}, s{d}")
def nosent(a, d):
    for q in range(4): a(f"v_min_u32 v{d+q}, -2, v{d+q}")
def maxacc(a, m, d, first=False):
    if first:
        a(f"v_max3_u32 v{m}, v{d}, v{d+1}, v{d+2}")
        a(f"v_max_u32 v{m}, v{m}, v{d+3}")
    else:
        a(f"v_max3_u32 v{m}, v{m}, v{d}, v{d+1}")
        a(f"v_max3_u32 v{m}, v{m}, v{d+2}, v{d+3}")

def attn_setup2(a):
    for i in range(16): a(f"v_mov_b32 v{VF+i}, 0")
    for i in range(16): a(f"v_mov_b32 v{O+i}, 0")
    for q in range(4): a(f"v_mov_b32 v{SENT+q}, -1")
    a("s_mov_b32 exec_lo, 0x00110000\ns_mov_b32 exec_hi, 0x00110000")
    for i in range(16): a(f"v_mov_b32 v{VF+i}, 0x3f803f80")
    exec_all(a)

def wreg(f): return WO + 4*f

def attn_loop(a, older):
    NT = 64
    TW = OPT["tw"]
    JOBS = {}
    def put(h, job):
        while h in JOBS: h += 1
        JOBS[h] = job
        return h
    def spread(jobs, t0, t1):
        n = len(jobs)
        return [put(2*t0 + (i*2*(t1-t0))//n, j) for i, j in enumerate(jobs)]
    TC, TC1, WE = OPT["tc"], OPT["tc1"], OPT["we"]
    if OPT["tp"] >= 0:
        hs = [put(2*OPT["tp"] + 1 + OPT["tss"]*e, ("s", e)) for e in range(6)]
        assert hs[-1] < 2*OPT["tf"]
    spread([("d", 0, u) for u in range(6)], max(24, TW), OPT["da"])
    spread([("d", 1, u) for u in range(6)], 48, OPT["db"])
    hc = spread([("c", j) for j in range(5)], TC, TC1)
    nl = OPT["wl"]
    hw = spread([("w", f) for f in range(38-nl)], TW, WE) + spread([("w", f) for f in range(38-nl, 38)], 48, 60)
    assert hw == sorted(hw) and hw[16] > 2*max(TW, OPT["tf"]+1) + 1 and hw[37] > hc[-1] and hw[37] < 124 and hc[-1] < 92
    def rdK(t): a(f"ds_read_b128 {vr(KF+4*(t&1),4)}, v{VK if t < 32 else VK2} offset:{(t%32)*2048}")
    def rdV(t):
        a("s_mov_b64 exec, s[48:49]")
        for jj in range(2): a(f"ds_read_b128 {vr(VF+8*(t&1)+4*jj,4)}, v{VV if t < 32 else VV2} offset:{(t%32)*2048+512*jj}")
        exec_all(a)
    def qk(t): mfma(a, SB if t & 1 else SA, KF+4*(t&1), Q, "0")
    def pv(t, jj):
        S = SB if t & 1 else SA
        a(f"v_smfmac_f32_32x32x32_bf16 {vr(O,16)}, {vr(VF+8*(t&1)+4*jj,4)}, {vr(S+8*jj,8)}, v{IDX}")
    def wload(f):
        sn = 51 if f < 16 else 52
        a(f"buffer_load_dwordx4 {vr(wreg(f),4)}, v{VWR1 if f & 1 else VWR0}, {R(SWS)}, s{sn} offen offset:{(f&2)*1024}")
        if f & 3 == 3: a(f"s_add_u32 s{sn}, s{sn}, 4096")
    def kvp(stage, u):
        if u % 4 == 0:
            a(f"s_add_u32 m0, s{47 if stage == 1 else 46}, {u*KB}")
            a(f"s_add_u32 s45, s55, m0")
        else: a("s_sub_u32 m0, s45, s55")
        a(f"buffer_load_dwordx4 v2, {R(SWS)}, s45 offen offset:{(u%4)*KB} sc1 lds", f"kv{stage}")
    def w13(hf, u):
        if u % 4 == 0:
            a(f"s_add_u32 m0, s54, {hf*48*KB + u*KB}")
            a(f"s_add_u32 s50, s53, {hf*48*KB + u*KB}")
        a(f"buffer_load_dwordx4 v2, {R(SWS)}, s50 offen offset:{(u%4)*KB} lds")
    def clr(j):
        sv = vr(SENT, 4)
        if j == 0:
            slot_O(a, 42)
            a(f"buffer_store_dwordx4 {sv}, v2, {R(SWS)}, s42 offen sc1", "clr")
        elif j == 1:
            slot_H(a, 43, 44)
            flavored(a, [f"buffer_store_dwordx4 {sv}, v2, {R(SWS)}, s43 offen"], "clr")
        else:
            slot_A(a, 42, 43)
            flavored(a, [f"buffer_store_dwordx4 {sv}, v2, {R(SWS)}, s{43 if j == 4 else 42} offen offset:{(j-2)*KB}"], "clr")
    def job(h):
        if h not in JOBS: return
        j = JOBS[h]; sj = OPT["sj"]
        if j[0] == "w" and sj & 1: wload(j[1])
        if j[0] == "d" and sj & 2: w13(j[1], j[2])
        if j[0] == "c" and sj & 4: clr(j[1])
        if j[0] == "s" and not older: prep_st(a, j[1])
    def side(t):
        sv = vr(SENT, 4)
        if t == TC - 3:
            a(f"s_lshl_b32 s44, s{sG}, 7")
            a(f"s_add_u32 s44, s44, {WS_IDS}")
            a(f"buffer_load_dword v89, v90, {R(SWS)}, s44 offen sc1")
        if t == TC: ids_check(a, 89)
        if t == 48 and older:
            a(f"v_mov_b32 v89, s{sID}")
            a(f"s_lshl_b32 s43, s{sG}, 5")
            a(f"s_add_u32 s43, s43, s{sM}")
            a("s_lshl_b32 s43, s43, 2")
            a(f"s_add_u32 s43, s43, {WS_CLR}")
            a("s_cmp_eq_u32 s3, 0")
            a(f"s_cselect_b32 s43, s43, {OOB}")
            a("s_mov_b64 exec, 1")
            a(f"buffer_store_dword v89, off, {R(SWS)}, s43 sc1")
            exec_all(a)
        if t == OPT['tp'] and not older: prep_rd(a)
        if t == TF and not older:
            a.waitvm("pst")
            a("s_mov_b64 exec, 1")
            a(f"ds_add_rtn_u32 v{PCN+1}, v{PCN}, v{PCN+1}")
            exec_all(a)
        if t == TF + 1 and not older:
            a(f"v_readfirstlane_b32 s42, v{PCN+1}")
            a(f"v_mov_b32 v{PCN}, s{sT}")
            a(f"s_lshl_b32 s43, s{sG}, 5")
            a(f"s_add_u32 s43, s43, s{sM}")
            a("s_lshl_b32 s43, s43, 2")
            a(f"s_add_u32 s43, s43, {WS_FW}")
            a("s_cmp_eq_u32 s42, 3")
            a(f"s_cselect_b32 s43, s43, {OOB}")
            a("s_mov_b64 exec, 1")
            a(f"buffer_store_dword v{PCN}, off, {R(SWS)}, s43 sc1")
            exec_all(a)
        if t == TW - 3 and not older:
            a("s_cmp_eq_u32 s3, 7")
            a(f"s_cselect_b32 s101, {WS_FW}, {OOB}")
            ldfl()
    def ldfl(): a(f"buffer_load_dwordx4 {vr(FL,4)}, v2, {R(SWS)}, s101 offen sc1")
    def chkfl():
        lab = a.label("nofl")
        a.waitvm()
        a("s_cmp_lg_u32 s3, 7")
        a(f"s_cbranch_scc1 {lab}")
        poll(a, ldfl, [FL, FL+1, FL+2, FL+3], first_issued=True)
        a(f"{lab}:")
    TF = OPT["tf"]
    def ldclr(): a(f"buffer_load_dword v89, v{VCL}, {R(SWS)}, 0 offen sc1")
    if older: a.waitvm("kv0")
    a("s_barrier")
    pm(a, "b0")
    a(f"ds_read_b128 {vr(Q,4)}, v{VST}")
    rdK(0); rdK(1); rdV(0)
    qk(0)
    if not older: a("s_setprio 1")
    for t in range(NT):
        S = SB if t & 1 else SA
        def ex(lo, hi):
            for r in range(lo, hi): a(f"v_exp_f32 v{S+r}, v{S+r}")
        if older:
            if t % 4 == 0: a("s_setprio 2")
            if t % 4 == 3: a("s_setprio 0")
        pm(a, f"bt{t}")
        if t == 6: a.waitvm("kv1")
        if t == 24: a.waitvm("kv2")
        if t == 48: a.waitvm("clr")
        if t == TW and not older: chkfl()
        if t in (6, 24, 48, TW): a("s_barrier")
        pm(a, f"bu{t}")
        ex(0, 2)
        if t > 0: pv(t-1, 1)
        sj = OPT["sj"]
        if t < 3: kvp(1, 2*t); kvp(1, 2*t+1)
        if 3 <= t < 11: kvp(2, t-3)
        side(t)
        job(2*t)
        if t == 56: a(f"buffer_load_dwordx4 {vr(XRES,4)}, v{VRES}, {R(SX)}, s{sRES} offen")
        if t == 58: ldclr()
        ex(2, 7)
        if t + 1 < NT: qk(t+1)
        if t + 2 < NT: rdK(t+2)
        ex(7, 12)
        pv(t, 0)
        if t + 1 < NT: rdV(t+1)
        job(2*t+1)
        ex(12, 16)
    pv(NT-1, 1)
    a("s_setprio 0")
    a("s_waitcnt vmcnt(0) lgkmcnt(0)")
    lp, dn, ck = a.label("cpoll"), a.label("cdone"), a.label("cchk")
    a(f"s_mov_b32 s{sCNT}, {1 << OPT['pl']}")
    a(f"s_branch {ck}")
    a(f"{lp}:")
    ldclr()
    a("s_waitcnt vmcnt(0)")
    a(f"{ck}:")
    a(f"v_xor_b32 v88, s{sID}, v89")
    a("v_lshlrev_b32 v87, 4, v88")
    a("v_cmp_ne_u32 vcc, 0, v87")
    a(f"s_cbranch_vccz {dn}")
    a(f"s_sub_u32 s{sCNT}, s{sCNT}, 1")
    a(f"s_cbranch_scc0 {lp}")
    a(f"{dn}:")
    a("v_cmp_ne_u32 vcc, 0, v88")
    a("s_cmp_eq_u32 vcc_lo, 0")
    a(f"s_cselect_b32 s{sFAST}, 1, 0")
    a("s_nop 15\ns_nop 3")

def attn_finish(a):
    pm(a, "b9")
    a("v_mov_b32 v3, 0")
    for r in range(8): a(f"v_fma_f32 v3, v{O+r}, 0, v3")
    a("v_cmp_u_f32 vcc, v3, v3")
    a(f"v_mov_b32 v3, {fh(2.0**-64)}")
    a(f"v_cmp_nle_f32 s[42:43], v3, v{O+8}")
    a(f"v_mov_b32 v3, {fh(2.0**64)}")
    a(f"v_cmp_nge_f32 s[44:45], v3, v{O+8}")
    a("s_or_b64 vcc, vcc, s[42:43]")
    a("s_or_b64 vcc, vcc, s[44:45]")
    a("s_cbranch_scc1 L_fallback")
    a("L_attn_fin:")
    a(f"v_rcp_f32 v3, v{O+8}")
    slot_O(a, 42)
    for r in range(8): a(f"v_mul_f32 v{O+r}, v{O+r}, v3")
    pack8(a, KF, O)
    nosent(a, KF)
    a(f"buffer_store_dwordx4 {vr(KF,4)}, v2, {R(SWS)}, s42 offen sc1")

def fallback(a):
    a("L_fallback:")
    a(f"s_lshl_b32 s42, s{sHEAD}, 17")
    a(f"s_add_u32 s42, s42, {WS_KV}")
    a("s_mov_b32 s43, s42")
    a("v_mov_b32 v3, 0xff800000")
    a("s_mov_b32 s44, 64")
    a("L_fb_max:")
    a(f"buffer_load_dwordx4 {vr(KF,4)}, v2, {R(SWS)}, s43 offen sc1")
    a("s_add_u32 s43, s43, 2048")
    mfma(a, SA, KF, Q, "0")
    for r in range(0, 16, 2): a(f"v_max3_f32 v3, v3, v{SA+r}, v{SA+r+1}")
    a("s_sub_u32 s44, s44, 1")
    a("s_cmp_lg_u32 s44, 0")
    a("s_cbranch_scc1 L_fb_max")
    a(f"v_mov_b32 v{SB}, v3")
    a(f"v_permlane32_swap_b32 v{SB}, v3")
    a(f"v_max_f32 v3, v3, v{SB}")
    for r in range(16):
        a(f"v_sub_f32 v{SB+r}, 0, v3")
        a(f"v_mov_b32 v{O+r}, 0")
    a("s_mov_b32 s44, 64")
    a("L_fb_pv:")
    a(f"buffer_load_dwordx4 {vr(KF,4)}, v2, {R(SWS)}, s42 offen sc1")
    a("s_mov_b64 exec, s[48:49]")
    for jj in range(2): a(f"buffer_load_dwordx4 {vr(VF+4*jj,4)}, v{VV}, {R(SWS)}, s42 offen offset:{512*jj} sc1")
    exec_all(a)
    a("s_add_u32 s42, s42, 2048")
    mfma(a, SA, KF, Q, vr(SB, 16))
    for r in range(16): a(f"v_exp_f32 v{SA+r}, v{SA+r}")
    for jj in range(2): a(f"v_smfmac_f32_32x32x32_bf16 {vr(O,16)}, {vr(VF+4*jj,4)}, {vr(SA+8*jj,8)}, v{IDX}")
    a("s_nop 15\ns_nop 3")
    a("s_sub_u32 s44, s44, 1")
    a("s_cmp_lg_u32 s44, 0")
    a("s_cbranch_scc1 L_fb_pv")
    a("s_branch L_attn_fin")

VA2 = 254
def spoll(a, load, regs, m, first_issued=False):
    lp, dn, ck = a.label("spoll"), a.label("sdone"), a.label("schk")
    a(f"s_mov_b32 s{sCNT}, {1 << OPT['pl']}")
    if first_issued: a(f"s_branch {ck}")
    a(f"{lp}:")
    load()
    a("s_waitcnt vmcnt(0)")
    if first_issued: a(f"{ck}:")
    if m is None: m = regs[0]
    else:
        for q, d in enumerate(regs): maxacc(a, m, d, q == 0)
    a(f"v_cmp_eq_u32 vcc, -1, v{m}")
    a(f"s_cbranch_vccz {dn}")
    a(f"s_sub_u32 s{sCNT}, s{sCNT}, 1")
    a(f"s_cbranch_scc0 {lp}")
    a(f"{dn}:")

def phaseC(a):
    a("s_lshr_b32 s46, s3, 1")
    a(f"s_lshl_b32 s45, s{sTC}, 5")
    a("s_lshl_b32 s44, s46, 3")
    a("s_add_u32 s45, s45, s44")
    a("s_lshl_b32 s45, s45, 10")
    a(f"s_add_u32 s45, s45, {WS_O}")
    a("s_add_u32 s47, s45, 4096")
    def ldO():
        for kk in range(8): a(f"buffer_load_dwordx4 {vr(4+4*kk,4)}, v2, {R(SWS)}, s{45 if kk < 4 else 47} offen offset:{(kk&3)*1024} sc1")
    pm(a, "c0")
    if OPT["oe"]: ldO()
    a(f"v_add_u32 v{VA2}, {48*KB}, v2")
    a(f"s_mul_i32 s44, s3, {12*KB}")
    a(f"v_add_u32 v88, s44, v2")
    a("v_lshrrev_b32 v3, 2, v1")
    a("v_xor_b32 v3, v3, v1")
    a("v_bfe_u32 v3, v3, 2, 1")
    a("v_add_u32 v3, -1, v3")
    for q in range(4): a(f"v_and_b32 v{84+q}, 0x3f803f80, v3")
    a(f"v_add_u32 v91, {L_CS13}, v90")
    a("s_barrier")
    pm(a, "c0b")
    for hf in range(2):
        for q in range(6): a(f"ds_read_b128 {vr(36+4*q,4)}, v88 offset:{(6*hf+q)*KB}")
        for q in range(6): mfs(a, 60+4*(q%3), 84, 36+4*q, "0" if hf == 0 and q < 3 else None)
    exec_lo32(a)
    for j in range(3): a(f"ds_add_f32 v91, v{60+4*j} offset:{128*j}")
    exec_all(a)
    if OPT["cpr"]:
        a("v_lshlrev_b32 v89, 10, v1\nv_mov_b32 v3, 0")
        def prO():
            a("s_mov_b64 exec, 0xff")
            a(f"buffer_load_dword v3, v89, {R(SWS)}, s45 offen offset:1020 sc1")
            exec_all(a)
        spoll(a, prO, [3], None)
    spoll(a, ldO, [4+4*kk for kk in range(8)], 3, first_issued=OPT["oe"])
    pm(a, "c1")
    for s in range(1, 4):
        a(f"s_xor_b32 s44, s3, {2*s}")
        a(f"s_mul_i32 s44, s44, {6*KB}")
        a(f"s_add_u32 s44, s44, {L_REDC + (s-1)*2*KB}")
        a(f"v_add_u32 v{84+s}, s44, v2")
    a(f"s_mul_i32 s44, s3, {6*KB}")
    a(f"s_add_u32 s44, s44, {L_REDC}")
    a("v_add_u32 v84, s44, v2")
    def wrc(s, e): a(f"ds_write_b128 v{84+s}, {vr(36+8*s+4*e,4)} offset:{1024*e}")
    if OPT["cj"]:
        for tj in (1, 0):
            for kk in range(8):
                mfma(a, 36+16*tj, WO+4*(2*kk+tj), 4+4*kk, "0" if kk == 0 else None)
                if tj == 0 and 2 <= kk < 6: wrc(2 + ((kk-2) >> 1), kk & 1)
        wrc(1, 0); wrc(1, 1)
    else:
        for kk in range(8):
            for tj in range(2): mfma(a, 36+16*tj, WO+4*(2*kk+tj), 4+4*kk, "0" if kk == 0 else None)
        for s in (1, 2, 3): wrc(s, 0); wrc(s, 1)
    for j in range(4):
        a(f"v_lshlrev_b32 v{4+2*j}, 16, v{XRES+j}")
        a(f"v_and_b32 v{5+2*j}, 0xffff0000, v{XRES+j}")
    for r in range(8): a(f"v_add_f32 v{36+r}, v{36+r}, v{4+r}")
    a.waitlg()
    a("s_barrier")
    for s in range(3):
        a(f"ds_read_b128 {vr(44+8*s,4)}, v84 offset:{s*2048}")
        a(f"ds_read_b128 {vr(48+8*s,4)}, v84 offset:{s*2048+1024}")
    slot_H(a, 44, 45)
    for s in range(3):
        for r in range(8): a(f"v_add_f32 v{36+r}, v{36+r}, v{44+8*s+r}")
    pack8(a, HB, 36)
    nosent(a, HB)
    flavored(a, [f"buffer_store_dwordx4 {vr(HB,4)}, v2, {R(SWS)}, s44 offen"])
    a("v_add_f32 v4, v36, v37\nv_mul_f32 v5, v36, v36\nv_fmac_f32 v5, v37, v37")
    for r in range(2, 8):
        a(f"v_add_f32 v4, v4, v{36+r}")
        a(f"v_fmac_f32 v5, v{36+r}, v{36+r}")
    a("v_mov_b32 v6, v4\nv_mov_b32 v7, v5")
    a("v_permlane32_swap_b32 v6, v4\nv_permlane32_swap_b32 v7, v5")
    a("v_add_f32 v4, v4, v6\nv_add_f32 v5, v5, v7")
    a("s_and_b32 s44, s3, 1")
    a("s_lshl_b32 s44, s44, 8")
    a(f"s_add_u32 s44, s44, {L_ST2}")
    a("v_lshl_add_u32 v6, v90, 1, s44")
    exec_lo32(a)
    a("ds_add_f32 v6, v4\nds_add_f32 v6, v5 offset:4")
    exec_all(a)
    a(f"v_mov_b32 v{VST}, v91")
    pm(a, "c2")
    a.waitlg()
    a("s_barrier")
    lab = a.label("nost")
    a("s_cmp_ge_u32 s3, 2")
    a(f"s_cbranch_scc1 {lab}")
    a("ds_read_b64 v[4:5], v6")
    a(f"s_lshl_b32 s44, s{sTC}, 3")
    a(f"s_add_u32 s44, s44, s{sCS}")
    a("s_lshl_b32 s44, s44, 9")
    a(f"s_add_u32 s44, s44, {WS_ST2}")
    a(f"v_mov_b32 v13, s{sT}\nv_mov_b32 v15, s{sT}")
    a("v_lshlrev_b32 v7, 2, v90")
    a("v_mov_b32 v12, v4\nv_mov_b32 v14, v5")
    exec_lo32(a)
    flavored(a, [f"buffer_store_dwordx4 v[12:15], v7, {R(SWS)}, s44 offen"])
    exec_all(a)
    a(f"{lab}:")
    a("@forget")

def bump(a):
    lab2 = a.label("nobump")
    a("s_or_b32 s44, s2, s3")
    a("s_cmp_lg_u32 s44, 0")
    a(f"s_cbranch_scc1 {lab2}")
    a("v_mov_b32 v3, s63")
    a("s_mov_b64 exec, 1")
    a(f"buffer_store_dword v3, off, {R(SWS)}, 0 sc1")
    a("s_waitcnt vmcnt(0)")
    a(f"{lab2}:")

def phaseD(a):
    ACC, WF, HR, CSF, STL, MF, C1, IR, MX = 4, 52, 76, 124, 136, 152, 244, 245, 246
    NR = 12
    WB = [WF, WF+12, CSF]
    def passed():
        a(f"v_mov_b32 v3, {L_CN2}\nv_mov_b32 v{MX}, 1")
        a("s_mov_b64 exec, 1")
        a(f"ds_add_u32 v3, v{MX}")
        exec_all(a)
    lab = a.label("dgo")
    a(f"s_cmp_lt_u32 s{sM}, 29")
    a(f"s_cbranch_scc1 {lab}")
    passed()
    a("s_branch L_djoin")
    a(f"{lab}:")
    d_tile(a, 46, 44)
    a("s_lshl_b32 s44, s46, 15")
    a(f"s_add_u32 s44, s44, {WS_H}")
    a("s_lshl_b32 s47, s46, 12")
    a(f"s_add_u32 s47, s47, {WS_ST2}")
    a("v_lshrrev_b32 v3, 5, v1")
    a("v_lshlrev_b32 v247, 11, v3")
    a("v_lshl_add_u32 v247, v90, 2, v247")
    PL = OPT["dpl"]
    sh = {64: 9, 32: 10, 16: 11, 8: 12}[PL]
    a(f"v_lshlrev_b32 v255, {sh}, v1")
    a(f"v_add_u32 v255, {(1 << sh) - 4}, v255")
    a(f"s_mov_b32 s101, {OPT['rb']}")
    def rdW(ks, j, d):
        a(f"ds_read_b128 {vr(d,4)}, v{VA2 if ks >= 16 else 2} offset:{(ks&15)*3*KB + j*KB}")
    lab = a.label("dyoung")
    a("s_cmp_ge_u32 s3, 4")
    a(f"s_cbranch_scc1 {lab}")
    a(f"s_setprio {OPT['dpr']}")
    a(f"{lab}:")
    a("L_dredo:")
    a("v_mov_b32 v3, 0")
    for ks in range(2):
        for j in range(3): rdW(ks, j, WB[ks]+4*j)
    SP = OPT["dsp"]
    def probe():
        a("s_mov_b32 s45, s44")
        if PL < 64: a(f"s_mov_b64 exec, {hex((1 << PL) - 1)}")
        a(f"buffer_load_dword v3, v255, {R(SWS)}, s44 offen sc1")
        if PL < 64: exec_all(a)
        for ks in range(SP): ldH(ks)
    def ldH(ks):
        if ks and ks % 4 == 0: a("s_add_u32 s45, s45, 4096")
        a(f"buffer_load_dwordx4 {vr(HR+4*(ks%NR),4)}, v2, {R(SWS)}, s45 offen offset:{(ks&3)*1024} sc1")
    def ldst():
        for p in range(4): a(f"buffer_load_dwordx4 {vr(STL+4*p,4)}, v247, {R(SWS)}, s47 offen offset:{p*512} sc1")
    def stats():
        poll(a, ldst, [STL+1, STL+3, STL+5, STL+7, STL+9, STL+11, STL+13, STL+15], first_issued=True)
        for p in range(1, 4):
            a(f"v_add_f32 v{STL}, v{STL}, v{STL+4*p}")
            a(f"v_add_f32 v{STL+2}, v{STL+2}, v{STL+4*p+2}")
        a(f"v_mov_b32 v{STL+1}, v{STL}\nv_mov_b32 v{STL+3}, v{STL+2}")
        a(f"v_permlane32_swap_b32 v{STL+1}, v{STL}\nv_permlane32_swap_b32 v{STL+3}, v{STL+2}")
        a(f"v_add_f32 v{STL}, v{STL}, v{STL+1}\nv_add_f32 v{STL+2}, v{STL+2}, v{STL+3}")
        a(f"v_mul_f32 v{STL}, {fh(-1/512)}, v{STL}")
        a(f"v_mul_f32 v{STL+1}, v{STL}, v{STL}")
        a(f"v_mov_b32 v{STL+3}, {fh(1/512)}")
        a(f"v_fma_f32 v{IR}, v{STL+2}, v{STL+3}, -v{STL+1}")
        a(f"v_max_f32 v{IR}, 0, v{IR}")
        a(f"v_add_f32 v{IR}, {fh(1e-5)}, v{IR}")
        a(f"v_rsq_f32 v{C1}, v{IR}")
        hilo(a, MF, STL, STL+4, False)
        a(f"v_mul_f32 v{C1}, {fh(-LOG2E)}, v{C1}")
        slot_A(a, 50, 51)
    spoll(a, probe, [3], None)
    pm(a, "d0")
    seq = [(j, ks) for j in range(3) for ks in range(24, 32)]
    def rdT(n):
        j, ks = seq[n]
        rdW(ks, j, WF+4*(n%6))
    N0 = max(OPT["dn0"], SP)
    nl = N0
    for ks in range(SP, N0): ldH(ks)
    for ks in range(24):
        if ks == 22: stats()
        for j in range(3):
            if ks < 22: rdW(ks+2, j, WB[(ks+2)%3]+4*j)
            elif ks == 22: rdT(j)
            elif j < 2: rdT(3+j)
            mfma(a, ACC+16*j, WB[ks%3]+4*j, HR+4*(ks%NR), "0" if ks == 0 else None)
            if j == 0: maxacc(a, MX, HR+4*(ks%NR), ks == 0)
            if j == 1 and nl < 32 and nl < ks + NR: ldH(nl); nl += 1
        if nl < 32 and nl <= ks + NR: ldH(nl); nl += 1
        if ks == 8: ldst()
        pm(a, f"dk{ks}")
    assert nl == 32
    for ks in range(24, 32): maxacc(a, MX, HR+4*(ks%NR))
    a(f"v_cmp_eq_u32 vcc, -1, v{MX}")
    a("s_cbranch_vccnz L_dfix")
    a("L_dok:")
    passed()
    CS = STL + 8
    for j in range(3): a(f"v_mov_b32 v{CS+j}, 0")
    exec_lo32(a)
    for j in range(3): a(f"ds_read_b32 v{CS+j}, v{VST} offset:{128*j}")
    exec_all(a)
    def epi(j):
        c = ACC + 16*j; T = STL + 8*(j & 1)
        L = []
        for r in range(8): L.append(f"v_mul_f32 v{T+r}, v{C1}, v{c+r}")
        for r in range(8): L.append(f"v_exp_f32 v{T+r}, v{T+r}")
        for r in range(8): L.append(f"v_mul_f32 v{c+r}, v{c+r}, v{c+8+r}")
        for r in range(8): L.append(f"v_fma_f32 v{T+r}, v{T+r}, v{IR}, v{IR}")
        for r in range(8): L.append(f"v_rcp_f32 v{T+r}, v{T+r}")
        for r in range(8): L.append(f"v_mul_f32 v{c+r}, v{c+r}, v{T+r}")
        for q in range(4): L.append(f"v_cvt_pk_bf16_f32 v{c+8+q}, v{c+2*q}, v{c+2*q+1}")
        for q in range(4): L.append(f"v_min_u32 v{c+8+q}, -2, v{c+8+q}")
        return L
    def st(j):
        flavored(a, [f"buffer_store_dwordx4 {vr(ACC+16*j+8,4)}, v2, {R(SWS)}, s{51 if j == 2 else 50} offen offset:{j*1024}"])
    pend = []
    for n, (j, ks) in enumerate(seq):
        if n + 5 < len(seq): rdT(n+5)
        mfma(a, ACC+16*j, WF+4*(n%6), HR+4*(ks%NR))
        if 2 <= n < 5: hilo(a, CSF+4*(n-2), CS+n-2, CS+4, True)
        if ks == 31:
            pm(a, f"dg{j}")
            mfma(a, ACC+16*j, CSF+4*j, MF)
            if pend:
                for l in pend: a(l)
                st(j-1)
            pend = epi(j)
        elif pend and ks >= 26:
            for l in pend[:11]: a(l)
            pend = pend[11:]
    for l in pend: a(l)
    st(2)
    a("s_setprio 0")
    a("L_djoin:")
    a("@forget")
    pm(a, "d9")

def dfix(a):
    a("L_dfix:")
    a("s_waitcnt vmcnt(0) lgkmcnt(0)")
    a("s_nop 15\ns_nop 3")
    a("s_sub_u32 s101, s101, 1")
    a("s_cbranch_scc0 L_dredo")
    a("s_branch L_dok")

def e_ld(a, n):
    T, kk = n // 11, n % 11
    d = vr(4 + 44*T + 4*kk, 4)
    if kk < 9:
        a(f"buffer_load_dwordx4 {d}, v2, {R(SWS)}, s{50+4*T+(kk>>2)} offen offset:{(kk&3)*1024} sc1")
    else:
        a(f"buffer_load_dwordx4 {d}, v2, {R(SWS)}, s{96+2*T+kk-9} offen sc1")

def phaseE(a):
    AF, ACC, MX, PV, PR = 4, 92, 255, 254, 253
    a("s_mul_i32 s46, s3, 11")
    for T in range(2):
        b = 50 + 4*T
        a(f"s_and_b32 s{b}, s{sTC}, 0xfffffffe")
        if T: a(f"s_add_u32 s{b}, s{b}, 1")
        a(f"s_mul_i32 s{b}, s{b}, 86")
        a(f"s_add_u32 s{b+3}, s{b}, 85")
        a(f"s_add_u32 s{b}, s{b}, s46")
        a(f"s_lshl_b32 s{b}, s{b}, 10\ns_lshl_b32 s{b+3}, s{b+3}, 10")
        a(f"s_add_u32 s{b}, s{b}, {WS_ACT}\ns_add_u32 s{b+3}, s{b+3}, {WS_ACT}")
        a(f"s_add_u32 s{b+1}, s{b}, 4096\ns_add_u32 s{b+2}, s{b}, 8192")
        for q in range(2):
            a(f"s_add_u32 s{96+2*T+q}, s{b}, {(9+q)*KB}")
            a(f"s_min_u32 s{96+2*T+q}, s{96+2*T+q}, s{b+3}")
    EH = OPT["epl"] == 22
    a("s_sub_u32 s44, s97, s50")
    if EH: a("s_add_u32 s44, s44, 512")
    a(f"v_lshlrev_b32 v{PV}, {9 if EH else 10}, v1")
    a(f"v_min_u32 v{PV}, s44, v{PV}")
    a(f"s_mov_b32 s101, {OPT['rb']}")
    a("s_lshr_b32 s46, s3, 1")
    a("s_and_b32 s47, s3, 1")
    def ldpr(T):
        a(f"s_mov_b64 exec, {hex((1 << OPT['epl']) - 1)}")
        a(f"buffer_load_dword v{PR}, v{PV}, {R(SWS)}, s{50+4*T} offen offset:{508 if EH else 1020} sc1")
        exec_all(a)
    a(f"v_mov_b32 v{PR}, 0")
    SP = OPT["esp"]
    def wr(T, q):
        b = ACC + 32*T + 16*(q >> 1) + 8*(q & 1)
        lab = a.label("own")
        a(f"s_xor_b32 s45, s47, {T}")
        if q == 0:
            a("s_cmp_eq_u32 s45, 0")
            a(f"s_cbranch_scc1 {lab}")
        a(f"s_xor_b32 s44, s46, {q}")
        a(f"s_mul_i32 s44, s44, 7")
        a("s_add_u32 s44, s44, s45")
        a("s_lshl_b32 s44, s44, 11")
        a(f"s_add_u32 s44, s44, {(L_REDE[T] + (2*q-1)*2*KB) & 0xffffffff}")
        a(f"v_add_u32 v{244+q}, s44, v2")
        a(f"ds_write_b128 v{244+q}, {vr(b,4)}")
        a(f"ds_write_b128 v{244+q}, {vr(b+4,4)} offset:1024")
        if q == 0: a(f"{lab}:")
    for T in range(2):
        def probe():
            ldpr(T)
            for n in range(SP): e_ld(a, 11*T+n)
        pre = T == 1 and OPT["epr"] >= 0
        if pre:
            lp, go = a.label("eslow"), a.label("ego")
            a(f"v_cmp_eq_u32 vcc, -1, v{PR}")
            a(f"s_cbranch_vccz {go}")
            spoll(a, lambda: ldpr(T), [PR], None)
            a(f"{go}:")
            nl = 0
        else:
            spoll(a, probe, [PR], None)
            nl = SP
        pm(a, f"e{T}s")
        N0 = OPT["en0"]
        while nl < N0: e_ld(a, 11*T+nl); nl += 1
        if T == 1:
            for q in range(OPT["ew0"]): wr(0, q)
        a(f"L_eredo{T}:")
        for kk in range(11):
            for tj in range(2):
                mfma(a, ACC+32*T+16*tj, W2+4*(2*kk+tj), AF+44*T+4*kk, "0" if kk == 0 else None)
                if tj == 0: maxacc(a, MX, AF+44*T+4*kk, kk == 0)
                if nl < 11: e_ld(a, 11*T+nl); nl += 1
            if T == 1 and kk in (1, 3, 5, 7) and (kk >> 1) >= OPT["ew0"]: wr(0, kk >> 1)
            if T == 0 and kk == OPT["epr"]: ldpr(1)
            pm(a, f"e{T}k{kk}")
        a(f"v_cmp_eq_u32 vcc, -1, v{MX}")
        a(f"s_cbranch_vccnz L_efix{T}")
        a(f"L_eok{T}:")
    lp, dn = a.label("cn2"), a.label("cn2d")
    a(f"v_mov_b32 v3, {L_CN2}")
    a(f"s_mov_b32 s{sCNT}, {1 << 20}")
    a(f"{lp}:")
    a(f"ds_read_b32 v{PR}, v3")
    a("s_waitcnt lgkmcnt(0)")
    a(f"v_cmp_ne_u32 vcc, 8, v{PR}")
    a(f"s_cbranch_vccz {dn}")
    a(f"s_sub_u32 s{sCNT}, s{sCNT}, 1")
    a(f"s_cbranch_scc0 {lp}")
    a(f"{dn}:")
    for j in range(4):
        a(f"v_lshlrev_b32 v{4+2*j}, 16, v{HB+j}")
        a(f"v_and_b32 v{5+2*j}, 0xffff0000, v{HB+j}")
    a(f"s_mul_i32 s45, s46, {14*KB}")
    a("s_cmp_eq_u32 s47, 0")
    a(f"s_cselect_b32 s44, {L_REDE[0]}, {L_REDE[1]}")
    a("s_add_u32 s45, s45, s44")
    a(f"v_add_u32 v3, s45, v2")
    for q in (3, 2, 1, 0): wr(1, q)
    lab, lb2 = a.label("odd"), a.label("sum")
    a("s_cmp_lg_u32 s47, 0")
    a(f"s_cbranch_scc1 {lab}")
    for r in range(8): a(f"v_add_f32 v{ACC+r}, v{ACC+r}, v{4+r}")
    a(f"s_branch {lb2}")
    a(f"{lab}:")
    for r in range(8): a(f"v_add_f32 v{ACC+r}, v{ACC+32+r}, v{4+r}")
    a(f"{lb2}:")
    a.waitlg()
    pm(a, "e3")
    a("s_barrier")
    pm(a, "e4")
    for s in range(7):
        a(f"ds_read_b128 {vr(4+8*s,4)}, v3 offset:{s*2048}")
        a(f"ds_read_b128 {vr(8+8*s,4)}, v3 offset:{s*2048+1024}")
    for s in range(7):
        for r in range(8): a(f"v_add_f32 v{ACC+r}, v{ACC+r}, v{4+8*s+r}")
    pack8(a, 4, ACC)
    a(f"buffer_store_dwordx4 v[4:7], v{VRES}, {R(SOUT)}, s{sRES} offen")
    pm(a, "e5")

def efix(a):
    for T in range(2):
        a(f"L_efix{T}:")
        a("s_waitcnt vmcnt(0) lgkmcnt(0)")
        a("s_nop 15\ns_nop 3")
        a("s_sub_u32 s101, s101, 1")
        a(f"s_cbranch_scc1 L_eok{T}")
        for kk in range(11): e_ld(a, 11*T + kk)
        a("s_waitcnt vmcnt(0)")
        a(f"s_branch L_eredo{T}")

def build():
    a = Asm()
    name = NAME + "_kernel"
    kernel_begin(a, name)
    prologue(a)
    stop = OPT["stop"]
    a("s_cmp_ge_u32 s3, 4")
    a("s_cbranch_scc1 L_helper")
    phaseA_mfma(a)
    if stop > 1: attn_setup(a)
    phaseA_mfma_pub(a)
    if stop > 1:
        attn_setup2(a)
        first_tiles(a)
        attn_loop(a, True)
    else: a("s_waitcnt vmcnt(0) lgkmcnt(0)")
    a("s_branch L_attn_done")
    a("L_helper:")
    phaseA_helper(a)
    if stop > 1:
        attn_setup(a); attn_setup2(a); prep_addr(a)
        if OPT["tp"] < 0:
            prep_rd(a)
            pm(a, "a3")
            for e in range(6): prep_st(a, e)
            pm(a, "a4")
        attn_loop(a, False)
    else: a("s_waitcnt vmcnt(0) lgkmcnt(0)")
    a("L_attn_done:")
    if stop > 1:
        attn_finish(a)
        if stop > 2:
            phaseC(a)
            if stop > 3:
                phaseD(a)
                if stop > 4: phaseE(a)
            bump(a)
    prof_end(a)
    if stop > 1: fallback(a)
    if stop > 3: dfix(a)
    if stop > 4: efix(a)
    a("L_exit:")
    a("s_endpgm")
    hdr = open("cdna_kernels/" + NAME + ".s.ref").read().split("; Override launch")[0]
    out = hdr + f"; @launch grid=(256,1,1) block=(512,1,1) lds={LDS_BYTES}\n"
    out += '.amdgcn_target "amdgcn-amd-amdhsa--gfx950"\n.text\n'
    out += a.finalize()
    out += '.section .rodata,"a"\n.p2align 6\n' + kernel_desc(name, 256)
    print("auto:", a.stats, "instrs", len(a.ins), file=sys.stderr)
    return out

if __name__ == "__main__":
    Prof.on = "prof" in sys.argv
    Prof.cyc = "cyc" in sys.argv
    OPT["fast"] = "fast" in sys.argv
    for x in sys.argv[2:]:
        if x.startswith("marks="): MARKS[:] = x[6:].split(",")
        elif "=" in x: OPT[x.split("=")[0]] = int(x.split("=")[1])
    open(sys.argv[1], "w").write(build())
```

```python
import sys
from asm2 import *

NAME = "sequential_preLN__softmax_full_mha__glu_gated_swiglu__prompt"
KB = 1024; MB = 1 << 20
WS_EPOCH = 0
WS_IDS  = 4 * KB
WS_FQKV = 8 * KB
WS_FW   = 16 * KB
WS_CLR  = 20 * KB
WS_CSP  = 3 * MB
WS_ST2  = 128 * KB
WS_Q    = 1 * MB
WS_KV   = 4 * MB
WS_O    = 8 * MB
WS_H    = 10 * MB
WS_ACT  = 12 * MB
WS_WTO  = 18 * MB
WS_WT2  = 19 * MB
WS_WT13 = 21 * MB
WS_END  = 24 * MB
NX = 5
LOG2E = 1.4426950408889634
L_X    = 96 * KB
L_MISC = 156 * KB
L_CS13 = L_MISC + 768
L_ST2  = L_MISC + 1280
L_MFW  = L_MISC + 3584
L_RS   = L_MISC + 3840
L_CNT  = L_MISC + 1800
L_CN2  = L_MISC + 1804
L_PR1  = 136 * KB
L_PR2  = 152 * KB
L_STG  = 128 * KB
L_REDC = 96 * KB
L_REDE = (96 * KB, 0)
LDS_BYTES = 160 * KB
SX, SWQ, SWS, SWO, SW1, SW3, SW2, SOUT = 4, 8, 12, 16, 20, 24, 28, 32
sT, sG, sM, sFAST, sID, sCNT = 36, 37, 38, 39, 40, 41
sP, sTB, sHEAD, sTT, sTC, sCS, sRES = 56, 57, 58, 59, 60, 61, 62
POLL_LIMIT = 1 << 17
OPT = dict(wb=0, ta=0, pq=4, pqq=1, fl=0, pt=4, ff=0, nsc=0, stop=99, fast=False, lax=3, pc=5, sj=7, tw=14, tc=14, tc1=44, we=48, wl=5, da=47, db=60, tp=-1, tss=1, nid=22, nck=28, xa=0, xo=1, sm=1, tf=4, oe=0, dn0=6, dpl=8, epl=11, cpr=0, dsp=3, dpr=2, cj=1, esp=3, en0=11, epr=4, ew0=0, pl=17, rb=16)

MARKS = "a0,a1,a2,a3,b0,b9,c0,c1,c2,d0,d9,e0".split(",")
def pm(a, name):
    if name in MARKS: prof_mark(a, MARKS.index(name))
def R(d, n=4): return sr(d, n)

def tr_addr(a, d, t, row_shift=6, cg_mul=32):
    a(f"v_lshrrev_b32 v{d}, 5, v1")
    a(f"v_lshlrev_b32 v{d}, {row_shift+3}, v{d}")
    a(f"v_bfe_u32 v{t}, v1, 2, 2")
    a(f"v_lshl_add_u32 v{d}, v{t}, {row_shift}, v{d}")
    a(f"v_bfe_u32 v{t}, v1, 4, 1")
    a(f"v_mul_u32_u24 v{t}, {cg_mul}, v{t}")
    a(f"v_add_u32 v{d}, v{d}, v{t}")
    a(f"v_and_b32 v{t}, 1, v1")
    a(f"v_lshl_add_u32 v{d}, v{t}, 4, v{d}")
    a(f"v_bfe_u32 v{t}, v1, 1, 1")
    a(f"v_lshl_add_u32 v{d}, v{t}, 3, v{d}")

def pi_lane(a, d, t):
    a(f"v_and_b32 v{d}, 0x33, v1")
    a(f"v_bfe_u32 v{t}, v1, 2, 1")
    a(f"v_lshl_add_u32 v{d}, v{t}, 3, v{d}")
    a(f"v_bfe_u32 v{t}, v1, 3, 1")
    a(f"v_lshl_add_u32 v{d}, v{t}, 2, v{d}")

def pack8(a, d, s):
    for j in range(4): a(f"v_cvt_pk_bf16_f32 v{d+j}, v{s+2*j}, v{s+2*j+1}")

def mfma(a, d, A, B, c=None):
    a(f"v_mfma_f32_32x32x16_bf16 {vr(d,16)}, {vr(A,4)}, {vr(B,4)}, {vr(d,16) if c is None else c}")

def tr2(a, d, addr, off, addr2=None, tag=None):
    a(f"ds_read_b64_tr_b16 {vr(d,2)}, v{addr} offset:{off}", tag)
    if addr2 is None: a(f"ds_read_b64_tr_b16 {vr(d+2,2)}, v{addr} offset:{off+256}", tag)
    else: a(f"ds_read_b64_tr_b16 {vr(d+2,2)}, v{addr2} offset:{off}", tag)

def exec_lo32(a): a("s_mov_b64 exec, 0xffffffff")
def exec_all(a): a("s_mov_b64 exec, -1")

def flavored(a, lines, tag=None, sfx=""):
    if not OPT["fast"]:
        for l in lines: a(l + " sc1", tag)
        return
    lf, ld = a.label("fast"), a.label("fdone")
    a(f"s_cmp_lg_u32 s{sFAST}, 0")
    a(f"s_cbranch_scc1 {lf}")
    for l in lines: a(l + " sc1", tag)
    a(f"s_branch {ld}")
    a(f"{lf}:")
    for l in lines: a(l + sfx, tag)
    a(f"{ld}:")

def flag_store(a, soff, vt, local=True):
    a(f"v_mov_b32 v{vt}, s{sT}")
    a("s_mov_b64 exec, 1")
    l = f"buffer_store_dword v{vt}, off, {R(SWS)}, s{soff}"
    if local: flavored(a, [l])
    else: a(l + " sc1")
    exec_all(a)

def poll(a, load, checks, first_issued=False):
    lp, dn, ck = a.label("poll"), a.label("pdone"), a.label("pchk")
    a(f"s_mov_b32 s{sCNT}, {1 << OPT['pl']}")
    if first_issued: a(f"s_branch {ck}")
    a(f"{lp}:")
    load()
    a("s_waitcnt vmcnt(0)")
    if first_issued: a(f"{ck}:")
    a(f"v_cmp_ne_u32 vcc, s{sT}, v{checks[0]}")
    for c in checks[1:]:
        a(f"v_cmp_ne_u32 s[42:43], s{sT}, v{c}")
        a("s_or_b64 vcc, vcc, s[42:43]")
    a(f"s_cbranch_vccz {dn}")
    a(f"s_sub_u32 s{sCNT}, s{sCNT}, 1")
    a(f"s_cbranch_scc0 {lp}")
    a(f"{dn}:")

def hilo(a, d, src, t, dup):
    a(f"v_and_b32 v{t}, 0xffff0000, v{src}")
    a(f"v_sub_f32 v{t+1}, v{src}, v{t}")
    if dup:
        a(f"v_cvt_pk_bf16_f32 v{d}, v{t}, v{t}")
        a(f"v_cvt_pk_bf16_f32 v{d+1}, v{t+1}, v{t+1}")
    else:
        a(f"v_cvt_pk_bf16_f32 v{d}, v{t}, v{t+1}")
        a(f"v_cvt_pk_bf16_f32 v{d+1}, v{t}, v{t+1}")
    a(f"v_mov_b32 v{d+2}, 0")
    a(f"v_mov_b32 v{d+3}, 0")

def allreduce32(a, v, t):
    for m in ("quad_perm:[1,0,3,2]", "quad_perm:[2,3,0,1]", "row_half_mirror", "row_mirror"):
        a(f"v_add_f32 v{v}, v{v}, v{v} {m} row_mask:0xf bank_mask:0xf")
    a(f"v_mov_b32 v{t}, v{v}")
    a(f"v_permlane16_swap_b32 v{t}, v{v}")
    a(f"v_add_f32 v{v}, v{v}, v{t}")

def ids_check(a, v):
    a(f"v_cmp_ne_u32 vcc, s{sID}, v{v}")
    a("s_cmp_eq_u64 vcc, 0")
    a(f"s_cselect_b32 s{sFAST}, 1, 0")

def prologue(a):
    a("s_cmp_ge_u32 s2, 256")
    a("s_cbranch_scc1 L_exit")
    a("s_load_dwordx16 s[40:55], s[0:1], 0")
    a("s_load_dwordx2 s[62:63], s[0:1], 72")
    prof_begin(a)
    a("v_and_b32 v1, 63, v0")
    a("v_lshrrev_b32 v2, 6, v0")
    a("v_readfirstlane_b32 s3, v2")
    a("v_lshlrev_b32 v2, 4, v1")
    a(f"s_and_b32 s{sG}, s2, 7")
    a(f"s_lshr_b32 s{sM}, s2, 3")
    a(f"s_lshr_b32 s{sP}, s{sM}, 4")
    a(f"s_lshl_b32 s{sTB}, s{sG}, 1")
    a(f"s_add_u32 s{sP}, s{sP}, s{sTB}")
    a(f"s_and_b32 s{sTB}, s{sM}, 15")
    a(f"s_bfe_u32 s{sHEAD}, s{sM}, 0x10003")
    a(f"s_lshl_b32 s{sTT}, s{sP}, 1")
    a(f"s_add_u32 s{sHEAD}, s{sHEAD}, s{sTT}")
    a(f"s_and_b32 s{sCS}, s{sM}, 7")
    a(f"s_mov_b32 s{sFAST}, 0")

def prologue2(a, part=3):
    if part & 1:
        a("s_waitcnt lgkmcnt(0)")
        if OPT["wb"]: a(f"s_add_u32 s62, s62, {OPT['wb']*MB}\ns_addc_u32 s63, s63, 0")
        a("s_load_dword s36, s[62:63], 0")
        srd(a, SX, 40, 2048*1024)
        srd(a, SWQ, 42, 512*3072)
    if not part & 2: return
    srd(a, SWS, 62, WS_END)
    srd(a, SWO, 44, 512*1024)
    srd(a, SW1, 48, 512*2752)
    srd(a, SW3, 50, 512*2752)
    srd(a, SW2, 52, 1376*1024)
    srd(a, SOUT, 54, 2048*1024)

def tag_ready(a):
    a("s_waitcnt lgkmcnt(0)")
    a(f"s_add_u32 s63, s{sT}, 1")
    a(f"s_mul_i32 s{sT}, s63, 0x9E3779B1")
    a(f"s_getreg_b32 s{sID}, hwreg(HW_REG_XCC_ID)")
    a(f"s_lshl_b32 s{sID}, s{sID}, 28")
    a(f"s_and_b32 s42, s{sT}, 0x0fffffff")
    a(f"s_or_b32 s{sID}, s{sID}, s42")

def wq_addr(a, d, t, sp):
    a(f"v_lshrrev_b32 v{d}, 5, v1")
    a(f"v_mul_u32_u24 v{d}, 3072, v{d}")
    a(f"v_bfe_u32 v{t}, v1, 2, 2")
    a(f"v_lshl_add_u32 v{d}, v{t}, 7, v{d}")
    a(f"v_bfe_u32 v{t}, v1, 3, 1")
    if sp is not None: a(f"v_xor_b32 v{t}, s{sp}, v{t}")
    a(f"v_lshl_add_u32 v{d}, v{t}, 6, v{d}")
    a(f"v_bfe_u32 v{t}, v1, 4, 1")
    a(f"v_lshl_add_u32 v{d}, v{t}, 5, v{d}")
    a(f"v_and_b32 v{t}, 1, v1")
    a(f"v_lshl_add_u32 v{d}, v{t}, 4, v{d}")
    a(f"v_bfe_u32 v{t}, v1, 1, 1")
    a(f"v_lshl_add_u32 v{d}, v{t}, 3, v{d}")

def trw(a, d, addr, off):
    a(f"ds_read_b64_tr_b16 {vr(d,2)}, v{addr} offset:{off}")
    a(f"ds_read_b64_tr_b16 {vr(d+2,2)}, v{addr} offset:{off+512}")

def mfs(a, d, A, B, c=None):
    a(f"v_mfma_f32_16x16x32_bf16 {vr(d,4)}, {vr(A,4)}, {vr(B,4)}, {vr(d,4) if c is None else c}")

def phaseA_mfma(a):
    AQ, AK, AV, XF, WF, VXA, VWA, VWB, G, TM = 16, 32, 48, 144, 156, 4, 8, 3, 96, 104
    CSF, MF, RSB, SEL, CSD, PL, VS, VG, OWN, PUB = 112, 124, 128, 192, 196, 212, 236, 239, 208, 220
    a("s_and_b32 s96, s3, 1")
    a("s_lshr_b32 s97, s3, 1")
    a("v_and_b32 v9, 31, v1")
    a("v_lshrrev_b32 v10, 5, v1")
    a("v_bfe_u32 v11, v1, 1, 3")
    a("v_xor_b32 v11, v11, v10")
    a("v_lshlrev_b32 v11, 4, v11")
    a("v_lshl_add_u32 v11, v9, 7, v11")
    a(f"s_lshl_b32 s98, s96, 12")
    a(f"s_add_u32 s98, s98, {L_X}")
    a("v_add_u32 v11, s98, v11")
    for k in range(4): a(f"v_xor_b32 v{VXA+k}, {32*k}, v11")
    wq_addr(a, VWA, 11, 97)
    a(f"v_add_u32 v{VWB}, {48*KB}, v{VWA}")
    a("v_mov_b32 v16, 0\nv_mov_b32 v17, 0")
    a("s_lshl_b32 s98, s3, 9")
    a(f"s_add_u32 s98, s98, {L_MISC}")
    a("v_lshl_add_u32 v11, v1, 3, s98")
    a("ds_write_b64 v11, v[16:17]")
    prologue2(a)
    a("v_lshrrev_b32 v11, 2, v1")
    a("v_xor_b32 v11, v11, v1")
    a("v_bfe_u32 v11, v11, 2, 1")
    a("v_add_u32 v11, -1, v11")
    for q in range(4): a(f"v_and_b32 v{SEL+q}, 0x3f803f80, v11")
    a("v_lshlrev_b32 v13, 2, v9")
    a("v_lshlrev_b32 v12, 3, v9")
    a(f"v_lshl_add_u32 v{VG}, v10, 10, v12")
    a(f"s_add_u32 s98, s{sM}, 6\ns_add_u32 s99, s{sM}, 3")
    a("s_and_b32 s98, s98, 7\ns_and_b32 s99, s99, 7")
    a("s_lshl_b32 s98, s98, 12\ns_lshl_b32 s99, s99, 12")
    a("s_add_u32 s98, s98, 1024")
    a("s_sub_u32 s99, s99, s98")
    a("v_mul_lo_u32 v11, v10, s99")
    a("v_add3_u32 v12, v12, v11, s98")
    for p in range(3): a(f"v_mov_b32 v{OWN+p}, 0")
    a("s_lshl_b32 s98, s96, 7")
    a(f"s_add_u32 s98, s98, {L_MFW}")
    a("v_add_u32 v14, s98, v13")
    a("v_lshl_add_u32 v15, v10, 4, s98")
    a(f"v_mov_b32 v{MF+2}, 0\nv_mov_b32 v{MF+3}, 0")
    a(f"s_lshl_b32 s44, s{sM}, 1")
    a("s_add_u32 s44, s44, s96")
    a(f"s_lshl_b32 s47, s{sG}, 1")
    a("s_add_u32 s47, s47, s97")
    a(f"s_lshl_b32 s46, s{sG}, 7")
    a(f"s_add_u32 s46, s46, {WS_IDS}")
    a(f"s_lshl_b32 s45, s{sM}, 2")
    a("s_add_u32 s45, s45, s46")
    a(f"s_lshl_b32 s98, s{sG}, 5")
    a(f"s_add_u32 s98, s98, s{sM}")
    a("s_and_b32 s99, s98, 0xfffffff8")
    a("s_lshl_b32 s98, s98, 1\ns_lshl_b32 s99, s99, 1")
    a("s_add_u32 s98, s98, s97\ns_add_u32 s99, s99, s97")
    a("s_lshl_b32 s98, s98, 11\ns_lshl_b32 s99, s99, 11")
    a(f"s_add_u32 s98, s98, {WS_CSP}\ns_add_u32 s99, s99, {WS_CSP}")
    tag_ready(a)
    a(f"v_mov_b32 v{G+5}, s{sID}")
    for p in range(3): a(f"v_mov_b32 v{PUB+2*p+1}, s{sT}")
    def reads(n, part):
        c, k, b = n >> 2, n & 3, n % 3
        if OPT["xa"] & 4 and n > 2: return
        if part == 0: a(f"ds_read_b128 {vr(XF+4*b,4)}, v{VXA+k} offset:{(c%NX)*8*KB}")
        trw(a, WF+12*b+4*part, VWB if c & 2 else VWA, (c&1)*24*KB + k*6*KB + part*KB)
    def ldp():
        for p in range(3): a(f"buffer_load_dwordx2 {vr(PL+2*p,2)}, v12, {R(SWS)}, s99 offen offset:{p*256} sc1")
    def csum(p):
        a(f"v_add_f32 v{PL+2*p}, v{PL+2*p}, v{OWN+p}")
        a(f"v_and_b32 v{TM}, 0xffff0000, v{PL+2*p}")
        a(f"v_sub_f32 v{TM+1}, v{PL+2*p}, v{TM}")
        a(f"v_cvt_pk_bf16_f32 v{CSF+4*p}, v{TM}, v{TM}")
        a(f"v_cvt_pk_bf16_f32 v{CSF+4*p+1}, v{TM+1}, v{TM+1}")
    for p in range(3): a(f"v_mov_b32 v{CSF+4*p+2}, 0\nv_mov_b32 v{CSF+4*p+3}, 0")
    pi_lane(a, VS, VS+1)
    a(f"v_lshlrev_b32 v{VS}, 4, v{VS}")
    a(f"v_and_b32 v{VS+1}, 15, v1\nv_lshlrev_b32 v{VS+1}, 4, v{VS+1}")
    a(f"v_lshl_add_u32 v{VS+1}, v10, 8, v{VS+1}")
    a(f"v_bfe_u32 v{VS+2}, v1, 4, 1")
    a(f"v_lshl_add_u32 v{VS+1}, v{VS+2}, 17, v{VS+1}")
    a("s_lshl_b32 s50, s47, 7")
    a("s_add_u32 s50, s50, s44")
    a("s_lshl_b32 s51, s50, 11")
    a("s_lshl_b32 s50, s50, 10")
    a(f"s_add_u32 s50, s50, {WS_Q}")
    a(f"s_add_u32 s51, s51, {WS_KV}")
    a(f"s_add_u32 s52, s50, {64*KB}")
    a(f"s_add_u32 s53, s51, {128*KB}")
    a("s_lshl_b32 s101, s47, 8")
    a("s_lshl_b32 s44, s44, 2")
    a("s_add_u32 s101, s101, s44")
    a(f"s_add_u32 s101, s101, {WS_FQKV}")
    a("s_cmp_eq_u32 s3, 0")
    a("s_cselect_b64 s[54:55], 1, 0")
    a("s_cmp_eq_u32 s96, 1")
    a("s_cselect_b64 s[48:49], -1, 0")
    F = {}
    def at(n, p, f): F.setdefault((n, p), []).append(f)
    def f_ids():
        a("s_mov_b64 exec, s[54:55]")
        a(f"buffer_store_dword v{G+5}, off, {R(SWS)}, s45 sc1")
        exec_all(a)
    at(5, 0, f_ids)
    def f_s3(p):
        exec_lo32(a)
        a(f"v_mov_b32 v{PUB+2*p}, v{CSD+4*p}\nv_mov_b32 v{OWN+p}, v{CSD+4*p}")
        a("s_mov_b64 exec, s[48:49]")
        a(f"buffer_store_dwordx2 {vr(PUB+2*p,2)}, v{VG}, {R(SWS)}, s98 offen offset:{p*256} sc1")
        exec_all(a)
    NI, NC = OPT["nid"], OPT["nck"]
    a("v_and_b32 v248, 15, v1\nv_lshlrev_b32 v248, 7, v248")
    a("v_bfe_u32 v250, v1, 4, 1")
    a("v_lshl_add_u32 v248, v250, 17, v248")
    a("v_and_b32 v249, 7, v1\nv_lshlrev_b32 v249, 7, v249")
    a("v_bfe_u32 v250, v1, 3, 1")
    a("v_lshl_add_u32 v249, v250, 16, v249")
    def touch():
        if OPT["pq"]:
            a(f"s_cmp_lt_u32 s{sM}, {OPT['pq']}")
            a(f"s_cselect_b32 s95, s51, {OOB}")
            exec_lo32(a)
            a(f"buffer_load_dword v250, v248, {R(SWS)}, s95 offen sc1")
        if OPT["pqq"]:
            a("s_mov_b64 exec, 0xffff")
            a(f"buffer_load_dword v251, v249, {R(SWS)}, s50 offen sc1")
        exec_all(a)
    if OPT["pt"] == -1: touch()
    elif 0 <= OPT["pt"] < 32: at(OPT["pt"], 1, touch)
    for p in range(3):
        at(12, p, lambda p=p: f_s3(p))
        at(NI, p, lambda p=p: a(f"buffer_load_dwordx2 {vr(PL+2*p,2)}, v12, {R(SWS)}, s99 offen offset:{p*256} sc1"))
        at(NC+1, p, lambda p=p: csum(p))
        at(NC+2, p, lambda p=p: mfma(a, AQ+16*p, CSF+4*p, MF) if p < 2 else mfma(a, AV, MF, CSF+8))
    at(NI-1, 2, lambda: a(f"buffer_load_dword v{G+4}, v13, {R(SWS)}, s46 offen sc1"))
    at(NC, 1, lambda: ids_check(a, G+4))
    at(NC, 2, lambda: poll(a, ldp, [PL+1, PL+3, PL+5], first_issued=True))
    at(26, 1, lambda: a(f"ds_read_b32 v{MF}, v14\nds_read_b32 v{MF+1}, v14"))
    at(26, 2, lambda: a(f"ds_read_b32 v{G+2}, v14 offset:{L_RS-L_MFW}"))
    for q in range(4): at(30 + q//3, q%3, lambda q=q: a(f"ds_read_b128 {vr(RSB+4*q,4)}, v15 offset:{L_RS-L_MFW+32*q}"))
    pm(a, "a0")
    a("s_barrier")
    pm(a, "a1")
    for p in range(3): reads(0, p)
    for p in range(3): reads(1, p)
    for n in range(32):
        b = n % 3
        pm(a, f"an{n}")
        if (n & 3) == 2 and n < 30: a("s_barrier")
        for pi_, p in enumerate(range(3) if n < 31 else (1, 2, 0)):
            if n < 30: reads(n+2, p)
            c0 = "0" if n == 0 else None
            if p < 2: mfma(a, AQ+16*p, WF+12*b+4*p, XF+4*b, c0)
            else: mfma(a, AV, XF+4*b, WF+12*b+8, c0)
            if n == 8: a(f"v_mov_b32 v{PUB+2*p}, v{CSD+4*p}")
            if n < 12: mfs(a, CSD+4*p, SEL, WF+12*b+4*p, c0)
            for f in F.get((n, pi_), []): f()
    a("s_barrier")
    pm(a, "a2")
    if OPT["ff"] == 1: a(f"s_mov_b32 s{sFAST}, 1")
    if OPT["ff"] == 2: a(f"s_mov_b32 s{sFAST}, 0")
    a(f"v_mul_f32 v{G}, {fh(0.25*LOG2E)}, v{G+2}")
    def scal(A, S, bc):
        for r in range(0, 16, 2):
            if bc: a(f"v_pk_mul_f32 {vr(A+r,2)}, {vr(A+r,2)}, {vr(S,2)} op_sel_hi:[1,0]")
            else: a(f"v_pk_mul_f32 {vr(A+r,2)}, {vr(A+r,2)}, {vr(S+r,2)}")
    FL_ = ["", " nt", " sc0", " sc0 nt", " sc1 nt", " sc0 sc1 nt"][OPT["fl"]]
    scal(AK, G+2, True)
    pack8(a, 72, AK); pack8(a, 76, AK+8)
    flavored(a, [f"buffer_store_dwordx4 v[72:75], v{VS}, {R(SWS)}, s51 offen",
                 f"buffer_store_dwordx4 v[76:79], v{VS}, {R(SWS)}, s53 offen"], "qkv", sfx=FL_)
    scal(AV, RSB, False)
    pack8(a, 80, AV); pack8(a, 84, AV+8)
    flavored(a, [f"buffer_store_dwordx4 v[80:83], v{VS+1}, {R(SWS)}, s51 offen offset:1024",
                 f"buffer_store_dwordx4 v[84:87], v{VS+1}, {R(SWS)}, s51 offen offset:1536"], "qkv", sfx=FL_)
    scal(AQ, G, True)
    pack8(a, 64, AQ); pack8(a, 68, AQ+8)
    flavored(a, [f"buffer_store_dwordx4 v[64:67], v2, {R(SWS)}, s50 offen",
                 f"buffer_store_dwordx4 v[68:71], v2, {R(SWS)}, s52 offen"], "qkv", sfx=FL_)
    if OPT["pt"] == 40: touch()
    if OPT["pt"] == 41: a("s_mov_b32 s94, s50")

def phaseA_mfma_pub(a):
    pm(a, "a2s")
    a.waitvm("qkv")
    flag_store(a, 101, 3)
    if OPT["pt"] == 41:
        a("s_mov_b64 exec, 0xffff")
        a(f"buffer_load_dword v251, v249, {R(SWS)}, s94 offen sc1")
        exec_all(a)
    pm(a, "a3")

def htouch(a):
    a("s_lshr_b32 s42, s100, 1")
    a(f"s_lshl_b32 s43, s{sG}, 1")
    a("s_add_u32 s42, s42, s43")
    a("s_lshl_b32 s42, s42, 6")
    a(f"s_add_u32 s42, s42, s{sM}")
    a("s_lshl_b32 s42, s42, 1")
    a("s_and_b32 s43, s100, 1")
    a("s_add_u32 s42, s42, s43")
    a("s_lshl_b32 s43, s42, 11")
    a("s_lshl_b32 s42, s42, 10")
    a(f"s_add_u32 s42, s42, {WS_Q}")
    a(f"s_add_u32 s43, s43, {WS_KV}")
    a("v_and_b32 v248, 15, v1\nv_lshlrev_b32 v248, 7, v248")
    a("v_bfe_u32 v250, v1, 4, 1")
    a("v_lshl_add_u32 v248, v250, 17, v248")
    a("v_and_b32 v249, 7, v1\nv_lshlrev_b32 v249, 7, v249")
    a("v_bfe_u32 v250, v1, 3, 1")
    a("v_lshl_add_u32 v249, v250, 16, v249")
    a("s_mov_b64 exec, 0xffff")
    a(f"buffer_load_dword v251, v249, {R(SWS)}, s42 offen sc1")
    if not OPT["pq"]:
        exec_lo32(a)
        a(f"buffer_load_dword v250, v248, {R(SWS)}, s43 offen sc1")
    exec_all(a)

def phaseA_helper(a):
    VXE, VXO, VW, VSX, ONES, XD, SUM, GR, U = 4, 5, 6, 7, 12, 48, 32, 36, 40
    a("s_sub_u32 s100, s3, 4")
    a("v_lshrrev_b32 v9, 3, v1")
    a("v_lshrrev_b32 v10, 4, v1")
    a("v_and_b32 v11, 7, v1")
    a("v_xor_b32 v12, v11, v10")
    a("v_lshlrev_b32 v12, 4, v12")
    a(f"v_lshl_add_u32 v{VXE}, v9, 10, v12")
    a(f"v_xor_b32 v{VXO}, 64, v{VXE}")
    a("v_and_b32 v10, 1, v10")
    a("v_lshlrev_b32 v10, 2, v10")
    a("v_xor_b32 v11, v11, v10")
    a(f"v_mul_u32_u24 v{VW}, 3072, v9")
    a(f"v_lshl_add_u32 v{VW}, v11, 4, v{VW}")
    a(f"s_lshl_b32 s96, s{sM}, 2")
    a("s_add_u32 s96, s96, s100")
    a("s_lshl_b32 s96, s96, 14")
    a(f"s_mul_i32 s97, s100, {16*3072}")
    a(f"s_lshl_b32 s98, s{sG}, 7")
    a("s_add_u32 s97, s97, s98")
    a("s_lshl_b32 s98, s100, 11")
    a(f"s_add_u32 s98, s98, {L_X}")
    a(f"s_mul_i32 s99, s100, {6*KB}")
    prologue2(a, 1)
    LAX = OPT["lax"]
    def dmx(c):
        a(f"s_add_u32 s43, s{sM}, {c}")
        a("s_and_b32 s43, s43, 7")
        a("s_lshl_b32 s43, s43, 7")
        a("s_add_u32 s43, s43, s96")
        a(f"s_add_u32 m0, s98, {(c%NX)*8*KB}")
        a(f"s_add_u32 s42, s43, 8192")
        a(f"buffer_load_dwordx4 v{VXE}, {R(SX)}, s43 offen lds", f"x{c}")
        a(f"s_add_u32 m0, s98, {(c%NX)*8*KB + KB}")
        a(f"buffer_load_dwordx4 v{VXO}, {R(SX)}, s42 offen lds", f"x{c}")
    def dmw(c):
        a(f"s_add_u32 s43, s{sM}, {c}")
        a("s_and_b32 s43, s43, 7")
        a(f"s_mul_i32 s43, s43, {64*3072}")
        a(f"s_add_u32 m0, s99, {(c%4)*24*KB}")
        a(f"s_add_u32 s43, s43, s97")
        a(f"s_add_u32 s42, s43, {8*3072}")
        for pn in range(3): a(f"buffer_load_dwordx4 v{VW}, {R(SWQ)}, s43 offen offset:{pn*1024} lds", f"w{c}")
        a(f"s_add_u32 m0, s99, {(c%4)*24*KB + 3*KB}")
        for pn in range(3): a(f"buffer_load_dwordx4 v{VW}, {R(SWQ)}, s42 offen offset:{pn*1024} lds", f"w{c}")
    XO = OPT["xo"]
    if XO: dmx(0); dmw(0); dmx(1); dmw(1); dmx(2)
    else: dmx(0); dmw(0); dmx(1); dmx(2); dmw(1)
    for c in range(3, LAX): dmx(c)
    pm(a, "ai")
    prologue2(a, 2)
    a("v_and_b32 v9, 15, v1")
    a("v_bfe_u32 v10, v1, 1, 3")
    a("v_lshrrev_b32 v11, 4, v1")
    a("v_xor_b32 v10, v10, v11")
    a("v_lshlrev_b32 v10, 4, v10")
    a("v_lshl_add_u32 v10, v9, 7, v10")
    a(f"v_add_u32 v{VSX}, s98, v10")
    a(f"v_xor_b32 v{VSX+1}, 64, v{VSX}")
    for i in range(4): a(f"v_mov_b32 v{ONES+i}, 0x3f803f80")
    a("s_lshl_b32 s44, s100, 6")
    a(f"s_add_u32 s44, s44, {L_MFW}")
    a("v_lshl_add_u32 v3, v9, 2, s44")
    tag_ready(a)
    SCH = {0: [0], 1: [1, 2], 2: [3, 4], 3: [5], 4: [6], 5: [7]}
    if XO: SCH = {0: [0], 1: [1], 2: [2], 3: [3, 4], 4: [5], 5: [6], 6: [7]}
    SMF = [{0: [0], 1: [1], 2: [2, 3], 3: [4], 4: [5], 5: [6, 7]}, {3: [0, 1, 2], 4: [3, 4], 5: [5], 6: [6, 7]}, {0: [0], 3: [1, 2], 4: [3, 4], 5: [5, 6], 6: [7]}][OPT["sm"]]
    if OPT['xa'] & 2: SCH = {}
    for c in range(8):
        a.waitvm(f"w{c}")
        if c == 0: pm(a, "a0")
        else: pm(a, f"ac{c}")
        a("s_barrier")
        if c == 0: pm(a, "a1")
        def srd_(q, cc):
            a.waitvm(f"x{cc}")
            for j in range(2): a(f"ds_read_b128 {vr(XD+8*cc+4*j,4)}, v{VSX+j} offset:{(cc%NX)*8*KB}", f"sx{cc}")
        for q, cc in enumerate(SCH.get(c, [])):
            if cc <= c + 1 or not XO: srd_(q, cc)
        if c + LAX <= 7 and not OPT['xa'] & 8 and not XO: dmx(c+LAX)
        if c + 2 <= 7 and not OPT['xa'] & 8: dmw(c+2)
        if c + LAX <= 7 and not OPT['xa'] & 8 and XO:
            if c + LAX >= NX: a.waitlg(f"sx{c+LAX-NX}")
            dmx(c+LAX)
        if c == OPT["pc"] and OPT["stop"] > 1: prep_issue(a)
        if c == OPT["pt"] - 50: htouch(a)
        for q, cc in enumerate(SCH.get(c, [])):
            if cc > c + 1 and XO: srd_(q, cc)
        pm(a, f"h{c}a")
        for cc in SMF.get(c, []):
            for j in range(2):
                c0 = "0" if cc == 0 and j == 0 else None
                mfs(a, SUM, ONES, XD+8*cc+4*j, c0)
                mfs(a, GR, XD+8*cc+4*j, XD+8*cc+4*j, c0)
        if c == 6:
            for q in range(1, 4):
                a(f"s_mov_b32 exec_lo, {hex(0x00100001 << q)}\ns_mov_b32 exec_hi, {hex(0x10000100 << q)}")
                a(f"v_mov_b32 v{GR}, v{GR+q}")
            a("s_mov_b32 exec_lo, 0x00f0000f\ns_mov_b32 exec_hi, 0xf0000f00")
            a(f"v_mov_b32 v{U+6}, {fh(1/512)}")
            a(f"v_mul_f32 v{SUM}, {fh(-1/512)}, v{SUM}")
            a(f"v_mul_f32 v{U}, v{SUM}, v{SUM}")
            a(f"v_fma_f32 v{U}, v{GR}, v{U+6}, -v{U}")
            a(f"v_max_f32 v{U}, 0, v{U}")
            a(f"v_add_f32 v{U}, {fh(1e-5)}, v{U}")
            a(f"v_rsq_f32 v{U}, v{U}")
            a(f"v_and_b32 v{U+2}, 0xffff0000, v{SUM}")
            a(f"v_sub_f32 v{U+4}, v{SUM}, v{U+2}")
            a(f"v_cvt_pk_bf16_f32 v{U+2}, v{U+2}, v{U+4}")
            a(f"ds_write_b32 v3, v{U+2}")
            a(f"ds_write_b32 v3, v{U} offset:{L_RS-L_MFW}")
            exec_all(a)
            a.waitlg()
        pm(a, f"h{c}c")
    pm(a, "aq")
    if OPT["pt"] == 58: htouch(a)
    a("s_barrier")
    pm(a, "a2")
    if OPT["pt"] == 59: htouch(a)

def first_tiles(a):
    a(f"s_lshl_b32 s44, s{sP}, 8")
    a(f"s_add_u32 s44, s44, {WS_FQKV}")
    a("v_lshlrev_b32 v9, 2, v1")
    poll(a, lambda: a(f"buffer_load_dword v11, v9, {R(SWS)}, s44 offen sc1"), [11])
    pm(a, "a4")
    a(f"s_lshl_b32 s42, s{sHEAD}, 6")
    a(f"s_lshl_b32 s43, s{sCS}, 3")
    a("s_add_u32 s42, s42, s43")
    a("s_lshl_b32 s43, s3, 1")
    a("s_add_u32 s42, s42, s43")
    a("s_lshl_b32 s42, s42, 10")
    a(f"s_add_u32 s42, s42, {WS_Q}")
    a("s_lshl_b32 s43, s3, 11")
    a(f"s_add_u32 m0, s43, {L_STG}")
    a("s_lshl_b32 s43, s3, 12")
    SC = "" if OPT["nsc"] else " sc1"
    for o in (0, 1024): a(f"buffer_load_dwordx4 v2, {R(SWS)}, s42 offen offset:{o}{SC} lds", "kv0")
    a(f"s_lshl_b32 s42, s{sHEAD}, 17")
    a("s_add_u32 s42, s42, s43")
    a(f"s_add_u32 s42, s42, {WS_KV}")
    a("s_mov_b32 m0, s43")
    for o in range(4): a(f"buffer_load_dwordx4 v2, {R(SWS)}, s42 offen offset:{o*1024}{SC} lds", "kv0")

Q, SA, SB, O, KF, VF = 4, 8, 24, 40, 56, 64
IDX, VK, VV, VK2, VV2, VWR0, VWR1 = range(80, 87)
VST = 253
VCL = 91
OOB = 0x40000000
VP0, VP2, PA, PB, PCN, PF, FL, SENT = 156, 157, 158, 162, 166, 168, 192, 240
WO, W2, XRES, HB, VRES = 92, 156, 244, 248, 252

def attn_setup(a):
    a(f"s_lshl_b32 s{sTT}, s{sCS}, 3")
    a(f"s_add_u32 s{sTT}, s{sTT}, s3")
    a(f"s_lshr_b32 s{sTC}, s{sM}, 3")
    a(f"s_lshl_b32 s{sTC}, s{sTC}, 1")
    a(f"s_lshl_b32 s50, s{sG}, 3")
    a(f"s_add_u32 s{sTC}, s{sTC}, s50")
    a("s_and_b32 s50, s3, 1")
    a(f"s_add_u32 s{sTC}, s{sTC}, s50")
    a(f"v_mov_b32 v{IDX}, 0xdddddddd")
    a(f"v_mov_b32 v{VK}, v2")
    a(f"v_add_u32 v{VK2}, 0x10000, v2")
    a(f"v_and_b32 v{VV}, 15, v1")
    a(f"v_lshlrev_b32 v{VV}, 4, v{VV}")
    a(f"v_lshrrev_b32 v{VV2}, 5, v1")
    a(f"v_lshl_add_u32 v{VV}, v{VV2}, 8, v{VV}")
    a(f"v_add_u32 v{VV}, 1024, v{VV}")
    a(f"v_and_b32 v{VRES}, 31, v1")
    a(f"v_lshlrev_b32 v90, 2, v{VRES}")
    a(f"v_lshlrev_b32 v{VRES}, 10, v{VRES}")
    a(f"v_lshl_add_u32 v{VRES}, v{VV2}, 4, v{VRES}")
    a(f"v_add_u32 v{VV2}, 0x10000, v{VV}")
    a(f"s_lshl_b32 s{sRES}, s{sTC}, 15")
    a(f"s_lshl_b32 s50, s{sCS}, 7")
    a(f"s_add_u32 s{sRES}, s{sRES}, s50")
    a("s_lshr_b32 s50, s3, 1")
    a("s_lshl_b32 s50, s50, 5")
    a(f"s_add_u32 s{sRES}, s{sRES}, s50")
    a("s_bfe_u32 s50, s3, 0x10001")
    a("s_lshl_b32 s50, s50, 8")
    a("s_lshr_b32 s51, s3, 2")
    a("s_lshl_b32 s51, s51, 10")
    a("s_or_b32 s50, s50, s51")
    a(f"v_xor_b32 v{VWR0}, s50, v2")
    a(f"v_xor_b32 v{VWR1}, 1024, v{VWR0}")
    a("s_lshl_b32 s50, s3, 10")
    a(f"s_add_u32 s50, s50, {L_STG}")
    a(f"v_add_u32 v{VST}, s50, v2")
    a("s_lshr_b32 s51, s3, 1")
    a("s_lshl_b32 s51, s51, 14")
    a(f"s_lshl_b32 s50, s{sCS}, 16")
    a("s_add_u32 s51, s51, s50")
    a(f"s_add_u32 s51, s51, {WS_WTO}")
    a(f"s_mul_i32 s52, s3, {22*KB}")
    a(f"s_mul_i32 s50, s{sCS}, {176*KB}")
    a("s_add_u32 s52, s52, s50")
    a(f"s_add_u32 s52, s52, {WS_WT2}")
    a(f"s_mul_i32 s54, s3, {6*KB}")
    a(f"s_mul_i32 s53, s{sM}, {96*KB}")
    a("s_add_u32 s53, s53, s54")
    a(f"s_add_u32 s53, s53, {WS_WT13}")
    a(f"s_cmp_ge_u32 s{sM}, 29")
    a(f"s_cselect_b32 s53, {OOB}, s53")
    a("s_mov_b32 s48, 0x0000ffff\ns_mov_b32 s49, 0x0000ffff")
    a(f"s_lshl_b32 s50, s{sG}, 7")
    a(f"s_add_u32 s50, s50, {WS_CLR}")
    a(f"v_add_u32 v{VCL}, s50, v90")
    a("v_and_b32 v87, 7, v1")
    a("v_lshlrev_b32 v87, 7, v87")
    a("v_bfe_u32 v88, v1, 3, 2")
    a("v_lshl_add_u32 v87, v88, 5, v87")
    a(f"s_lshl_b32 s50, s{sG}, 2")
    a(f"s_add_u32 s50, s50, {WS_CLR}")
    a("s_mov_b32 exec_lo, 0")
    a(f"v_add_u32 v{VCL}, s50, v87")
    exec_all(a)
    a(f"s_lshl_b32 s55, s{sHEAD}, 17")
    a(f"s_add_u32 s55, s55, {WS_KV}")
    a(f"s_mul_i32 s47, s3, {6*KB}")
    a(f"s_add_u32 s47, s47, {16*KB}")
    a("s_lshl_b32 s46, s3, 13")
    a(f"s_add_u32 s46, s46, {64*KB}")

def w2lane(a, vp, t):
    a(f"v_lshrrev_b32 v{vp}, 3, v1")
    a(f"v_and_b32 v{t}, 7, v1")
    a(f"v_lshlrev_b32 v{t}, 4, v{t}")
    a(f"v_lshl_add_u32 v{vp}, v{vp}, 10, v{t}")
def w2rd(a, pa, stage):
    tr_addr(a, pa, pa+1, row_shift=7, cg_mul=32)
    a(f"v_add_u32 v{pa}, s{stage}, v{pa}")
    a(f"v_add_u32 v{pa+1}, 512, v{pa}")
    a(f"v_add_u32 v{pa+2}, 64, v{pa}")
    a(f"v_add_u32 v{pa+3}, {512+64}, v{pa}")

def prep_issue(a):
    l2, ld, l3 = a.label("pw2"), a.label("pdn"), a.label("nor2")
    V0, V2, VT = 156, 157, 158
    a("s_lshl_b32 s45, s100, 12")
    a(f"s_add_u32 s45, s45, {L_PR1}")
    a("s_cmp_ge_u32 s2, 176")
    a(f"s_cbranch_scc1 {l2}")
    a(f"v_lshrrev_b32 v{V0}, 2, v1")
    a(f"v_mul_u32_u24 v{V0}, 2752, v{V0}")
    a(f"v_and_b32 v{VT}, 3, v1")
    a(f"v_lshl_add_u32 v{V0}, v{VT}, 4, v{V0}")
    a("s_lshr_b32 s43, s2, 4")
    a("s_lshl_b32 s43, s43, 2")
    a("s_add_u32 s43, s43, s100")
    a("s_and_b32 s42, s2, 15")
    a(f"s_mul_i32 s46, s42, {32*2752}")
    a("s_lshl_b32 s47, s43, 6")
    a("s_add_u32 s46, s46, s47")
    a("s_mov_b32 s47, s46")
    a(f"s_add_u32 s48, s46, {16*2752}\ns_add_u32 s49, s46, {16*2752}")
    a(f"s_branch {ld}")
    a(f"{l2}:")
    w2lane(a, V0, VT)
    for q in range(3): a(f"s_mov_b32 s{SW1+q}, s{SW2+q}\ns_mov_b32 s{SW3+q}, s{SW2+q}")
    a("s_sub_u32 s43, s2, 176")
    a("s_lshl_b32 s46, s43, 14")
    a("s_lshl_b32 s47, s100, 8")
    a("s_add_u32 s46, s46, s47")
    a("s_add_u32 s47, s46, 8192")
    a("s_add_u32 s48, s46, 128\ns_add_u32 s49, s47, 128")
    a(f"{ld}:")
    for q in range(4):
        a(f"s_add_u32 m0, s45, {q*KB}")
        a(f"buffer_load_dwordx4 v{V0}, {R(SW3 if q & 1 else SW1)}, s{46+q} offen lds", "prep")
    a("s_lshl_b32 s47, s100, 8")
    a("s_add_u32 s47, s47, s2")
    a("s_cmp_ge_u32 s47, 320")
    a(f"s_cbranch_scc1 {l3}")
    w2lane(a, V2, VT)
    a("s_cmp_eq_u32 s100, 0")
    for q in range(3): a(f"s_cselect_b32 s{SWO+q}, s{SWO+q}, s{SW2+q}")
    a("s_cselect_b32 s46, 0, 80")
    a(f"s_add_u32 s46, s46, s{sM}")
    a("s_lshl_b32 s46, s46, 14")
    a(f"s_lshl_b32 s47, s{sG}, 7")
    a("s_add_u32 s46, s46, s47")
    a("s_add_u32 s47, s46, 8192")
    a("s_lshl_b32 s45, s100, 11")
    a(f"s_add_u32 m0, s45, {L_PR2}")
    a(f"buffer_load_dwordx4 v{V2}, {R(SWO)}, s46 offen lds", "prep")
    a(f"s_add_u32 m0, s45, {L_PR2+KB}")
    a(f"buffer_load_dwordx4 v{V2}, {R(SWO)}, s47 offen lds", "prep")
    a(f"{l3}:")

def prep_addr(a):
    l2, ld = a.label("pa2"), a.label("pad")
    a("s_and_b32 s42, s100, 1")
    a("s_lshl_b32 s42, s42, 11")
    a(f"s_add_u32 s42, s42, {L_PR2}")
    w2rd(a, PB, 42)
    a("s_cmp_eq_u32 s100, 0")
    a("s_cselect_b32 s42, 0, 80")
    a(f"s_mov_b32 s43, {176*KB}\ns_mov_b32 s31, {WS_WT2}")
    a(f"s_cselect_b32 s43, {64*KB}, s43")
    a(f"s_cselect_b32 s31, {WS_WTO}, s31")
    a(f"s_add_u32 s42, s42, s{sM}")
    a(f"s_mul_i32 s43, s43, s{sG}")
    a("s_add_u32 s31, s31, s43")
    a("s_lshl_b32 s43, s42, 11")
    a("s_add_u32 s31, s31, s43")
    a("s_lshl_b32 s43, s100, 8")
    a("s_add_u32 s43, s43, s2")
    a("s_cmp_ge_u32 s43, 320")
    a(f"s_cselect_b32 s31, {OOB}, s31")
    a(f"v_mov_b32 v{PCN}, {L_CNT}\nv_mov_b32 v{PCN+1}, 1")
    a("s_lshl_b32 s45, s100, 12")
    a(f"s_add_u32 s45, s45, {L_PR1}")
    a("s_cmp_ge_u32 s2, 176")
    a(f"s_cbranch_scc1 {l2}")
    tr_addr(a, PA, PA+1, row_shift=6, cg_mul=1024)
    a(f"v_add_u32 v{PA}, s45, v{PA}")
    a(f"v_add_u32 v{PA+1}, 256, v{PA}")
    a(f"v_add_u32 v{PA+2}, 2048, v{PA}")
    a(f"v_add_u32 v{PA+3}, {2048+256}, v{PA}")
    a("s_mov_b32 s30, 32")
    a("s_lshr_b32 s43, s2, 4")
    a("s_lshl_b32 s43, s43, 2")
    a("s_add_u32 s43, s43, s100")
    a("s_lshl_b32 s43, s43, 1")
    a("s_and_b32 s42, s2, 15")
    a(f"s_mul_i32 s42, s42, {6*KB}")
    a(f"s_add_u32 s42, s42, {WS_WT13}")
    for u in range(2):
        d = 8 + 2*u
        a(f"s_mul_i32 s{d}, s43, 43691\ns_lshr_b32 s{d}, s{d}, 17")
        a(f"s_mul_i32 s{d}, s{d}, {93*KB}")
        a(f"s_lshl_b32 s{d+1}, s43, 10")
        a(f"s_add_u32 s{d}, s{d}, s{d+1}\ns_add_u32 s{d}, s{d}, s42")
        a(f"s_add_u32 s{d+1}, s{d}, {3*KB}")
        if u == 0: a("s_add_u32 s43, s43, 1")
    a(f"s_branch {ld}")
    a(f"{l2}:")
    w2rd(a, PA, 45)
    a(f"s_mov_b32 s30, {2*KB}")
    a("s_sub_u32 s43, s2, 176")
    a("s_lshl_b32 s8, s43, 11")
    a(f"s_mul_i32 s9, s100, {352*KB}")
    a("s_add_u32 s8, s8, s9")
    a(f"s_add_u32 s8, s8, {WS_WT2}")
    a(f"s_add_u32 s9, s8, {KB}")
    a(f"s_add_u32 s10, s8, {176*KB}\ns_add_u32 s11, s9, {176*KB}")
    a(f"{ld}:")

def prep_rd(a):
    a.waitvm("prep")
    for u in range(2):
        for q in range(4):
            if u: a(f"v_add_u32 v{PA+q}, s30, v{PA+q}")
            a(f"ds_read_b64_tr_b16 {vr(PF+8*u+2*q,2)}, v{PA+q}")
    for q in range(4): a(f"ds_read_b64_tr_b16 {vr(PF+16+2*q,2)}, v{PB+q}")

def prep_st(a, e):
    if e < 4: a(f"buffer_store_dwordx4 {vr(PF+4*e,4)}, v2, {R(SWS)}, s{8+e} offen sc1", "pst")
    else: a(f"buffer_store_dwordx4 {vr(PF+4*e,4)}, v2, {R(SWS)}, s31 offen offset:{(e-4)*KB} sc1", "pst")

def slot_O(a, d):
    a(f"s_lshl_b32 s{d}, s{sTT}, 5")
    a(f"s_add_u32 s{d}, s{d}, s{sHEAD}")
    a(f"s_lshl_b32 s{d}, s{d}, 10")
    a(f"s_add_u32 s{d}, s{d}, {WS_O}")
def slot_H(a, d, t):
    a(f"s_lshl_b32 s{d}, s{sTC}, 3")
    a(f"s_add_u32 s{d}, s{d}, s{sCS}")
    a(f"s_lshl_b32 s{d}, s{d}, 2")
    a(f"s_lshr_b32 s{t}, s3, 1")
    a(f"s_add_u32 s{d}, s{d}, s{t}")
    a(f"s_lshl_b32 s{d}, s{d}, 10")
    a(f"s_add_u32 s{d}, s{d}, {WS_H}")
def d_tile(a, d, t):
    a(f"s_lshl_b32 s{d}, s{sG}, 2")
    a(f"s_and_b32 s{t}, s3, 3")
    a(f"s_add_u32 s{d}, s{d}, s{t}")
    a(f"s_lshl_b32 s{d}, s{d}, 1")
    a(f"s_lshr_b32 s{t}, s3, 2")
    a(f"s_add_u32 s{d}, s{d}, s{t}")
def slot_A(a, d, t):
    d_tile(a, d, t)
    a(f"s_mul_i32 s{d}, s{d}, 86")
    a(f"s_mul_i32 s{t}, s{sM}, 3")
    a(f"s_add_u32 s{d}, s{d}, s{t}")
    a(f"s_lshl_b32 s{d}, s{d}, 10")
    a(f"s_add_u32 s{d}, s{d}, {WS_ACT}")
    a(f"s_cmp_ge_u32 s{sM}, 29")
    a(f"s_cselect_b32 s{d}, {OOB}, s{d}")
    a(f"s_cmp_ge_u32 s{sM}, 28")
    a(f"s_cselect_b32 s{t}, {OOB}, s{d}")
def nosent(a, d):
    for q in range(4): a(f"v_min_u32 v{d+q}, -2, v{d+q}")
def maxacc(a, m, d, first=False):
    if first:
        a(f"v_max3_u32 v{m}, v{d}, v{d+1}, v{d+2}")
        a(f"v_max_u32 v{m}, v{m}, v{d+3}")
    else:
        a(f"v_max3_u32 v{m}, v{m}, v{d}, v{d+1}")
        a(f"v_max3_u32 v{m}, v{m}, v{d+2}, v{d+3}")

def attn_setup2(a):
    for i in range(16): a(f"v_mov_b32 v{VF+i}, 0")
    for i in range(16): a(f"v_mov_b32 v{O+i}, 0")
    for q in range(4): a(f"v_mov_b32 v{SENT+q}, -1")
    a("s_mov_b32 exec_lo, 0x00110000\ns_mov_b32 exec_hi, 0x00110000")
    for i in range(16): a(f"v_mov_b32 v{VF+i}, 0x3f803f80")
    exec_all(a)

def wreg(f): return WO + 4*f

def attn_loop(a, older):
    NT = 64
    TW = OPT["tw"]
    JOBS = {}
    def put(h, job):
        while h in JOBS: h += 1
        JOBS[h] = job
        return h
    def spread(jobs, t0, t1):
        n = len(jobs)
        return [put(2*t0 + (i*2*(t1-t0))//n, j) for i, j in enumerate(jobs)]
    TC, TC1, WE = OPT["tc"], OPT["tc1"], OPT["we"]
    if OPT["tp"] >= 0:
        hs = [put(2*OPT["tp"] + 1 + OPT["tss"]*e, ("s", e)) for e in range(6)]
        assert hs[-1] < 2*OPT["tf"]
    spread([("d", 0, u) for u in range(6)], max(24, TW), OPT["da"])
    spread([("d", 1, u) for u in range(6)], 48, OPT["db"])
    hc = spread([("c", j) for j in range(5)], TC, TC1)
    nl = OPT["wl"]
    hw = spread([("w", f) for f in range(38-nl)], TW, WE) + spread([("w", f) for f in range(38-nl, 38)], 48, 60)
    assert hw == sorted(hw) and hw[16] > 2*max(TW, OPT["tf"]+1) + 1 and hw[37] > hc[-1] and hw[37] < 124 and hc[-1] < 92
    def rdK(t): a(f"ds_read_b128 {vr(KF+4*(t&1),4)}, v{VK if t < 32 else VK2} offset:{(t%32)*2048}")
    def rdV(t):
        a("s_mov_b64 exec, s[48:49]")
        for jj in range(2): a(f"ds_read_b128 {vr(VF+8*(t&1)+4*jj,4)}, v{VV if t < 32 else VV2} offset:{(t%32)*2048+512*jj}")
        exec_all(a)
    def qk(t): mfma(a, SB if t & 1 else SA, KF+4*(t&1), Q, "0")
    def pv(t, jj):
        S = SB if t & 1 else SA
        a(f"v_smfmac_f32_32x32x32_bf16 {vr(O,16)}, {vr(VF+8*(t&1)+4*jj,4)}, {vr(S+8*jj,8)}, v{IDX}")
    def wload(f):
        sn = 51 if f < 16 else 52
        a(f"buffer_load_dwordx4 {vr(wreg(f),4)}, v{VWR1 if f & 1 else VWR0}, {R(SWS)}, s{sn} offen offset:{(f&2)*1024}")
        if f & 3 == 3: a(f"s_add_u32 s{sn}, s{sn}, 4096")
    def kvp(stage, u):
        if u % 4 == 0:
            a(f"s_add_u32 m0, s{47 if stage == 1 else 46}, {u*KB}")
            a(f"s_add_u32 s45, s55, m0")
        else: a("s_sub_u32 m0, s45, s55")
        a(f"buffer_load_dwordx4 v2, {R(SWS)}, s45 offen offset:{(u%4)*KB} sc1 lds", f"kv{stage}")
    def w13(hf, u):
        if u % 4 == 0:
            a(f"s_add_u32 m0, s54, {hf*48*KB + u*KB}")
            a(f"s_add_u32 s50, s53, {hf*48*KB + u*KB}")
        a(f"buffer_load_dwordx4 v2, {R(SWS)}, s50 offen offset:{(u%4)*KB} lds")
    def tch(v, so, n):
        a(f"v_lshlrev_b32 v{v}, 7, v1")
        a(f"s_mov_b64 exec, {hex((1 << n) - 1)}")
        a(f"buffer_load_dword v{v}, v{v}, {R(SWS)}, s{so} offen sc1")
        exec_all(a)
    def clr(j):
        sv = vr(SENT, 4)
        if j == 0:
            slot_O(a, 42)
            a(f"buffer_store_dwordx4 {sv}, v2, {R(SWS)}, s42 offen sc1", "clr")
        elif j == 1:
            slot_H(a, 43, 44)
            if OPT["ta"] & 1: tch(87, 43, 8)
            flavored(a, [f"buffer_store_dwordx4 {sv}, v2, {R(SWS)}, s43 offen"], "clr")
        else:
            slot_A(a, 42, 43)
            if OPT["ta"] & 2 and j == 2: tch(88, 42, 24)
            flavored(a, [f"buffer_store_dwordx4 {sv}, v2, {R(SWS)}, s{43 if j == 4 else 42} offen offset:{(j-2)*KB}"], "clr")
    def job(h):
        if h not in JOBS: return
        j = JOBS[h]; sj = OPT["sj"]
        if j[0] == "w" and sj & 1: wload(j[1])
        if j[0] == "d" and sj & 2: w13(j[1], j[2])
        if j[0] == "c" and sj & 4: clr(j[1])
        if j[0] == "s" and not older: prep_st(a, j[1])
    def side(t):
        sv = vr(SENT, 4)
        if t == TC - 3:
            a(f"s_lshl_b32 s44, s{sG}, 7")
            a(f"s_add_u32 s44, s44, {WS_IDS}")
            a(f"buffer_load_dword v89, v90, {R(SWS)}, s44 offen sc1")
        if t == TC: ids_check(a, 89)
        if t == 48 and older:
            a(f"v_mov_b32 v89, s{sID}")
            a(f"s_lshl_b32 s43, s{sG}, 5")
            a(f"s_add_u32 s43, s43, s{sM}")
            a("s_lshl_b32 s43, s43, 2")
            a(f"s_add_u32 s43, s43, {WS_CLR}")
            a("s_cmp_eq_u32 s3, 0")
            a(f"s_cselect_b32 s43, s43, {OOB}")
            a("s_mov_b64 exec, 1")
            a(f"buffer_store_dword v89, off, {R(SWS)}, s43 sc1")
            exec_all(a)
        if t == OPT['tp'] and not older: prep_rd(a)
        if t == TF and not older:
            a.waitvm("pst")
            a("s_mov_b64 exec, 1")
            a(f"ds_add_rtn_u32 v{PCN+1}, v{PCN}, v{PCN+1}")
            exec_all(a)
        if t == TF + 1 and not older:
            a(f"v_readfirstlane_b32 s42, v{PCN+1}")
            a(f"v_mov_b32 v{PCN}, s{sT}")
            a(f"s_lshl_b32 s43, s{sG}, 5")
            a(f"s_add_u32 s43, s43, s{sM}")
            a("s_lshl_b32 s43, s43, 2")
            a(f"s_add_u32 s43, s43, {WS_FW}")
            a("s_cmp_eq_u32 s42, 3")
            a(f"s_cselect_b32 s43, s43, {OOB}")
            a("s_mov_b64 exec, 1")
            a(f"buffer_store_dword v{PCN}, off, {R(SWS)}, s43 sc1")
            exec_all(a)
        if t == TW - 3 and not older:
            a("s_cmp_eq_u32 s3, 7")
            a(f"s_cselect_b32 s101, {WS_FW}, {OOB}")
            ldfl()
    def ldfl(): a(f"buffer_load_dwordx4 {vr(FL,4)}, v2, {R(SWS)}, s101 offen sc1")
    def chkfl():
        lab = a.label("nofl")
        a.waitvm()
        a("s_cmp_lg_u32 s3, 7")
        a(f"s_cbranch_scc1 {lab}")
        poll(a, ldfl, [FL, FL+1, FL+2, FL+3], first_issued=True)
        a(f"{lab}:")
    TF = OPT["tf"]
    def ldclr(): a(f"buffer_load_dword v89, v{VCL}, {R(SWS)}, 0 offen sc1")
    if older: a.waitvm("kv0")
    pm(a, "bw")
    a("s_barrier")
    pm(a, "b0")
    a(f"ds_read_b128 {vr(Q,4)}, v{VST}")
    rdK(0); rdK(1); rdV(0)
    qk(0)
    if not older: a("s_setprio 1")
    for t in range(NT):
        S = SB if t & 1 else SA
        def ex(lo, hi):
            for r in range(lo, hi): a(f"v_exp_f32 v{S+r}, v{S+r}")
        if older:
            if t % 4 == 0: a("s_setprio 2")
            if t % 4 == 3: a("s_setprio 0")
        pm(a, f"bt{t}")
        if t == 6: a.waitvm("kv1")
        if t == 24: a.waitvm("kv2")
        if t == 48: a.waitvm("clr")
        if t == TW and not older: chkfl()
        if t in (6, 24, 48, TW): a("s_barrier")
        pm(a, f"bu{t}")
        ex(0, 2)
        if t > 0: pv(t-1, 1)
        sj = OPT["sj"]
        if t < 3: kvp(1, 2*t); kvp(1, 2*t+1)
        if 3 <= t < 11: kvp(2, t-3)
        side(t)
        job(2*t)
        if t == 56: a(f"buffer_load_dwordx4 {vr(XRES,4)}, v{VRES}, {R(SX)}, s{sRES} offen")
        if t == 58: ldclr()
        ex(2, 7)
        if t + 1 < NT: qk(t+1)
        if t + 2 < NT: rdK(t+2)
        ex(7, 12)
        pv(t, 0)
        if t + 1 < NT: rdV(t+1)
        job(2*t+1)
        ex(12, 16)
    pv(NT-1, 1)
    a("s_setprio 0")
    a("s_waitcnt vmcnt(0) lgkmcnt(0)")
    lp, dn, ck = a.label("cpoll"), a.label("cdone"), a.label("cchk")
    a(f"s_mov_b32 s{sCNT}, {1 << OPT['pl']}")
    a(f"s_branch {ck}")
    a(f"{lp}:")
    ldclr()
    a("s_waitcnt vmcnt(0)")
    a(f"{ck}:")
    a(f"v_xor_b32 v88, s{sID}, v89")
    a("v_lshlrev_b32 v87, 4, v88")
    a("v_cmp_ne_u32 vcc, 0, v87")
    a(f"s_cbranch_vccz {dn}")
    a(f"s_sub_u32 s{sCNT}, s{sCNT}, 1")
    a(f"s_cbranch_scc0 {lp}")
    a(f"{dn}:")
    a("v_cmp_ne_u32 vcc, 0, v88")
    a("s_cmp_eq_u32 vcc_lo, 0")
    a(f"s_cselect_b32 s{sFAST}, 1, 0")
    a("s_nop 15\ns_nop 3")

def attn_finish(a):
    pm(a, "b9")
    a("v_mov_b32 v3, 0")
    for r in range(8): a(f"v_fma_f32 v3, v{O+r}, 0, v3")
    a("v_cmp_u_f32 vcc, v3, v3")
    a(f"v_mov_b32 v3, {fh(2.0**-64)}")
    a(f"v_cmp_nle_f32 s[42:43], v3, v{O+8}")
    a(f"v_mov_b32 v3, {fh(2.0**64)}")
    a(f"v_cmp_nge_f32 s[44:45], v3, v{O+8}")
    a("s_or_b64 vcc, vcc, s[42:43]")
    a("s_or_b64 vcc, vcc, s[44:45]")
    a("s_cbranch_scc1 L_fallback")
    a("L_attn_fin:")
    a(f"v_rcp_f32 v3, v{O+8}")
    slot_O(a, 42)
    for r in range(8): a(f"v_mul_f32 v{O+r}, v{O+r}, v3")
    pack8(a, KF, O)
    nosent(a, KF)
    a(f"buffer_store_dwordx4 {vr(KF,4)}, v2, {R(SWS)}, s42 offen sc1")

def fallback(a):
    a("L_fallback:")
    a(f"s_lshl_b32 s42, s{sHEAD}, 17")
    a(f"s_add_u32 s42, s42, {WS_KV}")
    a("s_mov_b32 s43, s42")
    a("v_mov_b32 v3, 0xff800000")
    a("s_mov_b32 s44, 64")
    a("L_fb_max:")
    a(f"buffer_load_dwordx4 {vr(KF,4)}, v2, {R(SWS)}, s43 offen sc1")
    a("s_add_u32 s43, s43, 2048")
    mfma(a, SA, KF, Q, "0")
    for r in range(0, 16, 2): a(f"v_max3_f32 v3, v3, v{SA+r}, v{SA+r+1}")
    a("s_sub_u32 s44, s44, 1")
    a("s_cmp_lg_u32 s44, 0")
    a("s_cbranch_scc1 L_fb_max")
    a(f"v_mov_b32 v{SB}, v3")
    a(f"v_permlane32_swap_b32 v{SB}, v3")
    a(f"v_max_f32 v3, v3, v{SB}")
    for r in range(16):
        a(f"v_sub_f32 v{SB+r}, 0, v3")
        a(f"v_mov_b32 v{O+r}, 0")
    a("s_mov_b32 s44, 64")
    a("L_fb_pv:")
    a(f"buffer_load_dwordx4 {vr(KF,4)}, v2, {R(SWS)}, s42 offen sc1")
    a("s_mov_b64 exec, s[48:49]")
    for jj in range(2): a(f"buffer_load_dwordx4 {vr(VF+4*jj,4)}, v{VV}, {R(SWS)}, s42 offen offset:{512*jj} sc1")
    exec_all(a)
    a("s_add_u32 s42, s42, 2048")
    mfma(a, SA, KF, Q, vr(SB, 16))
    for r in range(16): a(f"v_exp_f32 v{SA+r}, v{SA+r}")
    for jj in range(2): a(f"v_smfmac_f32_32x32x32_bf16 {vr(O,16)}, {vr(VF+4*jj,4)}, {vr(SA+8*jj,8)}, v{IDX}")
    a("s_nop 15\ns_nop 3")
    a("s_sub_u32 s44, s44, 1")
    a("s_cmp_lg_u32 s44, 0")
    a("s_cbranch_scc1 L_fb_pv")
    a("s_branch L_attn_fin")

VA2 = 254
def spoll(a, load, regs, m, first_issued=False):
    lp, dn, ck = a.label("spoll"), a.label("sdone"), a.label("schk")
    a(f"s_mov_b32 s{sCNT}, {1 << OPT['pl']}")
    if first_issued: a(f"s_branch {ck}")
    a(f"{lp}:")
    load()
    a("s_waitcnt vmcnt(0)")
    if first_issued: a(f"{ck}:")
    if m is None: m = regs[0]
    else:
        for q, d in enumerate(regs): maxacc(a, m, d, q == 0)
    a(f"v_cmp_eq_u32 vcc, -1, v{m}")
    a(f"s_cbranch_vccz {dn}")
    a(f"s_sub_u32 s{sCNT}, s{sCNT}, 1")
    a(f"s_cbranch_scc0 {lp}")
    a(f"{dn}:")

def phaseC(a):
    a("s_lshr_b32 s46, s3, 1")
    a(f"s_lshl_b32 s45, s{sTC}, 5")
    a("s_lshl_b32 s44, s46, 3")
    a("s_add_u32 s45, s45, s44")
    a("s_lshl_b32 s45, s45, 10")
    a(f"s_add_u32 s45, s45, {WS_O}")
    a("s_add_u32 s47, s45, 4096")
    def ldO():
        for kk in range(8): a(f"buffer_load_dwordx4 {vr(4+4*kk,4)}, v2, {R(SWS)}, s{45 if kk < 4 else 47} offen offset:{(kk&3)*1024} sc1")
    pm(a, "c0")
    if OPT["oe"]: ldO()
    a(f"v_add_u32 v{VA2}, {48*KB}, v2")
    a(f"s_mul_i32 s44, s3, {12*KB}")
    a(f"v_add_u32 v88, s44, v2")
    a("v_lshrrev_b32 v3, 2, v1")
    a("v_xor_b32 v3, v3, v1")
    a("v_bfe_u32 v3, v3, 2, 1")
    a("v_add_u32 v3, -1, v3")
    for q in range(4): a(f"v_and_b32 v{84+q}, 0x3f803f80, v3")
    a(f"v_add_u32 v91, {L_CS13}, v90")
    a("s_barrier")
    pm(a, "c0b")
    for hf in range(2):
        for q in range(6): a(f"ds_read_b128 {vr(36+4*q,4)}, v88 offset:{(6*hf+q)*KB}")
        for q in range(6): mfs(a, 60+4*(q%3), 84, 36+4*q, "0" if hf == 0 and q < 3 else None)
    exec_lo32(a)
    for j in range(3): a(f"ds_add_f32 v91, v{60+4*j} offset:{128*j}")
    exec_all(a)
    if OPT["cpr"]:
        a("v_lshlrev_b32 v89, 10, v1\nv_mov_b32 v3, 0")
        def prO():
            a("s_mov_b64 exec, 0xff")
            a(f"buffer_load_dword v3, v89, {R(SWS)}, s45 offen offset:1020 sc1")
            exec_all(a)
        spoll(a, prO, [3], None)
    spoll(a, ldO, [4+4*kk for kk in range(8)], 3, first_issued=OPT["oe"])
    pm(a, "c1")
    for s in range(1, 4):
        a(f"s_xor_b32 s44, s3, {2*s}")
        a(f"s_mul_i32 s44, s44, {6*KB}")
        a(f"s_add_u32 s44, s44, {L_REDC + (s-1)*2*KB}")
        a(f"v_add_u32 v{84+s}, s44, v2")
    a(f"s_mul_i32 s44, s3, {6*KB}")
    a(f"s_add_u32 s44, s44, {L_REDC}")
    a("v_add_u32 v84, s44, v2")
    def wrc(s, e): a(f"ds_write_b128 v{84+s}, {vr(36+8*s+4*e,4)} offset:{1024*e}")
    if OPT["cj"]:
        for tj in (1, 0):
            for kk in range(8):
                mfma(a, 36+16*tj, WO+4*(2*kk+tj), 4+4*kk, "0" if kk == 0 else None)
                if tj == 0 and 2 <= kk < 6: wrc(2 + ((kk-2) >> 1), kk & 1)
        wrc(1, 0); wrc(1, 1)
    else:
        for kk in range(8):
            for tj in range(2): mfma(a, 36+16*tj, WO+4*(2*kk+tj), 4+4*kk, "0" if kk == 0 else None)
        for s in (1, 2, 3): wrc(s, 0); wrc(s, 1)
    for j in range(4):
        a(f"v_lshlrev_b32 v{4+2*j}, 16, v{XRES+j}")
        a(f"v_and_b32 v{5+2*j}, 0xffff0000, v{XRES+j}")
    for r in range(8): a(f"v_add_f32 v{36+r}, v{36+r}, v{4+r}")
    a.waitlg()
    a("s_barrier")
    for s in range(3):
        a(f"ds_read_b128 {vr(44+8*s,4)}, v84 offset:{s*2048}")
        a(f"ds_read_b128 {vr(48+8*s,4)}, v84 offset:{s*2048+1024}")
    slot_H(a, 44, 45)
    for s in range(3):
        for r in range(8): a(f"v_add_f32 v{36+r}, v{36+r}, v{44+8*s+r}")
    pack8(a, HB, 36)
    nosent(a, HB)
    flavored(a, [f"buffer_store_dwordx4 {vr(HB,4)}, v2, {R(SWS)}, s44 offen"])
    a("v_add_f32 v4, v36, v37\nv_mul_f32 v5, v36, v36\nv_fmac_f32 v5, v37, v37")
    for r in range(2, 8):
        a(f"v_add_f32 v4, v4, v{36+r}")
        a(f"v_fmac_f32 v5, v{36+r}, v{36+r}")
    a("v_mov_b32 v6, v4\nv_mov_b32 v7, v5")
    a("v_permlane32_swap_b32 v6, v4\nv_permlane32_swap_b32 v7, v5")
    a("v_add_f32 v4, v4, v6\nv_add_f32 v5, v5, v7")
    a("s_and_b32 s44, s3, 1")
    a("s_lshl_b32 s44, s44, 8")
    a(f"s_add_u32 s44, s44, {L_ST2}")
    a("v_lshl_add_u32 v6, v90, 1, s44")
    exec_lo32(a)
    a("ds_add_f32 v6, v4\nds_add_f32 v6, v5 offset:4")
    exec_all(a)
    a(f"v_mov_b32 v{VST}, v91")
    pm(a, "c2")
    a.waitlg()
    a("s_barrier")
    lab = a.label("nost")
    a("s_cmp_ge_u32 s3, 2")
    a(f"s_cbranch_scc1 {lab}")
    a("ds_read_b64 v[4:5], v6")
    a(f"s_lshl_b32 s44, s{sTC}, 3")
    a(f"s_add_u32 s44, s44, s{sCS}")
    a("s_lshl_b32 s44, s44, 9")
    a(f"s_add_u32 s44, s44, {WS_ST2}")
    a(f"v_mov_b32 v13, s{sT}\nv_mov_b32 v15, s{sT}")
    a("v_lshlrev_b32 v7, 2, v90")
    a("v_mov_b32 v12, v4\nv_mov_b32 v14, v5")
    exec_lo32(a)
    flavored(a, [f"buffer_store_dwordx4 v[12:15], v7, {R(SWS)}, s44 offen"])
    exec_all(a)
    a(f"{lab}:")
    a("@forget")

def bump(a):
    lab2 = a.label("nobump")
    a("s_or_b32 s44, s2, s3")
    a("s_cmp_lg_u32 s44, 0")
    a(f"s_cbranch_scc1 {lab2}")
    a("v_mov_b32 v3, s63")
    a("s_mov_b64 exec, 1")
    a(f"buffer_store_dword v3, off, {R(SWS)}, 0 sc1")
    a("s_waitcnt vmcnt(0)")
    a(f"{lab2}:")

def phaseD(a):
    ACC, WF, HR, CSF, STL, MF, C1, IR, MX = 4, 52, 76, 124, 136, 152, 244, 245, 246
    NR = 12
    WB = [WF, WF+12, CSF]
    def passed():
        a(f"v_mov_b32 v3, {L_CN2}\nv_mov_b32 v{MX}, 1")
        a("s_mov_b64 exec, 1")
        a(f"ds_add_u32 v3, v{MX}")
        exec_all(a)
    lab = a.label("dgo")
    a(f"s_cmp_lt_u32 s{sM}, 29")
    a(f"s_cbranch_scc1 {lab}")
    passed()
    a("s_branch L_djoin")
    a(f"{lab}:")
    d_tile(a, 46, 44)
    a("s_lshl_b32 s44, s46, 15")
    a(f"s_add_u32 s44, s44, {WS_H}")
    a("s_lshl_b32 s47, s46, 12")
    a(f"s_add_u32 s47, s47, {WS_ST2}")
    a("v_lshrrev_b32 v3, 5, v1")
    a("v_lshlrev_b32 v247, 11, v3")
    a("v_lshl_add_u32 v247, v90, 2, v247")
    PL = OPT["dpl"]
    sh = {64: 9, 32: 10, 16: 11, 8: 12}[PL]
    a(f"v_lshlrev_b32 v255, {sh}, v1")
    a(f"v_add_u32 v255, {(1 << sh) - 4}, v255")
    a(f"s_mov_b32 s101, {OPT['rb']}")
    def rdW(ks, j, d):
        a(f"ds_read_b128 {vr(d,4)}, v{VA2 if ks >= 16 else 2} offset:{(ks&15)*3*KB + j*KB}")
    lab = a.label("dyoung")
    a("s_cmp_ge_u32 s3, 4")
    a(f"s_cbranch_scc1 {lab}")
    a(f"s_setprio {OPT['dpr']}")
    a(f"{lab}:")
    a("L_dredo:")
    a("v_mov_b32 v3, 0")
    for ks in range(2):
        for j in range(3): rdW(ks, j, WB[ks]+4*j)
    SP = OPT["dsp"]
    def probe():
        a("s_mov_b32 s45, s44")
        if PL < 64: a(f"s_mov_b64 exec, {hex((1 << PL) - 1)}")
        a(f"buffer_load_dword v3, v255, {R(SWS)}, s44 offen sc1")
        if PL < 64: exec_all(a)
        for ks in range(SP): ldH(ks)
    def ldH(ks):
        if ks and ks % 4 == 0: a("s_add_u32 s45, s45, 4096")
        a(f"buffer_load_dwordx4 {vr(HR+4*(ks%NR),4)}, v2, {R(SWS)}, s45 offen offset:{(ks&3)*1024} sc1")
    def ldst():
        for p in range(4): a(f"buffer_load_dwordx4 {vr(STL+4*p,4)}, v247, {R(SWS)}, s47 offen offset:{p*512} sc1")
    def stats():
        poll(a, ldst, [STL+1, STL+3, STL+5, STL+7, STL+9, STL+11, STL+13, STL+15], first_issued=True)
        for p in range(1, 4):
            a(f"v_add_f32 v{STL}, v{STL}, v{STL+4*p}")
            a(f"v_add_f32 v{STL+2}, v{STL+2}, v{STL+4*p+2}")
        a(f"v_mov_b32 v{STL+1}, v{STL}\nv_mov_b32 v{STL+3}, v{STL+2}")
        a(f"v_permlane32_swap_b32 v{STL+1}, v{STL}\nv_permlane32_swap_b32 v{STL+3}, v{STL+2}")
        a(f"v_add_f32 v{STL}, v{STL}, v{STL+1}\nv_add_f32 v{STL+2}, v{STL+2}, v{STL+3}")
        a(f"v_mul_f32 v{STL}, {fh(-1/512)}, v{STL}")
        a(f"v_mul_f32 v{STL+1}, v{STL}, v{STL}")
        a(f"v_mov_b32 v{STL+3}, {fh(1/512)}")
        a(f"v_fma_f32 v{IR}, v{STL+2}, v{STL+3}, -v{STL+1}")
        a(f"v_max_f32 v{IR}, 0, v{IR}")
        a(f"v_add_f32 v{IR}, {fh(1e-5)}, v{IR}")
        a(f"v_rsq_f32 v{C1}, v{IR}")
        hilo(a, MF, STL, STL+4, False)
        a(f"v_mul_f32 v{C1}, {fh(-LOG2E)}, v{C1}")
        slot_A(a, 50, 51)
    spoll(a, probe, [3], None)
    pm(a, "d0")
    seq = [(j, ks) for j in range(3) for ks in range(24, 32)]
    def rdT(n):
        j, ks = seq[n]
        rdW(ks, j, WF+4*(n%6))
    N0 = max(OPT["dn0"], SP)
    nl = N0
    for ks in range(SP, N0): ldH(ks)
    for ks in range(24):
        if ks == 22: stats()
        for j in range(3):
            if ks < 22: rdW(ks+2, j, WB[(ks+2)%3]+4*j)
            elif ks == 22: rdT(j)
            elif j < 2: rdT(3+j)
            mfma(a, ACC+16*j, WB[ks%3]+4*j, HR+4*(ks%NR), "0" if ks == 0 else None)
            if j == 0: maxacc(a, MX, HR+4*(ks%NR), ks == 0)
            if j == 1 and nl < 32 and nl < ks + NR: ldH(nl); nl += 1
        if nl < 32 and nl <= ks + NR: ldH(nl); nl += 1
        if ks == 8: ldst()
        pm(a, f"dk{ks}")
    assert nl == 32
    for ks in range(24, 32): maxacc(a, MX, HR+4*(ks%NR))
    a(f"v_cmp_eq_u32 vcc, -1, v{MX}")
    a("s_cbranch_vccnz L_dfix")
    a("L_dok:")
    passed()
    CS = STL + 8
    for j in range(3): a(f"v_mov_b32 v{CS+j}, 0")
    exec_lo32(a)
    for j in range(3): a(f"ds_read_b32 v{CS+j}, v{VST} offset:{128*j}")
    exec_all(a)
    def epi(j):
        c = ACC + 16*j; T = STL + 8*(j & 1)
        L = []
        for r in range(8): L.append(f"v_mul_f32 v{T+r}, v{C1}, v{c+r}")
        for r in range(8): L.append(f"v_exp_f32 v{T+r}, v{T+r}")
        for r in range(8): L.append(f"v_mul_f32 v{c+r}, v{c+r}, v{c+8+r}")
        for r in range(8): L.append(f"v_fma_f32 v{T+r}, v{T+r}, v{IR}, v{IR}")
        for r in range(8): L.append(f"v_rcp_f32 v{T+r}, v{T+r}")
        for r in range(8): L.append(f"v_mul_f32 v{c+r}, v{c+r}, v{T+r}")
        for q in range(4): L.append(f"v_cvt_pk_bf16_f32 v{c+8+q}, v{c+2*q}, v{c+2*q+1}")
        for q in range(4): L.append(f"v_min_u32 v{c+8+q}, -2, v{c+8+q}")
        return L
    def st(j):
        flavored(a, [f"buffer_store_dwordx4 {vr(ACC+16*j+8,4)}, v2, {R(SWS)}, s{51 if j == 2 else 50} offen offset:{j*1024}"])
    pend = []
    for n, (j, ks) in enumerate(seq):
        if n + 5 < len(seq): rdT(n+5)
        mfma(a, ACC+16*j, WF+4*(n%6), HR+4*(ks%NR))
        if 2 <= n < 5: hilo(a, CSF+4*(n-2), CS+n-2, CS+4, True)
        if ks == 31:
            pm(a, f"dg{j}")
            mfma(a, ACC+16*j, CSF+4*j, MF)
            if pend:
                for l in pend: a(l)
                st(j-1)
            pend = epi(j)
        elif pend and ks >= 26:
            for l in pend[:11]: a(l)
            pend = pend[11:]
    for l in pend: a(l)
    st(2)
    a("s_setprio 0")
    a("L_djoin:")
    a("@forget")
    pm(a, "d9")

def dfix(a):
    a("L_dfix:")
    a("s_waitcnt vmcnt(0) lgkmcnt(0)")
    a("s_nop 15\ns_nop 3")
    a("s_sub_u32 s101, s101, 1")
    a("s_cbranch_scc0 L_dredo")
    a("s_branch L_dok")

def e_ld(a, n):
    T, kk = n // 11, n % 11
    d = vr(4 + 44*T + 4*kk, 4)
    if kk < 9:
        a(f"buffer_load_dwordx4 {d}, v2, {R(SWS)}, s{50+4*T+(kk>>2)} offen offset:{(kk&3)*1024} sc1")
    else:
        a(f"buffer_load_dwordx4 {d}, v2, {R(SWS)}, s{96+2*T+kk-9} offen sc1")

def phaseE(a):
    AF, ACC, MX, PV, PR = 4, 92, 255, 254, 253
    a("s_mul_i32 s46, s3, 11")
    for T in range(2):
        b = 50 + 4*T
        a(f"s_and_b32 s{b}, s{sTC}, 0xfffffffe")
        if T: a(f"s_add_u32 s{b}, s{b}, 1")
        a(f"s_mul_i32 s{b}, s{b}, 86")
        a(f"s_add_u32 s{b+3}, s{b}, 85")
        a(f"s_add_u32 s{b}, s{b}, s46")
        a(f"s_lshl_b32 s{b}, s{b}, 10\ns_lshl_b32 s{b+3}, s{b+3}, 10")
        a(f"s_add_u32 s{b}, s{b}, {WS_ACT}\ns_add_u32 s{b+3}, s{b+3}, {WS_ACT}")
        a(f"s_add_u32 s{b+1}, s{b}, 4096\ns_add_u32 s{b+2}, s{b}, 8192")
        for q in range(2):
            a(f"s_add_u32 s{96+2*T+q}, s{b}, {(9+q)*KB}")
            a(f"s_min_u32 s{96+2*T+q}, s{96+2*T+q}, s{b+3}")
    EH = OPT["epl"] == 22
    a("s_sub_u32 s44, s97, s50")
    if EH: a("s_add_u32 s44, s44, 512")
    a(f"v_lshlrev_b32 v{PV}, {9 if EH else 10}, v1")
    a(f"v_min_u32 v{PV}, s44, v{PV}")
    a(f"s_mov_b32 s101, {OPT['rb']}")
    a("s_lshr_b32 s46, s3, 1")
    a("s_and_b32 s47, s3, 1")
    def ldpr(T):
        a(f"s_mov_b64 exec, {hex((1 << OPT['epl']) - 1)}")
        a(f"buffer_load_dword v{PR}, v{PV}, {R(SWS)}, s{50+4*T} offen offset:{508 if EH else 1020} sc1")
        exec_all(a)
    a(f"v_mov_b32 v{PR}, 0")
    SP = OPT["esp"]
    def wr(T, q):
        b = ACC + 32*T + 16*(q >> 1) + 8*(q & 1)
        lab = a.label("own")
        a(f"s_xor_b32 s45, s47, {T}")
        if q == 0:
            a("s_cmp_eq_u32 s45, 0")
            a(f"s_cbranch_scc1 {lab}")
        a(f"s_xor_b32 s44, s46, {q}")
        a(f"s_mul_i32 s44, s44, 7")
        a("s_add_u32 s44, s44, s45")
        a("s_lshl_b32 s44, s44, 11")
        a(f"s_add_u32 s44, s44, {(L_REDE[T] + (2*q-1)*2*KB) & 0xffffffff}")
        a(f"v_add_u32 v{244+q}, s44, v2")
        a(f"ds_write_b128 v{244+q}, {vr(b,4)}")
        a(f"ds_write_b128 v{244+q}, {vr(b+4,4)} offset:1024")
        if q == 0: a(f"{lab}:")
    for T in range(2):
        def probe():
            ldpr(T)
            for n in range(SP): e_ld(a, 11*T+n)
        pre = T == 1 and OPT["epr"] >= 0
        if pre:
            lp, go = a.label("eslow"), a.label("ego")
            a(f"v_cmp_eq_u32 vcc, -1, v{PR}")
            a(f"s_cbranch_vccz {go}")
            spoll(a, lambda: ldpr(T), [PR], None)
            a(f"{go}:")
            nl = 0
        else:
            spoll(a, probe, [PR], None)
            nl = SP
        pm(a, f"e{T}s")
        N0 = OPT["en0"]
        while nl < N0: e_ld(a, 11*T+nl); nl += 1
        if T == 1:
            for q in range(OPT["ew0"]): wr(0, q)
        a(f"L_eredo{T}:")
        for kk in range(11):
            for tj in range(2):
                mfma(a, ACC+32*T+16*tj, W2+4*(2*kk+tj), AF+44*T+4*kk, "0" if kk == 0 else None)
                if tj == 0: maxacc(a, MX, AF+44*T+4*kk, kk == 0)
                if nl < 11: e_ld(a, 11*T+nl); nl += 1
            if T == 1 and kk in (1, 3, 5, 7) and (kk >> 1) >= OPT["ew0"]: wr(0, kk >> 1)
            if T == 0 and kk == OPT["epr"]: ldpr(1)
            pm(a, f"e{T}k{kk}")
        a(f"v_cmp_eq_u32 vcc, -1, v{MX}")
        a(f"s_cbranch_vccnz L_efix{T}")
        a(f"L_eok{T}:")
    lp, dn = a.label("cn2"), a.label("cn2d")
    a(f"v_mov_b32 v3, {L_CN2}")
    a(f"s_mov_b32 s{sCNT}, {1 << 20}")
    a(f"{lp}:")
    a(f"ds_read_b32 v{PR}, v3")
    a("s_waitcnt lgkmcnt(0)")
    a(f"v_cmp_ne_u32 vcc, 8, v{PR}")
    a(f"s_cbranch_vccz {dn}")
    a(f"s_sub_u32 s{sCNT}, s{sCNT}, 1")
    a(f"s_cbranch_scc0 {lp}")
    a(f"{dn}:")
    for j in range(4):
        a(f"v_lshlrev_b32 v{4+2*j}, 16, v{HB+j}")
        a(f"v_and_b32 v{5+2*j}, 0xffff0000, v{HB+j}")
    a(f"s_mul_i32 s45, s46, {14*KB}")
    a("s_cmp_eq_u32 s47, 0")
    a(f"s_cselect_b32 s44, {L_REDE[0]}, {L_REDE[1]}")
    a("s_add_u32 s45, s45, s44")
    a(f"v_add_u32 v3, s45, v2")
    for q in (3, 2, 1, 0): wr(1, q)
    lab, lb2 = a.label("odd"), a.label("sum")
    a("s_cmp_lg_u32 s47, 0")
    a(f"s_cbranch_scc1 {lab}")
    for r in range(8): a(f"v_add_f32 v{ACC+r}, v{ACC+r}, v{4+r}")
    a(f"s_branch {lb2}")
    a(f"{lab}:")
    for r in range(8): a(f"v_add_f32 v{ACC+r}, v{ACC+32+r}, v{4+r}")
    a(f"{lb2}:")
    a.waitlg()
    pm(a, "e3")
    a("s_barrier")
    pm(a, "e4")
    for s in range(7):
        a(f"ds_read_b128 {vr(4+8*s,4)}, v3 offset:{s*2048}")
        a(f"ds_read_b128 {vr(8+8*s,4)}, v3 offset:{s*2048+1024}")
    for s in range(7):
        for r in range(8): a(f"v_add_f32 v{ACC+r}, v{ACC+r}, v{4+8*s+r}")
    pack8(a, 4, ACC)
    a(f"buffer_store_dwordx4 v[4:7], v{VRES}, {R(SOUT)}, s{sRES} offen")
    pm(a, "e5")

def efix(a):
    for T in range(2):
        a(f"L_efix{T}:")
        a("s_waitcnt vmcnt(0) lgkmcnt(0)")
        a("s_nop 15\ns_nop 3")
        a("s_sub_u32 s101, s101, 1")
        a(f"s_cbranch_scc1 L_eok{T}")
        for kk in range(11): e_ld(a, 11*T + kk)
        a("s_waitcnt vmcnt(0)")
        a(f"s_branch L_eredo{T}")

def build():
    a = Asm()
    name = NAME + "_kernel"
    kernel_begin(a, name)
    prologue(a)
    stop = OPT["stop"]
    a("s_cmp_ge_u32 s3, 4")
    a("s_cbranch_scc1 L_helper")
    phaseA_mfma(a)
    if stop > 1: attn_setup(a)
    phaseA_mfma_pub(a)
    if stop > 1:
        attn_setup2(a)
        first_tiles(a)
        attn_loop(a, True)
    else: a("s_waitcnt vmcnt(0) lgkmcnt(0)")
    a("s_branch L_attn_done")
    a("L_helper:")
    phaseA_helper(a)
    if stop > 1:
        attn_setup(a); attn_setup2(a); prep_addr(a)
        if OPT["tp"] < 0:
            prep_rd(a)
            pm(a, "a3")
            for e in range(6): prep_st(a, e)
            pm(a, "a4")
        attn_loop(a, False)
    else: a("s_waitcnt vmcnt(0) lgkmcnt(0)")
    a("L_attn_done:")
    if stop > 1:
        attn_finish(a)
        if stop > 2:
            phaseC(a)
            if stop > 3:
                phaseD(a)
                if stop > 4: phaseE(a)
            bump(a)
    prof_end(a)
    if stop > 1: fallback(a)
    if stop > 3: dfix(a)
    if stop > 4: efix(a)
    a("L_exit:")
    a("s_endpgm")
    hdr = open("cdna_kernels/" + NAME + ".s.ref").read().split("; Override launch")[0]
    out = hdr + f"; @launch grid=(256,1,1) block=(512,1,1) lds={LDS_BYTES}\n"
    out += '.amdgcn_target "amdgcn-amd-amdhsa--gfx950"\n.text\n'
    out += a.finalize()
    out += '.section .rodata,"a"\n.p2align 6\n' + kernel_desc(name, 256)
    print("auto:", a.stats, "instrs", len(a.ins), file=sys.stderr)
    return out

if __name__ == "__main__":
    Prof.on = "prof" in sys.argv
    Prof.cyc = "cyc" in sys.argv
    OPT["fast"] = "fast" in sys.argv
    for x in sys.argv[2:]:
        if x.startswith("marks="): MARKS[:] = x[6:].split(",")
        elif "=" in x: OPT[x.split("=")[0]] = int(x.split("=")[1])
    open(sys.argv[1], "w").write(build())
```

```python
import sys
from asm2 import *

NAME = "sequential_preLN__softmax_full_mha__glu_gated_swiglu__prompt"
KB = 1024; MB = 1 << 20
WS_EPOCH = 0
WS_IDS  = 4 * KB
WS_FQKV = 8 * KB
WS_FW   = 16 * KB
WS_CLR  = 20 * KB
WS_CSP  = 3 * MB
WS_ST2  = 128 * KB
WS_Q    = 1 * MB
WS_KV   = 4 * MB
WS_O    = 8 * MB
WS_H    = 10 * MB
WS_ACT  = 12 * MB
WS_WTO  = 18 * MB
WS_WT2  = 19 * MB
WS_WT13 = 21 * MB
WS_END  = 24 * MB
NX = 5
LOG2E = 1.4426950408889634
L_X    = 96 * KB
L_MISC = 156 * KB
L_CS13 = L_MISC + 768
L_ST2  = L_MISC + 1280
L_MFW  = L_MISC + 3584
L_RS   = L_MISC + 3840
L_CNT  = L_MISC + 1800
L_CN2  = L_MISC + 1804
L_PR1  = 136 * KB
L_PR2  = 152 * KB
L_STG  = 128 * KB
L_REDC = 96 * KB
L_REDE = (96 * KB, 0)
LDS_BYTES = 160 * KB
SX, SWQ, SWS, SWO, SW1, SW3, SW2, SOUT = 4, 8, 12, 16, 20, 24, 28, 32
sT, sG, sM, sFAST, sID, sCNT = 36, 37, 38, 39, 40, 41
sP, sTB, sHEAD, sTT, sTC, sCS, sRES = 56, 57, 58, 59, 60, 61, 62
POLL_LIMIT = 1 << 17
OPT = dict(ks=1, eo=0, gx=0, ts=0, rg=0, wb=0, ta=0, pq=4, pqq=1, fl=0, pt=4, ff=0, nsc=0, stop=99, fast=False, lax=3, pc=5, sj=7, tw=14, tc=14, tc1=44, we=48, wl=5, da=47, db=60, tp=-1, tss=1, nid=22, nck=28, xa=0, xo=1, sm=1, tf=2, oe=0, dn0=6, dpl=8, epl=11, cpr=0, dsp=3, dpr=2, cj=1, esp=3, en0=11, epr=4, ew0=0, pl=17, rb=16)

MARKS = "a0,a1,a2,a3,b0,b9,c0,c1,c2,d0,d9,e0".split(",")
def pm(a, name):
    if name in MARKS: prof_mark(a, MARKS.index(name))
def R(d, n=4): return sr(d, n)

def tr_addr(a, d, t, row_shift=6, cg_mul=32):
    a(f"v_lshrrev_b32 v{d}, 5, v1")
    a(f"v_lshlrev_b32 v{d}, {row_shift+3}, v{d}")
    a(f"v_bfe_u32 v{t}, v1, 2, 2")
    a(f"v_lshl_add_u32 v{d}, v{t}, {row_shift}, v{d}")
    a(f"v_bfe_u32 v{t}, v1, 4, 1")
    a(f"v_mul_u32_u24 v{t}, {cg_mul}, v{t}")
    a(f"v_add_u32 v{d}, v{d}, v{t}")
    a(f"v_and_b32 v{t}, 1, v1")
    a(f"v_lshl_add_u32 v{d}, v{t}, 4, v{d}")
    a(f"v_bfe_u32 v{t}, v1, 1, 1")
    a(f"v_lshl_add_u32 v{d}, v{t}, 3, v{d}")

def pi_lane(a, d, t):
    a(f"v_and_b32 v{d}, 0x33, v1")
    a(f"v_bfe_u32 v{t}, v1, 2, 1")
    a(f"v_lshl_add_u32 v{d}, v{t}, 3, v{d}")
    a(f"v_bfe_u32 v{t}, v1, 3, 1")
    a(f"v_lshl_add_u32 v{d}, v{t}, 2, v{d}")

def pack8(a, d, s):
    for j in range(4): a(f"v_cvt_pk_bf16_f32 v{d+j}, v{s+2*j}, v{s+2*j+1}")

def mfma(a, d, A, B, c=None):
    a(f"v_mfma_f32_32x32x16_bf16 {vr(d,16)}, {vr(A,4)}, {vr(B,4)}, {vr(d,16) if c is None else c}")

def tr2(a, d, addr, off, addr2=None, tag=None):
    a(f"ds_read_b64_tr_b16 {vr(d,2)}, v{addr} offset:{off}", tag)
    if addr2 is None: a(f"ds_read_b64_tr_b16 {vr(d+2,2)}, v{addr} offset:{off+256}", tag)
    else: a(f"ds_read_b64_tr_b16 {vr(d+2,2)}, v{addr2} offset:{off}", tag)

def exec_lo32(a): a("s_mov_b64 exec, 0xffffffff")
def exec_all(a): a("s_mov_b64 exec, -1")

def flavored(a, lines, tag=None, sfx=""):
    if not OPT["fast"]:
        for l in lines: a(l + " sc1", tag)
        return
    lf, ld = a.label("fast"), a.label("fdone")
    a(f"s_cmp_lg_u32 s{sFAST}, 0")
    a(f"s_cbranch_scc1 {lf}")
    for l in lines: a(l + " sc1", tag)
    a(f"s_branch {ld}")
    a(f"{lf}:")
    for l in lines: a(l + sfx, tag)
    a(f"{ld}:")

def flag_store(a, soff, vt, local=True):
    a(f"v_mov_b32 v{vt}, s{sT}")
    a("s_mov_b64 exec, 1")
    l = f"buffer_store_dword v{vt}, off, {R(SWS)}, s{soff}"
    if local: flavored(a, [l])
    else: a(l + " sc1")
    exec_all(a)

def poll(a, load, checks, first_issued=False):
    lp, dn, ck = a.label("poll"), a.label("pdone"), a.label("pchk")
    a(f"s_mov_b32 s{sCNT}, {1 << OPT['pl']}")
    if first_issued: a(f"s_branch {ck}")
    a(f"{lp}:")
    load()
    a("s_waitcnt vmcnt(0)")
    if first_issued: a(f"{ck}:")
    a(f"v_cmp_ne_u32 vcc, s{sT}, v{checks[0]}")
    for c in checks[1:]:
        a(f"v_cmp_ne_u32 s[42:43], s{sT}, v{c}")
        a("s_or_b64 vcc, vcc, s[42:43]")
    a(f"s_cbranch_vccz {dn}")
    a(f"s_sub_u32 s{sCNT}, s{sCNT}, 1")
    a(f"s_cbranch_scc0 {lp}")
    a(f"{dn}:")

def hilo(a, d, src, t, dup):
    a(f"v_and_b32 v{t}, 0xffff0000, v{src}")
    a(f"v_sub_f32 v{t+1}, v{src}, v{t}")
    if dup:
        a(f"v_cvt_pk_bf16_f32 v{d}, v{t}, v{t}")
        a(f"v_cvt_pk_bf16_f32 v{d+1}, v{t+1}, v{t+1}")
    else:
        a(f"v_cvt_pk_bf16_f32 v{d}, v{t}, v{t+1}")
        a(f"v_cvt_pk_bf16_f32 v{d+1}, v{t}, v{t+1}")
    a(f"v_mov_b32 v{d+2}, 0")
    a(f"v_mov_b32 v{d+3}, 0")

def allreduce32(a, v, t):
    for m in ("quad_perm:[1,0,3,2]", "quad_perm:[2,3,0,1]", "row_half_mirror", "row_mirror"):
        a(f"v_add_f32 v{v}, v{v}, v{v} {m} row_mask:0xf bank_mask:0xf")
    a(f"v_mov_b32 v{t}, v{v}")
    a(f"v_permlane16_swap_b32 v{t}, v{v}")
    a(f"v_add_f32 v{v}, v{v}, v{t}")

def ids_check(a, v):
    a(f"v_cmp_ne_u32 vcc, s{sID}, v{v}")
    a("s_cmp_eq_u64 vcc, 0")
    a(f"s_cselect_b32 s{sFAST}, 1, 0")

def prologue(a):
    a("s_cmp_ge_u32 s2, 256")
    a("s_cbranch_scc1 L_exit")
    a("s_load_dwordx16 s[40:55], s[0:1], 0")
    a("s_load_dwordx2 s[62:63], s[0:1], 72")
    prof_begin(a)
    a("v_and_b32 v1, 63, v0")
    a("v_lshrrev_b32 v2, 6, v0")
    a("v_readfirstlane_b32 s3, v2")
    a("v_lshlrev_b32 v2, 4, v1")
    if OPT["gx"]: a(f"s_add_u32 s{sG}, s2, {OPT['gx']}\ns_and_b32 s{sG}, s{sG}, 7")
    else: a(f"s_and_b32 s{sG}, s2, 7")
    a(f"s_lshr_b32 s{sM}, s2, 3")
    a(f"s_lshr_b32 s{sP}, s{sM}, 4")
    a(f"s_lshl_b32 s{sTB}, s{sG}, 1")
    a(f"s_add_u32 s{sP}, s{sP}, s{sTB}")
    a(f"s_and_b32 s{sTB}, s{sM}, 15")
    a(f"s_bfe_u32 s{sHEAD}, s{sM}, 0x10003")
    a(f"s_lshl_b32 s{sTT}, s{sP}, 1")
    a(f"s_add_u32 s{sHEAD}, s{sHEAD}, s{sTT}")
    a(f"s_and_b32 s{sCS}, s{sM}, 7")
    a(f"s_mov_b32 s{sFAST}, 0")

def prologue2(a, part=3):
    if part & 1:
        a("s_waitcnt lgkmcnt(0)")
        if OPT["wb"]: a(f"s_add_u32 s62, s62, {OPT['wb']*MB}\ns_addc_u32 s63, s63, 0")
        a("s_load_dword s36, s[62:63], 0")
        srd(a, SX, 40, 2048*1024)
        srd(a, SWQ, 42, 512*3072)
    if not part & 2: return
    srd(a, SWS, 62, WS_END)
    srd(a, SWO, 44, 512*1024)
    srd(a, SW1, 48, 512*2752)
    srd(a, SW3, 50, 512*2752)
    srd(a, SW2, 52, 1376*1024)
    srd(a, SOUT, 54, 2048*1024)

def tag_ready(a):
    a("s_waitcnt lgkmcnt(0)")
    a(f"s_add_u32 s63, s{sT}, 1")
    a(f"s_mul_i32 s{sT}, s63, 0x9E3779B1")
    a(f"s_getreg_b32 s{sID}, hwreg(HW_REG_XCC_ID)")
    a(f"s_lshl_b32 s{sID}, s{sID}, 28")
    a(f"s_and_b32 s42, s{sT}, 0x0fffffff")
    a(f"s_or_b32 s{sID}, s{sID}, s42")

def wq_addr(a, d, t, sp):
    a(f"v_lshrrev_b32 v{d}, 5, v1")
    a(f"v_mul_u32_u24 v{d}, 3072, v{d}")
    a(f"v_bfe_u32 v{t}, v1, 2, 2")
    a(f"v_lshl_add_u32 v{d}, v{t}, 7, v{d}")
    a(f"v_bfe_u32 v{t}, v1, 3, 1")
    if sp is not None: a(f"v_xor_b32 v{t}, s{sp}, v{t}")
    a(f"v_lshl_add_u32 v{d}, v{t}, 6, v{d}")
    a(f"v_bfe_u32 v{t}, v1, 4, 1")
    a(f"v_lshl_add_u32 v{d}, v{t}, 5, v{d}")
    a(f"v_and_b32 v{t}, 1, v1")
    a(f"v_lshl_add_u32 v{d}, v{t}, 4, v{d}")
    a(f"v_bfe_u32 v{t}, v1, 1, 1")
    a(f"v_lshl_add_u32 v{d}, v{t}, 3, v{d}")

def trw(a, d, addr, off):
    a(f"ds_read_b64_tr_b16 {vr(d,2)}, v{addr} offset:{off}")
    a(f"ds_read_b64_tr_b16 {vr(d+2,2)}, v{addr} offset:{off+512}")

def mfs(a, d, A, B, c=None):
    a(f"v_mfma_f32_16x16x32_bf16 {vr(d,4)}, {vr(A,4)}, {vr(B,4)}, {vr(d,4) if c is None else c}")

def phaseA_mfma(a):
    AQ, AK, AV, XF, WF, VXA, VWA, VWB, G, TM = 16, 32, 48, 144, 156, 4, 8, 3, 96, 104
    CSF, MF, RSB, SEL, CSD, PL, VS, VG, OWN, PUB = 112, 124, 128, 192, 196, 212, 236, 239, 208, 220
    a("s_and_b32 s96, s3, 1")
    a("s_lshr_b32 s97, s3, 1")
    a("v_and_b32 v9, 31, v1")
    a("v_lshrrev_b32 v10, 5, v1")
    a("v_bfe_u32 v11, v1, 1, 3")
    a("v_xor_b32 v11, v11, v10")
    a("v_lshlrev_b32 v11, 4, v11")
    a("v_lshl_add_u32 v11, v9, 7, v11")
    a(f"s_lshl_b32 s98, s96, 12")
    a(f"s_add_u32 s98, s98, {L_X}")
    a("v_add_u32 v11, s98, v11")
    for k in range(4): a(f"v_xor_b32 v{VXA+k}, {32*k}, v11")
    wq_addr(a, VWA, 11, 97)
    a(f"v_add_u32 v{VWB}, {48*KB}, v{VWA}")
    a("v_mov_b32 v16, 0\nv_mov_b32 v17, 0")
    a("s_lshl_b32 s98, s3, 9")
    a(f"s_add_u32 s98, s98, {L_MISC}")
    a("v_lshl_add_u32 v11, v1, 3, s98")
    a("ds_write_b64 v11, v[16:17]")
    prologue2(a)
    a("v_lshrrev_b32 v11, 2, v1")
    a("v_xor_b32 v11, v11, v1")
    a("v_bfe_u32 v11, v11, 2, 1")
    a("v_add_u32 v11, -1, v11")
    for q in range(4): a(f"v_and_b32 v{SEL+q}, 0x3f803f80, v11")
    a("v_lshlrev_b32 v13, 2, v9")
    a("v_lshlrev_b32 v12, 3, v9")
    a(f"v_lshl_add_u32 v{VG}, v10, 10, v12")
    a(f"s_add_u32 s98, s{sM}, 6\ns_add_u32 s99, s{sM}, 3")
    a("s_and_b32 s98, s98, 7\ns_and_b32 s99, s99, 7")
    a("s_lshl_b32 s98, s98, 12\ns_lshl_b32 s99, s99, 12")
    a("s_add_u32 s98, s98, 1024")
    a("s_sub_u32 s99, s99, s98")
    a("v_mul_lo_u32 v11, v10, s99")
    a("v_add3_u32 v12, v12, v11, s98")
    for p in range(3): a(f"v_mov_b32 v{OWN+p}, 0")
    a("s_lshl_b32 s98, s96, 7")
    a(f"s_add_u32 s98, s98, {L_MFW}")
    a("v_add_u32 v14, s98, v13")
    a("v_lshl_add_u32 v15, v10, 4, s98")
    a(f"v_mov_b32 v{MF+2}, 0\nv_mov_b32 v{MF+3}, 0")
    a(f"s_lshl_b32 s44, s{sM}, 1")
    a("s_add_u32 s44, s44, s96")
    a(f"s_lshl_b32 s47, s{sG}, 1")
    a("s_add_u32 s47, s47, s97")
    a(f"s_lshl_b32 s46, s{sG}, 7")
    a(f"s_add_u32 s46, s46, {WS_IDS}")
    a(f"s_lshl_b32 s45, s{sM}, 2")
    a("s_add_u32 s45, s45, s46")
    a(f"s_lshl_b32 s98, s{sG}, 5")
    a(f"s_add_u32 s98, s98, s{sM}")
    a("s_and_b32 s99, s98, 0xfffffff8")
    a("s_lshl_b32 s98, s98, 1\ns_lshl_b32 s99, s99, 1")
    a("s_add_u32 s98, s98, s97\ns_add_u32 s99, s99, s97")
    a("s_lshl_b32 s98, s98, 11\ns_lshl_b32 s99, s99, 11")
    a(f"s_add_u32 s98, s98, {WS_CSP}\ns_add_u32 s99, s99, {WS_CSP}")
    tag_ready(a)
    a(f"v_mov_b32 v{G+5}, s{sID}")
    for p in range(3): a(f"v_mov_b32 v{PUB+2*p+1}, s{sT}")
    def reads(n, part):
        c, k, b = n >> 2, n & 3, n % 3
        if OPT["xa"] & 4 and n > 2: return
        if part == 0: a(f"ds_read_b128 {vr(XF+4*b,4)}, v{VXA+k} offset:{(c%NX)*8*KB}")
        trw(a, WF+12*b+4*part, VWB if c & 2 else VWA, (c&1)*24*KB + k*6*KB + part*KB)
    def ldp():
        for p in range(3): a(f"buffer_load_dwordx2 {vr(PL+2*p,2)}, v12, {R(SWS)}, s99 offen offset:{p*256} sc1")
    def csum(p):
        a(f"v_add_f32 v{PL+2*p}, v{PL+2*p}, v{OWN+p}")
        a(f"v_and_b32 v{TM}, 0xffff0000, v{PL+2*p}")
        a(f"v_sub_f32 v{TM+1}, v{PL+2*p}, v{TM}")
        a(f"v_cvt_pk_bf16_f32 v{CSF+4*p}, v{TM}, v{TM}")
        a(f"v_cvt_pk_bf16_f32 v{CSF+4*p+1}, v{TM+1}, v{TM+1}")
    for p in range(3): a(f"v_mov_b32 v{CSF+4*p+2}, 0\nv_mov_b32 v{CSF+4*p+3}, 0")
    pi_lane(a, VS, VS+1)
    a(f"v_lshlrev_b32 v{VS}, 4, v{VS}")
    a(f"v_and_b32 v{VS+1}, 15, v1\nv_lshlrev_b32 v{VS+1}, 4, v{VS+1}")
    a(f"v_lshl_add_u32 v{VS+1}, v10, 8, v{VS+1}")
    a(f"v_bfe_u32 v{VS+2}, v1, 4, 1")
    a(f"v_lshl_add_u32 v{VS+1}, v{VS+2}, 17, v{VS+1}")
    a("s_lshl_b32 s50, s47, 7")
    a("s_add_u32 s50, s50, s44")
    a("s_lshl_b32 s51, s50, 11")
    a("s_lshl_b32 s50, s50, 10")
    a(f"s_add_u32 s50, s50, {WS_Q}")
    a(f"s_add_u32 s51, s51, {WS_KV}")
    a(f"s_add_u32 s52, s50, {64*KB}")
    a(f"s_add_u32 s53, s51, {128*KB}")
    a("s_lshl_b32 s101, s47, 8")
    a("s_lshl_b32 s44, s44, 2")
    a("s_add_u32 s101, s101, s44")
    a(f"s_add_u32 s101, s101, {WS_FQKV}")
    a("s_cmp_eq_u32 s3, 0")
    a("s_cselect_b64 s[54:55], 1, 0")
    a("s_cmp_eq_u32 s96, 1")
    a("s_cselect_b64 s[48:49], -1, 0")
    F = {}
    def at(n, p, f): F.setdefault((n, p), []).append(f)
    def f_ids():
        a("s_mov_b64 exec, s[54:55]")
        a(f"buffer_store_dword v{G+5}, off, {R(SWS)}, s45 sc1")
        exec_all(a)
    at(5, 0, f_ids)
    def f_s3(p):
        exec_lo32(a)
        a(f"v_mov_b32 v{PUB+2*p}, v{CSD+4*p}\nv_mov_b32 v{OWN+p}, v{CSD+4*p}")
        a("s_mov_b64 exec, s[48:49]")
        a(f"buffer_store_dwordx2 {vr(PUB+2*p,2)}, v{VG}, {R(SWS)}, s98 offen offset:{p*256} sc1")
        exec_all(a)
    NI, NC = OPT["nid"], OPT["nck"]
    a("v_and_b32 v248, 15, v1\nv_lshlrev_b32 v248, 7, v248")
    a("v_bfe_u32 v250, v1, 4, 1")
    a("v_lshl_add_u32 v248, v250, 17, v248")
    a("v_and_b32 v249, 7, v1\nv_lshlrev_b32 v249, 7, v249")
    a("v_bfe_u32 v250, v1, 3, 1")
    a("v_lshl_add_u32 v249, v250, 16, v249")
    def touch():
        if OPT["pq"]:
            a(f"s_cmp_lt_u32 s{sM}, {OPT['pq']}")
            a(f"s_cselect_b32 s95, s51, {OOB}")
            exec_lo32(a)
            if OPT["ts"]: a(f"buffer_store_dword v250, v248, {R(SWS)}, s95 offen")
            else: a(f"buffer_load_dword v250, v248, {R(SWS)}, s95 offen sc1")
        if OPT["pqq"]:
            a("s_mov_b64 exec, 0xffff")
            if OPT["ts"]: a(f"buffer_store_dword v250, v249, {R(SWS)}, s50 offen")
            else: a(f"buffer_load_dword v251, v249, {R(SWS)}, s50 offen sc1")
        exec_all(a)
    if OPT["pt"] == -1: touch()
    elif 0 <= OPT["pt"] < 32: at(OPT["pt"], 1, touch)
    for p in range(3):
        at(12, p, lambda p=p: f_s3(p))
        at(NI, p, lambda p=p: a(f"buffer_load_dwordx2 {vr(PL+2*p,2)}, v12, {R(SWS)}, s99 offen offset:{p*256} sc1"))
        at(NC+1, p, lambda p=p: csum(p))
        at(NC+2, p, lambda p=p: mfma(a, AQ+16*p, CSF+4*p, MF) if p < 2 else mfma(a, AV, MF, CSF+8))
    at(NI-1, 2, lambda: a(f"buffer_load_dword v{G+4}, v13, {R(SWS)}, s46 offen sc1"))
    at(NC, 1, lambda: ids_check(a, G+4))
    at(NC, 2, lambda: poll(a, ldp, [PL+1, PL+3, PL+5], first_issued=True))
    at(26, 1, lambda: a(f"ds_read_b32 v{MF}, v14\nds_read_b32 v{MF+1}, v14"))
    at(26, 2, lambda: a(f"ds_read_b32 v{G+2}, v14 offset:{L_RS-L_MFW}"))
    for q in range(4): at(30 + q//3, q%3, lambda q=q: a(f"ds_read_b128 {vr(RSB+4*q,4)}, v15 offset:{L_RS-L_MFW+32*q}"))
    pm(a, "a0")
    a("s_barrier")
    pm(a, "a1")
    for p in range(3): reads(0, p)
    for p in range(3): reads(1, p)
    for n in range(32):
        b = n % 3
        pm(a, f"an{n}")
        if (n & 3) == 2 and n < 30: a("s_barrier")
        for pi_, p in enumerate(range(3) if n < 31 else (1, 2, 0)):
            if n < 30: reads(n+2, p)
            c0 = "0" if n == 0 else None
            if p < 2: mfma(a, AQ+16*p, WF+12*b+4*p, XF+4*b, c0)
            else: mfma(a, AV, XF+4*b, WF+12*b+8, c0)
            if n == 8: a(f"v_mov_b32 v{PUB+2*p}, v{CSD+4*p}")
            if n < 12: mfs(a, CSD+4*p, SEL, WF+12*b+4*p, c0)
            for f in F.get((n, pi_), []): f()
    a("s_barrier")
    pm(a, "a2")
    if OPT["ff"] == 1: a(f"s_mov_b32 s{sFAST}, 1")
    if OPT["ff"] == 2: a(f"s_mov_b32 s{sFAST}, 0")
    a(f"v_mul_f32 v{G}, {fh(0.25*LOG2E)}, v{G+2}")
    def scal(A, S, bc):
        for r in range(0, 16, 2):
            if bc: a(f"v_pk_mul_f32 {vr(A+r,2)}, {vr(A+r,2)}, {vr(S,2)} op_sel_hi:[1,0]")
            else: a(f"v_pk_mul_f32 {vr(A+r,2)}, {vr(A+r,2)}, {vr(S+r,2)}")
    FL_ = ["", " nt", " sc0", " sc0 nt", " sc1 nt", " sc0 sc1 nt"][OPT["fl"]]
    scal(AK, G+2, True)
    pack8(a, 72, AK); pack8(a, 76, AK+8)
    flavored(a, [f"buffer_store_dwordx4 v[72:75], v{VS}, {R(SWS)}, s51 offen",
                 f"buffer_store_dwordx4 v[76:79], v{VS}, {R(SWS)}, s53 offen"], "qkv", sfx=FL_)
    scal(AV, RSB, False)
    pack8(a, 80, AV); pack8(a, 84, AV+8)
    flavored(a, [f"buffer_store_dwordx4 v[80:83], v{VS+1}, {R(SWS)}, s51 offen offset:1024",
                 f"buffer_store_dwordx4 v[84:87], v{VS+1}, {R(SWS)}, s51 offen offset:1536"], "qkv", sfx=FL_)
    scal(AQ, G, True)
    pack8(a, 64, AQ); pack8(a, 68, AQ+8)
    flavored(a, [f"buffer_store_dwordx4 v[64:67], v2, {R(SWS)}, s50 offen",
                 f"buffer_store_dwordx4 v[68:71], v2, {R(SWS)}, s52 offen"], "qkv", sfx=FL_)
    if OPT["pt"] == 40: touch()
    if OPT["pt"] == 41: a("s_mov_b32 s94, s50")

def phaseA_mfma_pub(a):
    pm(a, "a2s")
    a.waitvm("qkv")
    flag_store(a, 101, 3)
    if OPT["pt"] == 41:
        a("s_mov_b64 exec, 0xffff")
        a(f"buffer_load_dword v251, v249, {R(SWS)}, s94 offen sc1")
        exec_all(a)
    pm(a, "a3")

def htouch(a):
    a("s_lshr_b32 s42, s100, 1")
    a(f"s_lshl_b32 s43, s{sG}, 1")
    a("s_add_u32 s42, s42, s43")
    a("s_lshl_b32 s42, s42, 6")
    a(f"s_add_u32 s42, s42, s{sM}")
    a("s_lshl_b32 s42, s42, 1")
    a("s_and_b32 s43, s100, 1")
    a("s_add_u32 s42, s42, s43")
    a("s_lshl_b32 s43, s42, 11")
    a("s_lshl_b32 s42, s42, 10")
    a(f"s_add_u32 s42, s42, {WS_Q}")
    a(f"s_add_u32 s43, s43, {WS_KV}")
    a("v_and_b32 v248, 15, v1\nv_lshlrev_b32 v248, 7, v248")
    a("v_bfe_u32 v250, v1, 4, 1")
    a("v_lshl_add_u32 v248, v250, 17, v248")
    a("v_and_b32 v249, 7, v1\nv_lshlrev_b32 v249, 7, v249")
    a("v_bfe_u32 v250, v1, 3, 1")
    a("v_lshl_add_u32 v249, v250, 16, v249")
    a("s_mov_b64 exec, 0xffff")
    a(f"buffer_load_dword v251, v249, {R(SWS)}, s42 offen sc1")
    if not OPT["pq"]:
        exec_lo32(a)
        a(f"buffer_load_dword v250, v248, {R(SWS)}, s43 offen sc1")
    exec_all(a)

def phaseA_helper(a):
    VXE, VXO, VW, VSX, ONES, XD, SUM, GR, U = 4, 5, 6, 7, 12, 48, 32, 36, 40
    a("s_sub_u32 s100, s3, 4")
    a(f"s_mul_i32 s95, s{sG}, {OPT['rg']}")
    a(f"s_add_u32 s95, s95, s{sM}")
    a("v_lshrrev_b32 v9, 3, v1")
    a("v_lshrrev_b32 v10, 4, v1")
    a("v_and_b32 v11, 7, v1")
    a("v_xor_b32 v12, v11, v10")
    a("v_lshlrev_b32 v12, 4, v12")
    a(f"v_lshl_add_u32 v{VXE}, v9, 10, v12")
    a(f"v_xor_b32 v{VXO}, 64, v{VXE}")
    a("v_and_b32 v10, 1, v10")
    a("v_lshlrev_b32 v10, 2, v10")
    a("v_xor_b32 v11, v11, v10")
    a(f"v_mul_u32_u24 v{VW}, 3072, v9")
    a(f"v_lshl_add_u32 v{VW}, v11, 4, v{VW}")
    a(f"s_lshl_b32 s96, s{sM}, 2")
    a("s_add_u32 s96, s96, s100")
    a("s_lshl_b32 s96, s96, 14")
    a(f"s_mul_i32 s97, s100, {16*3072}")
    a(f"s_lshl_b32 s98, s{sG}, 7")
    a("s_add_u32 s97, s97, s98")
    a("s_lshl_b32 s98, s100, 11")
    a(f"s_add_u32 s98, s98, {L_X}")
    a(f"s_mul_i32 s99, s100, {6*KB}")
    pm(a, "ah")
    prologue2(a, 1)
    pm(a, "ak")
    LAX = OPT["lax"]
    def dmx(c):
        a(f"s_add_u32 s43, s95, {c}")
        a("s_and_b32 s43, s43, 7")
        a("s_lshl_b32 s43, s43, 7")
        a("s_add_u32 s43, s43, s96")
        a(f"s_add_u32 m0, s98, {(c%NX)*8*KB}")
        a(f"s_add_u32 s42, s43, 8192")
        a(f"buffer_load_dwordx4 v{VXE}, {R(SX)}, s43 offen lds", f"x{c}")
        a(f"s_add_u32 m0, s98, {(c%NX)*8*KB + KB}")
        a(f"buffer_load_dwordx4 v{VXO}, {R(SX)}, s42 offen lds", f"x{c}")
    def dmw(c):
        a(f"s_add_u32 s43, s95, {c}")
        a("s_and_b32 s43, s43, 7")
        a(f"s_mul_i32 s43, s43, {64*3072}")
        a(f"s_add_u32 m0, s99, {(c%4)*24*KB}")
        a(f"s_add_u32 s43, s43, s97")
        a(f"s_add_u32 s42, s43, {8*3072}")
        for pn in range(3): a(f"buffer_load_dwordx4 v{VW}, {R(SWQ)}, s43 offen offset:{pn*1024} lds", f"w{c}")
        a(f"s_add_u32 m0, s99, {(c%4)*24*KB + 3*KB}")
        for pn in range(3): a(f"buffer_load_dwordx4 v{VW}, {R(SWQ)}, s42 offen offset:{pn*1024} lds", f"w{c}")
    XO = OPT["xo"]
    EO = OPT["eo"]
    if EO == 1: dmx(0); dmw(0); dmx(1); dmw(1)
    elif EO >= 2: dmx(0); dmw(0); dmx(1)
    elif XO: dmx(0); dmw(0); dmx(1); dmw(1); dmx(2)
    else: dmx(0); dmw(0); dmx(1); dmx(2); dmw(1)
    for c in range(3, LAX): dmx(c)
    pm(a, "ai")
    prologue2(a, 2)
    a("v_and_b32 v9, 15, v1")
    a("v_bfe_u32 v10, v1, 1, 3")
    a("v_lshrrev_b32 v11, 4, v1")
    a("v_xor_b32 v10, v10, v11")
    a("v_lshlrev_b32 v10, 4, v10")
    a("v_lshl_add_u32 v10, v9, 7, v10")
    a(f"v_add_u32 v{VSX}, s98, v10")
    a(f"v_xor_b32 v{VSX+1}, 64, v{VSX}")
    for i in range(4): a(f"v_mov_b32 v{ONES+i}, 0x3f803f80")
    a("s_lshl_b32 s44, s100, 6")
    a(f"s_add_u32 s44, s44, {L_MFW}")
    a("v_lshl_add_u32 v3, v9, 2, s44")
    tag_ready(a)
    if EO >= 2: dmw(1)
    if EO == 3: dmx(2)
    if EO == 4: dmx(2); dmw(2)
    SCH = {0: [0], 1: [1, 2], 2: [3, 4], 3: [5], 4: [6], 5: [7]}
    if XO: SCH = {0: [0], 1: [1], 2: [2], 3: [3, 4], 4: [5], 5: [6], 6: [7]}
    SMF = [{0: [0], 1: [1], 2: [2, 3], 3: [4], 4: [5], 5: [6, 7]}, {3: [0, 1, 2], 4: [3, 4], 5: [5], 6: [6, 7]}, {0: [0], 3: [1, 2], 4: [3, 4], 5: [5, 6], 6: [7]}][OPT["sm"]]
    if OPT['xa'] & 2: SCH = {}
    for c in range(8):
        a.waitvm(f"w{c}")
        if c == 0: pm(a, "a0")
        else: pm(a, f"ac{c}")
        a("s_barrier")
        if c == 0: pm(a, "a1")
        def srd_(q, cc):
            a.waitvm(f"x{cc}")
            for j in range(2): a(f"ds_read_b128 {vr(XD+8*cc+4*j,4)}, v{VSX+j} offset:{(cc%NX)*8*KB}", f"sx{cc}")
        for q, cc in enumerate(SCH.get(c, [])):
            if cc <= c + 1 or not XO: srd_(q, cc)
        if c + LAX <= 7 and not OPT['xa'] & 8 and not XO: dmx(c+LAX)
        if c == 0 and EO in (1, 2): dmx(2)
        if c + 2 <= 7 and not OPT['xa'] & 8 and not (c == 0 and EO == 4): dmw(c+2)
        if c + LAX <= 7 and not OPT['xa'] & 8 and XO:
            if c + LAX >= NX: a.waitlg(f"sx{c+LAX-NX}")
            dmx(c+LAX)
        if c == OPT["pc"] and OPT["stop"] > 1: prep_issue(a)
        if c == OPT["pt"] - 50: htouch(a)
        for q, cc in enumerate(SCH.get(c, [])):
            if cc > c + 1 and XO: srd_(q, cc)
        pm(a, f"h{c}a")
        for cc in SMF.get(c, []):
            for j in range(2):
                c0 = "0" if cc == 0 and j == 0 else None
                mfs(a, SUM, ONES, XD+8*cc+4*j, c0)
                mfs(a, GR, XD+8*cc+4*j, XD+8*cc+4*j, c0)
        if c == 6:
            for q in range(1, 4):
                a(f"s_mov_b32 exec_lo, {hex(0x00100001 << q)}\ns_mov_b32 exec_hi, {hex(0x10000100 << q)}")
                a(f"v_mov_b32 v{GR}, v{GR+q}")
            a("s_mov_b32 exec_lo, 0x00f0000f\ns_mov_b32 exec_hi, 0xf0000f00")
            a(f"v_mov_b32 v{U+6}, {fh(1/512)}")
            a(f"v_mul_f32 v{SUM}, {fh(-1/512)}, v{SUM}")
            a(f"v_mul_f32 v{U}, v{SUM}, v{SUM}")
            a(f"v_fma_f32 v{U}, v{GR}, v{U+6}, -v{U}")
            a(f"v_max_f32 v{U}, 0, v{U}")
            a(f"v_add_f32 v{U}, {fh(1e-5)}, v{U}")
            a(f"v_rsq_f32 v{U}, v{U}")
            a(f"v_and_b32 v{U+2}, 0xffff0000, v{SUM}")
            a(f"v_sub_f32 v{U+4}, v{SUM}, v{U+2}")
            a(f"v_cvt_pk_bf16_f32 v{U+2}, v{U+2}, v{U+4}")
            a(f"ds_write_b32 v3, v{U+2}")
            a(f"ds_write_b32 v3, v{U} offset:{L_RS-L_MFW}")
            exec_all(a)
            a.waitlg()
        pm(a, f"h{c}c")
    pm(a, "aq")
    if OPT["pt"] == 58: htouch(a)
    a("s_barrier")
    pm(a, "a2")
    if OPT["pt"] == 59: htouch(a)

def first_tiles(a):
    a(f"s_lshl_b32 s44, s{sP}, 8")
    a(f"s_add_u32 s44, s44, {WS_FQKV}")
    a("v_lshlrev_b32 v9, 2, v1")
    poll(a, lambda: a(f"buffer_load_dword v11, v9, {R(SWS)}, s44 offen sc1"), [11])
    pm(a, "a4")
    a(f"s_lshl_b32 s42, s{sHEAD}, 6")
    a(f"s_lshl_b32 s43, s{sCS}, 3")
    a("s_add_u32 s42, s42, s43")
    a("s_lshl_b32 s43, s3, 1")
    a("s_add_u32 s42, s42, s43")
    a("s_lshl_b32 s42, s42, 10")
    a(f"s_add_u32 s42, s42, {WS_Q}")
    a("s_lshl_b32 s43, s3, 11")
    a(f"s_add_u32 m0, s43, {L_STG}")
    a("s_lshl_b32 s43, s3, 12")
    SC = "" if OPT["nsc"] else " sc1"
    for o in (0, 1024): a(f"buffer_load_dwordx4 v2, {R(SWS)}, s42 offen offset:{o}{SC} lds", "kv0")
    a(f"s_lshl_b32 s42, s{sHEAD}, 17")
    a("s_add_u32 s42, s42, s43")
    a(f"s_add_u32 s42, s42, {WS_KV}")
    a("s_mov_b32 m0, s43")
    for o in range(4): a(f"buffer_load_dwordx4 v2, {R(SWS)}, s42 offen offset:{o*1024}{SC} lds", "kv0")

Q, SA, SB, O, KF, VF = 4, 8, 24, 40, 56, 64
IDX, VK, VV, VK2, VV2, VWR0, VWR1 = range(80, 87)
VST = 253
VCL = 91
OOB = 0x40000000
VP0, VP2, PA, PB, PCN, PF, FL, SENT = 156, 157, 158, 162, 166, 168, 192, 240
WO, W2, XRES, HB, VRES = 92, 156, 244, 248, 252

def attn_setup(a):
    a(f"s_lshl_b32 s{sTT}, s{sCS}, 3")
    a(f"s_add_u32 s{sTT}, s{sTT}, s3")
    a(f"s_lshr_b32 s{sTC}, s{sM}, 3")
    a(f"s_lshl_b32 s{sTC}, s{sTC}, 1")
    a(f"s_lshl_b32 s50, s{sG}, 3")
    a(f"s_add_u32 s{sTC}, s{sTC}, s50")
    a("s_and_b32 s50, s3, 1")
    a(f"s_add_u32 s{sTC}, s{sTC}, s50")
    a(f"v_mov_b32 v{IDX}, 0xdddddddd")
    a(f"v_mov_b32 v{VK}, v2")
    a(f"v_add_u32 v{VK2}, 0x10000, v2")
    a(f"v_and_b32 v{VV}, 15, v1")
    a(f"v_lshlrev_b32 v{VV}, 4, v{VV}")
    a(f"v_lshrrev_b32 v{VV2}, 5, v1")
    a(f"v_lshl_add_u32 v{VV}, v{VV2}, 8, v{VV}")
    a(f"v_add_u32 v{VV}, 1024, v{VV}")
    a(f"v_and_b32 v{VRES}, 31, v1")
    a(f"v_lshlrev_b32 v90, 2, v{VRES}")
    a(f"v_lshlrev_b32 v{VRES}, 10, v{VRES}")
    a(f"v_lshl_add_u32 v{VRES}, v{VV2}, 4, v{VRES}")
    a(f"v_add_u32 v{VV2}, 0x10000, v{VV}")
    a(f"s_lshl_b32 s{sRES}, s{sTC}, 15")
    a(f"s_lshl_b32 s50, s{sCS}, 7")
    a(f"s_add_u32 s{sRES}, s{sRES}, s50")
    a("s_lshr_b32 s50, s3, 1")
    a("s_lshl_b32 s50, s50, 5")
    a(f"s_add_u32 s{sRES}, s{sRES}, s50")
    a("s_bfe_u32 s50, s3, 0x10001")
    a("s_lshl_b32 s50, s50, 8")
    a("s_lshr_b32 s51, s3, 2")
    a("s_lshl_b32 s51, s51, 10")
    a("s_or_b32 s50, s50, s51")
    a(f"v_xor_b32 v{VWR0}, s50, v2")
    a(f"v_xor_b32 v{VWR1}, 1024, v{VWR0}")
    a("s_lshl_b32 s50, s3, 10")
    a(f"s_add_u32 s50, s50, {L_STG}")
    a(f"v_add_u32 v{VST}, s50, v2")
    a("s_lshr_b32 s51, s3, 1")
    a("s_lshl_b32 s51, s51, 14")
    a(f"s_lshl_b32 s50, s{sCS}, 16")
    a("s_add_u32 s51, s51, s50")
    a(f"s_add_u32 s51, s51, {WS_WTO}")
    a(f"s_mul_i32 s52, s3, {22*KB}")
    a(f"s_mul_i32 s50, s{sCS}, {176*KB}")
    a("s_add_u32 s52, s52, s50")
    a(f"s_add_u32 s52, s52, {WS_WT2}")
    a(f"s_mul_i32 s54, s3, {6*KB}")
    a(f"s_mul_i32 s53, s{sM}, {96*KB}")
    a("s_add_u32 s53, s53, s54")
    a(f"s_add_u32 s53, s53, {WS_WT13}")
    a(f"s_cmp_ge_u32 s{sM}, 29")
    a(f"s_cselect_b32 s53, {OOB}, s53")
    a("s_mov_b32 s48, 0x0000ffff\ns_mov_b32 s49, 0x0000ffff")
    a(f"s_lshl_b32 s50, s{sG}, 7")
    a(f"s_add_u32 s50, s50, {WS_CLR}")
    a(f"v_add_u32 v{VCL}, s50, v90")
    a("v_and_b32 v87, 7, v1")
    a("v_lshlrev_b32 v87, 7, v87")
    a("v_bfe_u32 v88, v1, 3, 2")
    a("v_lshl_add_u32 v87, v88, 5, v87")
    a(f"s_lshl_b32 s50, s{sG}, 2")
    a(f"s_add_u32 s50, s50, {WS_CLR}")
    a("s_mov_b32 exec_lo, 0")
    a(f"v_add_u32 v{VCL}, s50, v87")
    exec_all(a)
    a(f"s_lshl_b32 s55, s{sHEAD}, 17")
    a(f"s_add_u32 s55, s55, {WS_KV}")
    if OPT["ks"]: a(f"s_lshl_b32 s47, s3, 11")
    else: a(f"s_mul_i32 s47, s3, {6*KB}")
    a(f"s_add_u32 s47, s47, {16*KB}")
    a("s_lshl_b32 s46, s3, 13")
    a(f"s_add_u32 s46, s46, {64*KB}")

def w2lane(a, vp, t):
    a(f"v_lshrrev_b32 v{vp}, 3, v1")
    a(f"v_and_b32 v{t}, 7, v1")
    a(f"v_lshlrev_b32 v{t}, 4, v{t}")
    a(f"v_lshl_add_u32 v{vp}, v{vp}, 10, v{t}")
def w2rd(a, pa, stage):
    tr_addr(a, pa, pa+1, row_shift=7, cg_mul=32)
    a(f"v_add_u32 v{pa}, s{stage}, v{pa}")
    a(f"v_add_u32 v{pa+1}, 512, v{pa}")
    a(f"v_add_u32 v{pa+2}, 64, v{pa}")
    a(f"v_add_u32 v{pa+3}, {512+64}, v{pa}")

def prep_issue(a):
    l2, ld, l3 = a.label("pw2"), a.label("pdn"), a.label("nor2")
    V0, V2, VT = 156, 157, 158
    a("s_lshl_b32 s45, s100, 12")
    a(f"s_add_u32 s45, s45, {L_PR1}")
    a("s_cmp_ge_u32 s2, 176")
    a(f"s_cbranch_scc1 {l2}")
    a(f"v_lshrrev_b32 v{V0}, 2, v1")
    a(f"v_mul_u32_u24 v{V0}, 2752, v{V0}")
    a(f"v_and_b32 v{VT}, 3, v1")
    a(f"v_lshl_add_u32 v{V0}, v{VT}, 4, v{V0}")
    a("s_lshr_b32 s43, s2, 4")
    a("s_lshl_b32 s43, s43, 2")
    a("s_add_u32 s43, s43, s100")
    a("s_and_b32 s42, s2, 15")
    a(f"s_mul_i32 s46, s42, {32*2752}")
    a("s_lshl_b32 s47, s43, 6")
    a("s_add_u32 s46, s46, s47")
    a("s_mov_b32 s47, s46")
    a(f"s_add_u32 s48, s46, {16*2752}\ns_add_u32 s49, s46, {16*2752}")
    a(f"s_branch {ld}")
    a(f"{l2}:")
    w2lane(a, V0, VT)
    for q in range(3): a(f"s_mov_b32 s{SW1+q}, s{SW2+q}\ns_mov_b32 s{SW3+q}, s{SW2+q}")
    a("s_sub_u32 s43, s2, 176")
    a("s_lshl_b32 s46, s43, 14")
    a("s_lshl_b32 s47, s100, 8")
    a("s_add_u32 s46, s46, s47")
    a("s_add_u32 s47, s46, 8192")
    a("s_add_u32 s48, s46, 128\ns_add_u32 s49, s47, 128")
    a(f"{ld}:")
    for q in range(4):
        a(f"s_add_u32 m0, s45, {q*KB}")
        a(f"buffer_load_dwordx4 v{V0}, {R(SW3 if q & 1 else SW1)}, s{46+q} offen lds", "prep")
    a("s_lshl_b32 s47, s100, 8")
    a("s_add_u32 s47, s47, s2")
    a("s_cmp_ge_u32 s47, 320")
    a(f"s_cbranch_scc1 {l3}")
    w2lane(a, V2, VT)
    a("s_cmp_eq_u32 s100, 0")
    for q in range(3): a(f"s_cselect_b32 s{SWO+q}, s{SWO+q}, s{SW2+q}")
    a("s_cselect_b32 s46, 0, 80")
    a(f"s_add_u32 s46, s46, s{sM}")
    a("s_lshl_b32 s46, s46, 14")
    a(f"s_lshl_b32 s47, s{sG}, 7")
    a("s_add_u32 s46, s46, s47")
    a("s_add_u32 s47, s46, 8192")
    a("s_lshl_b32 s45, s100, 11")
    a(f"s_add_u32 m0, s45, {L_PR2}")
    a(f"buffer_load_dwordx4 v{V2}, {R(SWO)}, s46 offen lds", "prep")
    a(f"s_add_u32 m0, s45, {L_PR2+KB}")
    a(f"buffer_load_dwordx4 v{V2}, {R(SWO)}, s47 offen lds", "prep")
    a(f"{l3}:")

def prep_addr(a):
    l2, ld = a.label("pa2"), a.label("pad")
    a("s_and_b32 s42, s100, 1")
    a("s_lshl_b32 s42, s42, 11")
    a(f"s_add_u32 s42, s42, {L_PR2}")
    w2rd(a, PB, 42)
    a("s_cmp_eq_u32 s100, 0")
    a("s_cselect_b32 s42, 0, 80")
    a(f"s_mov_b32 s43, {176*KB}\ns_mov_b32 s31, {WS_WT2}")
    a(f"s_cselect_b32 s43, {64*KB}, s43")
    a(f"s_cselect_b32 s31, {WS_WTO}, s31")
    a(f"s_add_u32 s42, s42, s{sM}")
    a(f"s_mul_i32 s43, s43, s{sG}")
    a("s_add_u32 s31, s31, s43")
    a("s_lshl_b32 s43, s42, 11")
    a("s_add_u32 s31, s31, s43")
    a("s_lshl_b32 s43, s100, 8")
    a("s_add_u32 s43, s43, s2")
    a("s_cmp_ge_u32 s43, 320")
    a(f"s_cselect_b32 s31, {OOB}, s31")
    a(f"v_mov_b32 v{PCN}, {L_CNT}\nv_mov_b32 v{PCN+1}, 1")
    a("s_lshl_b32 s45, s100, 12")
    a(f"s_add_u32 s45, s45, {L_PR1}")
    a("s_cmp_ge_u32 s2, 176")
    a(f"s_cbranch_scc1 {l2}")
    tr_addr(a, PA, PA+1, row_shift=6, cg_mul=1024)
    a(f"v_add_u32 v{PA}, s45, v{PA}")
    a(f"v_add_u32 v{PA+1}, 256, v{PA}")
    a(f"v_add_u32 v{PA+2}, 2048, v{PA}")
    a(f"v_add_u32 v{PA+3}, {2048+256}, v{PA}")
    a("s_mov_b32 s30, 32")
    a("s_lshr_b32 s43, s2, 4")
    a("s_lshl_b32 s43, s43, 2")
    a("s_add_u32 s43, s43, s100")
    a("s_lshl_b32 s43, s43, 1")
    a("s_and_b32 s42, s2, 15")
    a(f"s_mul_i32 s42, s42, {6*KB}")
    a(f"s_add_u32 s42, s42, {WS_WT13}")
    for u in range(2):
        d = 8 + 2*u
        a(f"s_mul_i32 s{d}, s43, 43691\ns_lshr_b32 s{d}, s{d}, 17")
        a(f"s_mul_i32 s{d}, s{d}, {93*KB}")
        a(f"s_lshl_b32 s{d+1}, s43, 10")
        a(f"s_add_u32 s{d}, s{d}, s{d+1}\ns_add_u32 s{d}, s{d}, s42")
        a(f"s_add_u32 s{d+1}, s{d}, {3*KB}")
        if u == 0: a("s_add_u32 s43, s43, 1")
    a(f"s_branch {ld}")
    a(f"{l2}:")
    w2rd(a, PA, 45)
    a(f"s_mov_b32 s30, {2*KB}")
    a("s_sub_u32 s43, s2, 176")
    a("s_lshl_b32 s8, s43, 11")
    a(f"s_mul_i32 s9, s100, {352*KB}")
    a("s_add_u32 s8, s8, s9")
    a(f"s_add_u32 s8, s8, {WS_WT2}")
    a(f"s_add_u32 s9, s8, {KB}")
    a(f"s_add_u32 s10, s8, {176*KB}\ns_add_u32 s11, s9, {176*KB}")
    a(f"{ld}:")

def prep_rd(a):
    a.waitvm("prep")
    for u in range(2):
        for q in range(4):
            if u: a(f"v_add_u32 v{PA+q}, s30, v{PA+q}")
            a(f"ds_read_b64_tr_b16 {vr(PF+8*u+2*q,2)}, v{PA+q}")
    for q in range(4): a(f"ds_read_b64_tr_b16 {vr(PF+16+2*q,2)}, v{PB+q}")

def prep_st(a, e):
    if e < 4: a(f"buffer_store_dwordx4 {vr(PF+4*e,4)}, v2, {R(SWS)}, s{8+e} offen sc1", "pst")
    else: a(f"buffer_store_dwordx4 {vr(PF+4*e,4)}, v2, {R(SWS)}, s31 offen offset:{(e-4)*KB} sc1", "pst")

def slot_O(a, d):
    a(f"s_lshl_b32 s{d}, s{sTT}, 5")
    a(f"s_add_u32 s{d}, s{d}, s{sHEAD}")
    a(f"s_lshl_b32 s{d}, s{d}, 10")
    a(f"s_add_u32 s{d}, s{d}, {WS_O}")
def slot_H(a, d, t):
    a(f"s_lshl_b32 s{d}, s{sTC}, 3")
    a(f"s_add_u32 s{d}, s{d}, s{sCS}")
    a(f"s_lshl_b32 s{d}, s{d}, 2")
    a(f"s_lshr_b32 s{t}, s3, 1")
    a(f"s_add_u32 s{d}, s{d}, s{t}")
    a(f"s_lshl_b32 s{d}, s{d}, 10")
    a(f"s_add_u32 s{d}, s{d}, {WS_H}")
def d_tile(a, d, t):
    a(f"s_lshl_b32 s{d}, s{sG}, 2")
    a(f"s_and_b32 s{t}, s3, 3")
    a(f"s_add_u32 s{d}, s{d}, s{t}")
    a(f"s_lshl_b32 s{d}, s{d}, 1")
    a(f"s_lshr_b32 s{t}, s3, 2")
    a(f"s_add_u32 s{d}, s{d}, s{t}")
def slot_A(a, d, t):
    d_tile(a, d, t)
    a(f"s_mul_i32 s{d}, s{d}, 86")
    a(f"s_mul_i32 s{t}, s{sM}, 3")
    a(f"s_add_u32 s{d}, s{d}, s{t}")
    a(f"s_lshl_b32 s{d}, s{d}, 10")
    a(f"s_add_u32 s{d}, s{d}, {WS_ACT}")
    a(f"s_cmp_ge_u32 s{sM}, 29")
    a(f"s_cselect_b32 s{d}, {OOB}, s{d}")
    a(f"s_cmp_ge_u32 s{sM}, 28")
    a(f"s_cselect_b32 s{t}, {OOB}, s{d}")
def nosent(a, d):
    for q in range(4): a(f"v_min_u32 v{d+q}, -2, v{d+q}")
def maxacc(a, m, d, first=False):
    if first:
        a(f"v_max3_u32 v{m}, v{d}, v{d+1}, v{d+2}")
        a(f"v_max_u32 v{m}, v{m}, v{d+3}")
    else:
        a(f"v_max3_u32 v{m}, v{m}, v{d}, v{d+1}")
        a(f"v_max3_u32 v{m}, v{m}, v{d+2}, v{d+3}")

def attn_setup2(a):
    for i in range(16): a(f"v_mov_b32 v{VF+i}, 0")
    for i in range(16): a(f"v_mov_b32 v{O+i}, 0")
    for q in range(4): a(f"v_mov_b32 v{SENT+q}, -1")
    a("s_mov_b32 exec_lo, 0x00110000\ns_mov_b32 exec_hi, 0x00110000")
    for i in range(16): a(f"v_mov_b32 v{VF+i}, 0x3f803f80")
    exec_all(a)

def wreg(f): return WO + 4*f

def attn_loop(a, older):
    NT = 64
    TW = OPT["tw"]
    JOBS = {}
    def put(h, job):
        while h in JOBS: h += 1
        JOBS[h] = job
        return h
    def spread(jobs, t0, t1):
        n = len(jobs)
        return [put(2*t0 + (i*2*(t1-t0))//n, j) for i, j in enumerate(jobs)]
    TC, TC1, WE = OPT["tc"], OPT["tc1"], OPT["we"]
    if OPT["tp"] >= 0:
        hs = [put(2*OPT["tp"] + 1 + OPT["tss"]*e, ("s", e)) for e in range(6)]
        assert hs[-1] < 2*OPT["tf"]
    spread([("d", 0, u) for u in range(6)], max(24, TW), OPT["da"])
    spread([("d", 1, u) for u in range(6)], 48, OPT["db"])
    hc = spread([("c", j) for j in range(5)], TC, TC1)
    nl = OPT["wl"]
    hw = spread([("w", f) for f in range(38-nl)], TW, WE) + spread([("w", f) for f in range(38-nl, 38)], 48, 60)
    assert hw == sorted(hw) and hw[16] > 2*max(TW, OPT["tf"]+1) + 1 and hw[37] > hc[-1] and hw[37] < 124 and hc[-1] < 92
    def rdK(t): a(f"ds_read_b128 {vr(KF+4*(t&1),4)}, v{VK if t < 32 else VK2} offset:{(t%32)*2048}")
    def rdV(t):
        a("s_mov_b64 exec, s[48:49]")
        for jj in range(2): a(f"ds_read_b128 {vr(VF+8*(t&1)+4*jj,4)}, v{VV if t < 32 else VV2} offset:{(t%32)*2048+512*jj}")
        exec_all(a)
    def qk(t): mfma(a, SB if t & 1 else SA, KF+4*(t&1), Q, "0")
    def pv(t, jj):
        S = SB if t & 1 else SA
        a(f"v_smfmac_f32_32x32x32_bf16 {vr(O,16)}, {vr(VF+8*(t&1)+4*jj,4)}, {vr(S+8*jj,8)}, v{IDX}")
    def wload(f):
        sn = 51 if f < 16 else 52
        a(f"buffer_load_dwordx4 {vr(wreg(f),4)}, v{VWR1 if f & 1 else VWR0}, {R(SWS)}, s{sn} offen offset:{(f&2)*1024}")
        if f & 3 == 3: a(f"s_add_u32 s{sn}, s{sn}, 4096")
    def kvp(stage, u):
        if stage == 1 and OPT["ks"]:
            if u % 2 == 0:
                a(f"s_add_u32 m0, s47, {(u//2)*16*KB}")
                a(f"s_add_u32 s45, s55, m0")
            else: a("s_sub_u32 m0, s45, s55")
            a(f"buffer_load_dwordx4 v2, {R(SWS)}, s45 offen offset:{(u%2)*KB} sc1 lds", "kv1" if u < 2 else "kv1b")
            return
        if u % 4 == 0:
            a(f"s_add_u32 m0, s{47 if stage == 1 else 46}, {u*KB}")
            a(f"s_add_u32 s45, s55, m0")
        else: a("s_sub_u32 m0, s45, s55")
        a(f"buffer_load_dwordx4 v2, {R(SWS)}, s45 offen offset:{(u%4)*KB} sc1 lds", f"kv{stage}")
    def w13(hf, u):
        if u % 4 == 0:
            a(f"s_add_u32 m0, s54, {hf*48*KB + u*KB}")
            a(f"s_add_u32 s50, s53, {hf*48*KB + u*KB}")
        a(f"buffer_load_dwordx4 v2, {R(SWS)}, s50 offen offset:{(u%4)*KB} lds")
    def tch(v, so, n):
        a(f"v_lshlrev_b32 v{v}, 7, v1")
        a(f"s_mov_b64 exec, {hex((1 << n) - 1)}")
        a(f"buffer_load_dword v{v}, v{v}, {R(SWS)}, s{so} offen sc1")
        exec_all(a)
    def clr(j):
        sv = vr(SENT, 4)
        if j == 0:
            slot_O(a, 42)
            a(f"buffer_store_dwordx4 {sv}, v2, {R(SWS)}, s42 offen sc1", "clr")
        elif j == 1:
            slot_H(a, 43, 44)
            if OPT["ta"] & 1: tch(87, 43, 8)
            flavored(a, [f"buffer_store_dwordx4 {sv}, v2, {R(SWS)}, s43 offen"], "clr")
        else:
            slot_A(a, 42, 43)
            if OPT["ta"] & 2 and j == 2: tch(88, 42, 24)
            flavored(a, [f"buffer_store_dwordx4 {sv}, v2, {R(SWS)}, s{43 if j == 4 else 42} offen offset:{(j-2)*KB}"], "clr")
    def job(h):
        if h not in JOBS: return
        j = JOBS[h]; sj = OPT["sj"]
        if j[0] == "w" and sj & 1: wload(j[1])
        if j[0] == "d" and sj & 2: w13(j[1], j[2])
        if j[0] == "c" and sj & 4: clr(j[1])
        if j[0] == "s" and not older: prep_st(a, j[1])
    def side(t):
        sv = vr(SENT, 4)
        if t == TC - 3:
            a(f"s_lshl_b32 s44, s{sG}, 7")
            a(f"s_add_u32 s44, s44, {WS_IDS}")
            a(f"buffer_load_dword v89, v90, {R(SWS)}, s44 offen sc1")
        if t == TC: ids_check(a, 89)
        if t == 48 and older:
            a(f"v_mov_b32 v89, s{sID}")
            a(f"s_lshl_b32 s43, s{sG}, 5")
            a(f"s_add_u32 s43, s43, s{sM}")
            a("s_lshl_b32 s43, s43, 2")
            a(f"s_add_u32 s43, s43, {WS_CLR}")
            a("s_cmp_eq_u32 s3, 0")
            a(f"s_cselect_b32 s43, s43, {OOB}")
            a("s_mov_b64 exec, 1")
            a(f"buffer_store_dword v89, off, {R(SWS)}, s43 sc1")
            exec_all(a)
        if t == OPT['tp'] and not older: prep_rd(a)
        if t == TF and not older:
            a.waitvm("pst")
            a("s_mov_b64 exec, 1")
            a(f"ds_add_rtn_u32 v{PCN+1}, v{PCN}, v{PCN+1}")
            exec_all(a)
        if t == TF + 1 and not older:
            a(f"v_readfirstlane_b32 s42, v{PCN+1}")
            a(f"v_mov_b32 v{PCN}, s{sT}")
            a(f"s_lshl_b32 s43, s{sG}, 5")
            a(f"s_add_u32 s43, s43, s{sM}")
            a("s_lshl_b32 s43, s43, 2")
            a(f"s_add_u32 s43, s43, {WS_FW}")
            a("s_cmp_eq_u32 s42, 3")
            a(f"s_cselect_b32 s43, s43, {OOB}")
            a("s_mov_b64 exec, 1")
            a(f"buffer_store_dword v{PCN}, off, {R(SWS)}, s43 sc1")
            exec_all(a)
        if t == TW - 3 and not older:
            a("s_cmp_eq_u32 s3, 7")
            a(f"s_cselect_b32 s101, {WS_FW}, {OOB}")
            ldfl()
    def ldfl(): a(f"buffer_load_dwordx4 {vr(FL,4)}, v2, {R(SWS)}, s101 offen sc1")
    def chkfl():
        lab = a.label("nofl")
        a.waitvm()
        a("s_cmp_lg_u32 s3, 7")
        a(f"s_cbranch_scc1 {lab}")
        poll(a, ldfl, [FL, FL+1, FL+2, FL+3], first_issued=True)
        a(f"{lab}:")
    TF = OPT["tf"]
    def ldclr(): a(f"buffer_load_dword v89, v{VCL}, {R(SWS)}, 0 offen sc1")
    if older: a.waitvm("kv0")
    pm(a, "bw")
    a("s_barrier")
    pm(a, "b0")
    a(f"ds_read_b128 {vr(Q,4)}, v{VST}")
    rdK(0); rdK(1); rdV(0)
    qk(0)
    if not older: a("s_setprio 1")
    for t in range(NT):
        S = SB if t & 1 else SA
        def ex(lo, hi):
            for r in range(lo, hi): a(f"v_exp_f32 v{S+r}, v{S+r}")
        if older:
            if t % 4 == 0: a("s_setprio 2")
            if t % 4 == 3: a("s_setprio 0")
        pm(a, f"bt{t}")
        if t == 6: a.waitvm("kv1")
        if t == TW and OPT["ks"]:
            assert TW <= 14
            a.waitvm("kv1b")
        if t == 24: a.waitvm("kv2")
        if t == 48: a.waitvm("clr")
        if t == TW and not older: chkfl()
        if t in (6, 24, 48, TW): a("s_barrier")
        pm(a, f"bu{t}")
        ex(0, 2)
        if t > 0: pv(t-1, 1)
        sj = OPT["sj"]
        if t < 3: kvp(1, 2*t); kvp(1, 2*t+1)
        if 3 <= t < 11: kvp(2, t-3)
        side(t)
        job(2*t)
        if t == 56: a(f"buffer_load_dwordx4 {vr(XRES,4)}, v{VRES}, {R(SX)}, s{sRES} offen")
        if t == 58: ldclr()
        ex(2, 7)
        if t + 1 < NT: qk(t+1)
        if t + 2 < NT: rdK(t+2)
        ex(7, 12)
        pv(t, 0)
        if t + 1 < NT: rdV(t+1)
        job(2*t+1)
        ex(12, 16)
    pv(NT-1, 1)
    a("s_setprio 0")
    a("s_waitcnt vmcnt(0) lgkmcnt(0)")
    lp, dn, ck = a.label("cpoll"), a.label("cdone"), a.label("cchk")
    a(f"s_mov_b32 s{sCNT}, {1 << OPT['pl']}")
    a(f"s_branch {ck}")
    a(f"{lp}:")
    ldclr()
    a("s_waitcnt vmcnt(0)")
    a(f"{ck}:")
    a(f"v_xor_b32 v88, s{sID}, v89")
    a("v_lshlrev_b32 v87, 4, v88")
    a("v_cmp_ne_u32 vcc, 0, v87")
    a(f"s_cbranch_vccz {dn}")
    a(f"s_sub_u32 s{sCNT}, s{sCNT}, 1")
    a(f"s_cbranch_scc0 {lp}")
    a(f"{dn}:")
    a("v_cmp_ne_u32 vcc, 0, v88")
    a("s_cmp_eq_u32 vcc_lo, 0")
    a(f"s_cselect_b32 s{sFAST}, 1, 0")
    a("s_nop 15\ns_nop 3")

def attn_finish(a):
    pm(a, "b9")
    a("v_mov_b32 v3, 0")
    for r in range(8): a(f"v_fma_f32 v3, v{O+r}, 0, v3")
    a("v_cmp_u_f32 vcc, v3, v3")
    a(f"v_mov_b32 v3, {fh(2.0**-64)}")
    a(f"v_cmp_nle_f32 s[42:43], v3, v{O+8}")
    a(f"v_mov_b32 v3, {fh(2.0**64)}")
    a(f"v_cmp_nge_f32 s[44:45], v3, v{O+8}")
    a("s_or_b64 vcc, vcc, s[42:43]")
    a("s_or_b64 vcc, vcc, s[44:45]")
    a("s_cbranch_scc1 L_fallback")
    a("L_attn_fin:")
    a(f"v_rcp_f32 v3, v{O+8}")
    slot_O(a, 42)
    for r in range(8): a(f"v_mul_f32 v{O+r}, v{O+r}, v3")
    pack8(a, KF, O)
    nosent(a, KF)
    a(f"buffer_store_dwordx4 {vr(KF,4)}, v2, {R(SWS)}, s42 offen sc1")

def fallback(a):
    a("L_fallback:")
    a(f"s_lshl_b32 s42, s{sHEAD}, 17")
    a(f"s_add_u32 s42, s42, {WS_KV}")
    a("s_mov_b32 s43, s42")
    a("v_mov_b32 v3, 0xff800000")
    a("s_mov_b32 s44, 64")
    a("L_fb_max:")
    a(f"buffer_load_dwordx4 {vr(KF,4)}, v2, {R(SWS)}, s43 offen sc1")
    a("s_add_u32 s43, s43, 2048")
    mfma(a, SA, KF, Q, "0")
    for r in range(0, 16, 2): a(f"v_max3_f32 v3, v3, v{SA+r}, v{SA+r+1}")
    a("s_sub_u32 s44, s44, 1")
    a("s_cmp_lg_u32 s44, 0")
    a("s_cbranch_scc1 L_fb_max")
    a(f"v_mov_b32 v{SB}, v3")
    a(f"v_permlane32_swap_b32 v{SB}, v3")
    a(f"v_max_f32 v3, v3, v{SB}")
    for r in range(16):
        a(f"v_sub_f32 v{SB+r}, 0, v3")
        a(f"v_mov_b32 v{O+r}, 0")
    a("s_mov_b32 s44, 64")
    a("L_fb_pv:")
    a(f"buffer_load_dwordx4 {vr(KF,4)}, v2, {R(SWS)}, s42 offen sc1")
    a("s_mov_b64 exec, s[48:49]")
    for jj in range(2): a(f"buffer_load_dwordx4 {vr(VF+4*jj,4)}, v{VV}, {R(SWS)}, s42 offen offset:{512*jj} sc1")
    exec_all(a)
    a("s_add_u32 s42, s42, 2048")
    mfma(a, SA, KF, Q, vr(SB, 16))
    for r in range(16): a(f"v_exp_f32 v{SA+r}, v{SA+r}")
    for jj in range(2): a(f"v_smfmac_f32_32x32x32_bf16 {vr(O,16)}, {vr(VF+4*jj,4)}, {vr(SA+8*jj,8)}, v{IDX}")
    a("s_nop 15\ns_nop 3")
    a("s_sub_u32 s44, s44, 1")
    a("s_cmp_lg_u32 s44, 0")
    a("s_cbranch_scc1 L_fb_pv")
    a("s_branch L_attn_fin")

VA2 = 254
def spoll(a, load, regs, m, first_issued=False):
    lp, dn, ck = a.label("spoll"), a.label("sdone"), a.label("schk")
    a(f"s_mov_b32 s{sCNT}, {1 << OPT['pl']}")
    if first_issued: a(f"s_branch {ck}")
    a(f"{lp}:")
    load()
    a("s_waitcnt vmcnt(0)")
    if first_issued: a(f"{ck}:")
    if m is None: m = regs[0]
    else:
        for q, d in enumerate(regs): maxacc(a, m, d, q == 0)
    a(f"v_cmp_eq_u32 vcc, -1, v{m}")
    a(f"s_cbranch_vccz {dn}")
    a(f"s_sub_u32 s{sCNT}, s{sCNT}, 1")
    a(f"s_cbranch_scc0 {lp}")
    a(f"{dn}:")

def phaseC(a):
    a("s_lshr_b32 s46, s3, 1")
    a(f"s_lshl_b32 s45, s{sTC}, 5")
    a("s_lshl_b32 s44, s46, 3")
    a("s_add_u32 s45, s45, s44")
    a("s_lshl_b32 s45, s45, 10")
    a(f"s_add_u32 s45, s45, {WS_O}")
    a("s_add_u32 s47, s45, 4096")
    def ldO():
        for kk in range(8): a(f"buffer_load_dwordx4 {vr(4+4*kk,4)}, v2, {R(SWS)}, s{45 if kk < 4 else 47} offen offset:{(kk&3)*1024} sc1")
    pm(a, "c0")
    if OPT["oe"]: ldO()
    a(f"v_add_u32 v{VA2}, {48*KB}, v2")
    a(f"s_mul_i32 s44, s3, {12*KB}")
    a(f"v_add_u32 v88, s44, v2")
    a("v_lshrrev_b32 v3, 2, v1")
    a("v_xor_b32 v3, v3, v1")
    a("v_bfe_u32 v3, v3, 2, 1")
    a("v_add_u32 v3, -1, v3")
    for q in range(4): a(f"v_and_b32 v{84+q}, 0x3f803f80, v3")
    a(f"v_add_u32 v91, {L_CS13}, v90")
    a("s_barrier")
    pm(a, "c0b")
    for hf in range(2):
        for q in range(6): a(f"ds_read_b128 {vr(36+4*q,4)}, v88 offset:{(6*hf+q)*KB}")
        for q in range(6): mfs(a, 60+4*(q%3), 84, 36+4*q, "0" if hf == 0 and q < 3 else None)
    exec_lo32(a)
    for j in range(3): a(f"ds_add_f32 v91, v{60+4*j} offset:{128*j}")
    exec_all(a)
    if OPT["cpr"]:
        a("v_lshlrev_b32 v89, 10, v1\nv_mov_b32 v3, 0")
        def prO():
            a("s_mov_b64 exec, 0xff")
            a(f"buffer_load_dword v3, v89, {R(SWS)}, s45 offen offset:1020 sc1")
            exec_all(a)
        spoll(a, prO, [3], None)
    spoll(a, ldO, [4+4*kk for kk in range(8)], 3, first_issued=OPT["oe"])
    pm(a, "c1")
    for s in range(1, 4):
        a(f"s_xor_b32 s44, s3, {2*s}")
        a(f"s_mul_i32 s44, s44, {6*KB}")
        a(f"s_add_u32 s44, s44, {L_REDC + (s-1)*2*KB}")
        a(f"v_add_u32 v{84+s}, s44, v2")
    a(f"s_mul_i32 s44, s3, {6*KB}")
    a(f"s_add_u32 s44, s44, {L_REDC}")
    a("v_add_u32 v84, s44, v2")
    def wrc(s, e): a(f"ds_write_b128 v{84+s}, {vr(36+8*s+4*e,4)} offset:{1024*e}")
    if OPT["cj"]:
        for tj in (1, 0):
            for kk in range(8):
                mfma(a, 36+16*tj, WO+4*(2*kk+tj), 4+4*kk, "0" if kk == 0 else None)
                if tj == 0 and 2 <= kk < 6: wrc(2 + ((kk-2) >> 1), kk & 1)
        wrc(1, 0); wrc(1, 1)
    else:
        for kk in range(8):
            for tj in range(2): mfma(a, 36+16*tj, WO+4*(2*kk+tj), 4+4*kk, "0" if kk == 0 else None)
        for s in (1, 2, 3): wrc(s, 0); wrc(s, 1)
    for j in range(4):
        a(f"v_lshlrev_b32 v{4+2*j}, 16, v{XRES+j}")
        a(f"v_and_b32 v{5+2*j}, 0xffff0000, v{XRES+j}")
    for r in range(8): a(f"v_add_f32 v{36+r}, v{36+r}, v{4+r}")
    a.waitlg()
    a("s_barrier")
    for s in range(3):
        a(f"ds_read_b128 {vr(44+8*s,4)}, v84 offset:{s*2048}")
        a(f"ds_read_b128 {vr(48+8*s,4)}, v84 offset:{s*2048+1024}")
    slot_H(a, 44, 45)
    for s in range(3):
        for r in range(8): a(f"v_add_f32 v{36+r}, v{36+r}, v{44+8*s+r}")
    pack8(a, HB, 36)
    nosent(a, HB)
    flavored(a, [f"buffer_store_dwordx4 {vr(HB,4)}, v2, {R(SWS)}, s44 offen"])
    a("v_add_f32 v4, v36, v37\nv_mul_f32 v5, v36, v36\nv_fmac_f32 v5, v37, v37")
    for r in range(2, 8):
        a(f"v_add_f32 v4, v4, v{36+r}")
        a(f"v_fmac_f32 v5, v{36+r}, v{36+r}")
    a("v_mov_b32 v6, v4\nv_mov_b32 v7, v5")
    a("v_permlane32_swap_b32 v6, v4\nv_permlane32_swap_b32 v7, v5")
    a("v_add_f32 v4, v4, v6\nv_add_f32 v5, v5, v7")
    a("s_and_b32 s44, s3, 1")
    a("s_lshl_b32 s44, s44, 8")
    a(f"s_add_u32 s44, s44, {L_ST2}")
    a("v_lshl_add_u32 v6, v90, 1, s44")
    exec_lo32(a)
    a("ds_add_f32 v6, v4\nds_add_f32 v6, v5 offset:4")
    exec_all(a)
    a(f"v_mov_b32 v{VST}, v91")
    pm(a, "c2")
    a.waitlg()
    a("s_barrier")
    lab = a.label("nost")
    a("s_cmp_ge_u32 s3, 2")
    a(f"s_cbranch_scc1 {lab}")
    a("ds_read_b64 v[4:5], v6")
    a(f"s_lshl_b32 s44, s{sTC}, 3")
    a(f"s_add_u32 s44, s44, s{sCS}")
    a("s_lshl_b32 s44, s44, 9")
    a(f"s_add_u32 s44, s44, {WS_ST2}")
    a(f"v_mov_b32 v13, s{sT}\nv_mov_b32 v15, s{sT}")
    a("v_lshlrev_b32 v7, 2, v90")
    a("v_mov_b32 v12, v4\nv_mov_b32 v14, v5")
    exec_lo32(a)
    flavored(a, [f"buffer_store_dwordx4 v[12:15], v7, {R(SWS)}, s44 offen"])
    exec_all(a)
    a(f"{lab}:")
    a("@forget")

def bump(a):
    lab2 = a.label("nobump")
    a("s_or_b32 s44, s2, s3")
    a("s_cmp_lg_u32 s44, 0")
    a(f"s_cbranch_scc1 {lab2}")
    a("v_mov_b32 v3, s63")
    a("s_mov_b64 exec, 1")
    a(f"buffer_store_dword v3, off, {R(SWS)}, 0 sc1")
    a("s_waitcnt vmcnt(0)")
    a(f"{lab2}:")

def phaseD(a):
    ACC, WF, HR, CSF, STL, MF, C1, IR, MX = 4, 52, 76, 124, 136, 152, 244, 245, 246
    NR = 12
    WB = [WF, WF+12, CSF]
    def passed():
        a(f"v_mov_b32 v3, {L_CN2}\nv_mov_b32 v{MX}, 1")
        a("s_mov_b64 exec, 1")
        a(f"ds_add_u32 v3, v{MX}")
        exec_all(a)
    lab = a.label("dgo")
    a(f"s_cmp_lt_u32 s{sM}, 29")
    a(f"s_cbranch_scc1 {lab}")
    passed()
    a("s_branch L_djoin")
    a(f"{lab}:")
    d_tile(a, 46, 44)
    a("s_lshl_b32 s44, s46, 15")
    a(f"s_add_u32 s44, s44, {WS_H}")
    a("s_lshl_b32 s47, s46, 12")
    a(f"s_add_u32 s47, s47, {WS_ST2}")
    a("v_lshrrev_b32 v3, 5, v1")
    a("v_lshlrev_b32 v247, 11, v3")
    a("v_lshl_add_u32 v247, v90, 2, v247")
    PL = OPT["dpl"]
    sh = {64: 9, 32: 10, 16: 11, 8: 12}[PL]
    a(f"v_lshlrev_b32 v255, {sh}, v1")
    a(f"v_add_u32 v255, {(1 << sh) - 4}, v255")
    a(f"s_mov_b32 s101, {OPT['rb']}")
    def rdW(ks, j, d):
        a(f"ds_read_b128 {vr(d,4)}, v{VA2 if ks >= 16 else 2} offset:{(ks&15)*3*KB + j*KB}")
    lab = a.label("dyoung")
    a("s_cmp_ge_u32 s3, 4")
    a(f"s_cbranch_scc1 {lab}")
    a(f"s_setprio {OPT['dpr']}")
    a(f"{lab}:")
    a("L_dredo:")
    a("v_mov_b32 v3, 0")
    for ks in range(2):
        for j in range(3): rdW(ks, j, WB[ks]+4*j)
    SP = OPT["dsp"]
    def probe():
        a("s_mov_b32 s45, s44")
        if PL < 64: a(f"s_mov_b64 exec, {hex((1 << PL) - 1)}")
        a(f"buffer_load_dword v3, v255, {R(SWS)}, s44 offen sc1")
        if PL < 64: exec_all(a)
        for ks in range(SP): ldH(ks)
    def ldH(ks):
        if ks and ks % 4 == 0: a("s_add_u32 s45, s45, 4096")
        a(f"buffer_load_dwordx4 {vr(HR+4*(ks%NR),4)}, v2, {R(SWS)}, s45 offen offset:{(ks&3)*1024} sc1")
    def ldst():
        for p in range(4): a(f"buffer_load_dwordx4 {vr(STL+4*p,4)}, v247, {R(SWS)}, s47 offen offset:{p*512} sc1")
    def stats():
        poll(a, ldst, [STL+1, STL+3, STL+5, STL+7, STL+9, STL+11, STL+13, STL+15], first_issued=True)
        for p in range(1, 4):
            a(f"v_add_f32 v{STL}, v{STL}, v{STL+4*p}")
            a(f"v_add_f32 v{STL+2}, v{STL+2}, v{STL+4*p+2}")
        a(f"v_mov_b32 v{STL+1}, v{STL}\nv_mov_b32 v{STL+3}, v{STL+2}")
        a(f"v_permlane32_swap_b32 v{STL+1}, v{STL}\nv_permlane32_swap_b32 v{STL+3}, v{STL+2}")
        a(f"v_add_f32 v{STL}, v{STL}, v{STL+1}\nv_add_f32 v{STL+2}, v{STL+2}, v{STL+3}")
        a(f"v_mul_f32 v{STL}, {fh(-1/512)}, v{STL}")
        a(f"v_mul_f32 v{STL+1}, v{STL}, v{STL}")
        a(f"v_mov_b32 v{STL+3}, {fh(1/512)}")
        a(f"v_fma_f32 v{IR}, v{STL+2}, v{STL+3}, -v{STL+1}")
        a(f"v_max_f32 v{IR}, 0, v{IR}")
        a(f"v_add_f32 v{IR}, {fh(1e-5)}, v{IR}")
        a(f"v_rsq_f32 v{C1}, v{IR}")
        hilo(a, MF, STL, STL+4, False)
        a(f"v_mul_f32 v{C1}, {fh(-LOG2E)}, v{C1}")
        slot_A(a, 50, 51)
    spoll(a, probe, [3], None)
    pm(a, "d0")
    seq = [(j, ks) for j in range(3) for ks in range(24, 32)]
    def rdT(n):
        j, ks = seq[n]
        rdW(ks, j, WF+4*(n%6))
    N0 = max(OPT["dn0"], SP)
    nl = N0
    for ks in range(SP, N0): ldH(ks)
    for ks in range(24):
        if ks == 22: stats()
        for j in range(3):
            if ks < 22: rdW(ks+2, j, WB[(ks+2)%3]+4*j)
            elif ks == 22: rdT(j)
            elif j < 2: rdT(3+j)
            mfma(a, ACC+16*j, WB[ks%3]+4*j, HR+4*(ks%NR), "0" if ks == 0 else None)
            if j == 0: maxacc(a, MX, HR+4*(ks%NR), ks == 0)
            if j == 1 and nl < 32 and nl < ks + NR: ldH(nl); nl += 1
        if nl < 32 and nl <= ks + NR: ldH(nl); nl += 1
        if ks == 8: ldst()
        pm(a, f"dk{ks}")
    assert nl == 32
    for ks in range(24, 32): maxacc(a, MX, HR+4*(ks%NR))
    a(f"v_cmp_eq_u32 vcc, -1, v{MX}")
    a("s_cbranch_vccnz L_dfix")
    a("L_dok:")
    passed()
    CS = STL + 8
    for j in range(3): a(f"v_mov_b32 v{CS+j}, 0")
    exec_lo32(a)
    for j in range(3): a(f"ds_read_b32 v{CS+j}, v{VST} offset:{128*j}")
    exec_all(a)
    def epi(j):
        c = ACC + 16*j; T = STL + 8*(j & 1)
        L = []
        for r in range(8): L.append(f"v_mul_f32 v{T+r}, v{C1}, v{c+r}")
        for r in range(8): L.append(f"v_exp_f32 v{T+r}, v{T+r}")
        for r in range(8): L.append(f"v_mul_f32 v{c+r}, v{c+r}, v{c+8+r}")
        for r in range(8): L.append(f"v_fma_f32 v{T+r}, v{T+r}, v{IR}, v{IR}")
        for r in range(8): L.append(f"v_rcp_f32 v{T+r}, v{T+r}")
        for r in range(8): L.append(f"v_mul_f32 v{c+r}, v{c+r}, v{T+r}")
        for q in range(4): L.append(f"v_cvt_pk_bf16_f32 v{c+8+q}, v{c+2*q}, v{c+2*q+1}")
        for q in range(4): L.append(f"v_min_u32 v{c+8+q}, -2, v{c+8+q}")
        return L
    def st(j):
        flavored(a, [f"buffer_store_dwordx4 {vr(ACC+16*j+8,4)}, v2, {R(SWS)}, s{51 if j == 2 else 50} offen offset:{j*1024}"])
    pend = []
    for n, (j, ks) in enumerate(seq):
        if n + 5 < len(seq): rdT(n+5)
        mfma(a, ACC+16*j, WF+4*(n%6), HR+4*(ks%NR))
        if 2 <= n < 5: hilo(a, CSF+4*(n-2), CS+n-2, CS+4, True)
        if ks == 31:
            pm(a, f"dg{j}")
            mfma(a, ACC+16*j, CSF+4*j, MF)
            if pend:
                for l in pend: a(l)
                st(j-1)
            pend = epi(j)
        elif pend and ks >= 26:
            for l in pend[:11]: a(l)
            pend = pend[11:]
    for l in pend: a(l)
    st(2)
    a("s_setprio 0")
    a("L_djoin:")
    a("@forget")
    pm(a, "d9")

def dfix(a):
    a("L_dfix:")
    a("s_waitcnt vmcnt(0) lgkmcnt(0)")
    a("s_nop 15\ns_nop 3")
    a("s_sub_u32 s101, s101, 1")
    a("s_cbranch_scc0 L_dredo")
    a("s_branch L_dok")

def e_ld(a, n):
    T, kk = n // 11, n % 11
    d = vr(4 + 44*T + 4*kk, 4)
    if kk < 9:
        a(f"buffer_load_dwordx4 {d}, v2, {R(SWS)}, s{50+4*T+(kk>>2)} offen offset:{(kk&3)*1024} sc1")
    else:
        a(f"buffer_load_dwordx4 {d}, v2, {R(SWS)}, s{96+2*T+kk-9} offen sc1")

def phaseE(a):
    AF, ACC, MX, PV, PR = 4, 92, 255, 254, 253
    a("s_mul_i32 s46, s3, 11")
    for T in range(2):
        b = 50 + 4*T
        a(f"s_and_b32 s{b}, s{sTC}, 0xfffffffe")
        if T: a(f"s_add_u32 s{b}, s{b}, 1")
        a(f"s_mul_i32 s{b}, s{b}, 86")
        a(f"s_add_u32 s{b+3}, s{b}, 85")
        a(f"s_add_u32 s{b}, s{b}, s46")
        a(f"s_lshl_b32 s{b}, s{b}, 10\ns_lshl_b32 s{b+3}, s{b+3}, 10")
        a(f"s_add_u32 s{b}, s{b}, {WS_ACT}\ns_add_u32 s{b+3}, s{b+3}, {WS_ACT}")
        a(f"s_add_u32 s{b+1}, s{b}, 4096\ns_add_u32 s{b+2}, s{b}, 8192")
        for q in range(2):
            a(f"s_add_u32 s{96+2*T+q}, s{b}, {(9+q)*KB}")
            a(f"s_min_u32 s{96+2*T+q}, s{96+2*T+q}, s{b+3}")
    EH = OPT["epl"] == 22
    a("s_sub_u32 s44, s97, s50")
    if EH: a("s_add_u32 s44, s44, 512")
    a(f"v_lshlrev_b32 v{PV}, {9 if EH else 10}, v1")
    a(f"v_min_u32 v{PV}, s44, v{PV}")
    a(f"s_mov_b32 s101, {OPT['rb']}")
    a("s_lshr_b32 s46, s3, 1")
    a("s_and_b32 s47, s3, 1")
    def ldpr(T):
        a(f"s_mov_b64 exec, {hex((1 << OPT['epl']) - 1)}")
        a(f"buffer_load_dword v{PR}, v{PV}, {R(SWS)}, s{50+4*T} offen offset:{508 if EH else 1020} sc1")
        exec_all(a)
    a(f"v_mov_b32 v{PR}, 0")
    SP = OPT["esp"]
    def wr(T, q):
        b = ACC + 32*T + 16*(q >> 1) + 8*(q & 1)
        lab = a.label("own")
        a(f"s_xor_b32 s45, s47, {T}")
        if q == 0:
            a("s_cmp_eq_u32 s45, 0")
            a(f"s_cbranch_scc1 {lab}")
        a(f"s_xor_b32 s44, s46, {q}")
        a(f"s_mul_i32 s44, s44, 7")
        a("s_add_u32 s44, s44, s45")
        a("s_lshl_b32 s44, s44, 11")
        a(f"s_add_u32 s44, s44, {(L_REDE[T] + (2*q-1)*2*KB) & 0xffffffff}")
        a(f"v_add_u32 v{244+q}, s44, v2")
        a(f"ds_write_b128 v{244+q}, {vr(b,4)}")
        a(f"ds_write_b128 v{244+q}, {vr(b+4,4)} offset:1024")
        if q == 0: a(f"{lab}:")
    for T in range(2):
        def probe():
            ldpr(T)
            for n in range(SP): e_ld(a, 11*T+n)
        pre = T == 1 and OPT["epr"] >= 0
        if pre:
            lp, go = a.label("eslow"), a.label("ego")
            a(f"v_cmp_eq_u32 vcc, -1, v{PR}")
            a(f"s_cbranch_vccz {go}")
            spoll(a, lambda: ldpr(T), [PR], None)
            a(f"{go}:")
            nl = 0
        else:
            spoll(a, probe, [PR], None)
            nl = SP
        pm(a, f"e{T}s")
        N0 = OPT["en0"]
        while nl < N0: e_ld(a, 11*T+nl); nl += 1
        if T == 1:
            for q in range(OPT["ew0"]): wr(0, q)
        a(f"L_eredo{T}:")
        for kk in range(11):
            for tj in range(2):
                mfma(a, ACC+32*T+16*tj, W2+4*(2*kk+tj), AF+44*T+4*kk, "0" if kk == 0 else None)
                if tj == 0: maxacc(a, MX, AF+44*T+4*kk, kk == 0)
                if nl < 11: e_ld(a, 11*T+nl); nl += 1
            if T == 1 and kk in (1, 3, 5, 7) and (kk >> 1) >= OPT["ew0"]: wr(0, kk >> 1)
            if T == 0 and kk == OPT["epr"]: ldpr(1)
            pm(a, f"e{T}k{kk}")
        a(f"v_cmp_eq_u32 vcc, -1, v{MX}")
        a(f"s_cbranch_vccnz L_efix{T}")
        a(f"L_eok{T}:")
    lp, dn = a.label("cn2"), a.label("cn2d")
    a(f"v_mov_b32 v3, {L_CN2}")
    a(f"s_mov_b32 s{sCNT}, {1 << 20}")
    a(f"{lp}:")
    a(f"ds_read_b32 v{PR}, v3")
    a("s_waitcnt lgkmcnt(0)")
    a(f"v_cmp_ne_u32 vcc, 8, v{PR}")
    a(f"s_cbranch_vccz {dn}")
    a(f"s_sub_u32 s{sCNT}, s{sCNT}, 1")
    a(f"s_cbranch_scc0 {lp}")
    a(f"{dn}:")
    for j in range(4):
        a(f"v_lshlrev_b32 v{4+2*j}, 16, v{HB+j}")
        a(f"v_and_b32 v{5+2*j}, 0xffff0000, v{HB+j}")
    a(f"s_mul_i32 s45, s46, {14*KB}")
    a("s_cmp_eq_u32 s47, 0")
    a(f"s_cselect_b32 s44, {L_REDE[0]}, {L_REDE[1]}")
    a("s_add_u32 s45, s45, s44")
    a(f"v_add_u32 v3, s45, v2")
    for q in (3, 2, 1, 0): wr(1, q)
    lab, lb2 = a.label("odd"), a.label("sum")
    a("s_cmp_lg_u32 s47, 0")
    a(f"s_cbranch_scc1 {lab}")
    for r in range(8): a(f"v_add_f32 v{ACC+r}, v{ACC+r}, v{4+r}")
    a(f"s_branch {lb2}")
    a(f"{lab}:")
    for r in range(8): a(f"v_add_f32 v{ACC+r}, v{ACC+32+r}, v{4+r}")
    a(f"{lb2}:")
    a.waitlg()
    pm(a, "e3")
    a("s_barrier")
    pm(a, "e4")
    for s in range(7):
        a(f"ds_read_b128 {vr(4+8*s,4)}, v3 offset:{s*2048}")
        a(f"ds_read_b128 {vr(8+8*s,4)}, v3 offset:{s*2048+1024}")
    for s in range(7):
        for r in range(8): a(f"v_add_f32 v{ACC+r}, v{ACC+r}, v{4+8*s+r}")
    pack8(a, 4, ACC)
    a(f"buffer_store_dwordx4 v[4:7], v{VRES}, {R(SOUT)}, s{sRES} offen")
    pm(a, "e5")

def efix(a):
    for T in range(2):
        a(f"L_efix{T}:")
        a("s_waitcnt vmcnt(0) lgkmcnt(0)")
        a("s_nop 15\ns_nop 3")
        a("s_sub_u32 s101, s101, 1")
        a(f"s_cbranch_scc1 L_eok{T}")
        for kk in range(11): e_ld(a, 11*T + kk)
        a("s_waitcnt vmcnt(0)")
        a(f"s_branch L_eredo{T}")

def build():
    a = Asm()
    name = NAME + "_kernel"
    kernel_begin(a, name)
    prologue(a)
    stop = OPT["stop"]
    a("s_cmp_ge_u32 s3, 4")
    a("s_cbranch_scc1 L_helper")
    phaseA_mfma(a)
    if stop > 1: attn_setup(a)
    phaseA_mfma_pub(a)
    if stop > 1:
        attn_setup2(a)
        first_tiles(a)
        attn_loop(a, True)
    else: a("s_waitcnt vmcnt(0) lgkmcnt(0)")
    a("s_branch L_attn_done")
    a("L_helper:")
    phaseA_helper(a)
    if stop > 1:
        attn_setup(a); attn_setup2(a); prep_addr(a)
        if OPT["tp"] < 0:
            prep_rd(a)
            pm(a, "a3")
            for e in range(6): prep_st(a, e)
            pm(a, "a4")
        attn_loop(a, False)
    else: a("s_waitcnt vmcnt(0) lgkmcnt(0)")
    a("L_attn_done:")
    if stop > 1:
        attn_finish(a)
        if stop > 2:
            phaseC(a)
            if stop > 3:
                phaseD(a)
                if stop > 4: phaseE(a)
            bump(a)
    prof_end(a)
    if stop > 1: fallback(a)
    if stop > 3: dfix(a)
    if stop > 4: efix(a)
    a("L_exit:")
    a("s_endpgm")
    hdr = open("cdna_kernels/" + NAME + ".s.ref").read().split("; Override launch")[0]
    out = hdr + f"; @launch grid=(256,1,1) block=(512,1,1) lds={LDS_BYTES}\n"
    out += '.amdgcn_target "amdgcn-amd-amdhsa--gfx950"\n.text\n'
    out += a.finalize()
    out += '.section .rodata,"a"\n.p2align 6\n' + kernel_desc(name, 256)
    print("auto:", a.stats, "instrs", len(a.ins), file=sys.stderr)
    return out

if __name__ == "__main__":
    Prof.on = "prof" in sys.argv
    Prof.cyc = "cyc" in sys.argv
    OPT["fast"] = "fast" in sys.argv
    for x in sys.argv[2:]:
        if x.startswith("marks="): MARKS[:] = x[6:].split(",")
        elif "=" in x: OPT[x.split("=")[0]] = int(x.split("=")[1])
    open(sys.argv[1], "w").write(build())
```
